```python
import torch

def _softmax(x, axis=-1):
    return torch.softmax(x, dim=axis)
def _gelu(x):
    return torch.nn.functional.gelu(x, approximate="tanh")
def _silu(x):
    return torch.nn.functional.silu(x)
def _sigmoid(x):
    return torch.sigmoid(x)
def _layernorm(x, axis=-1, eps=1e-5):
    m = x.mean(dim=axis, keepdim=True)
    v = x.var(dim=axis, keepdim=True, unbiased=False)
    return (x - m) / torch.sqrt(v + eps)
def _scatter_add(tgt, idx, src, axis=0):
    return tgt.clone().index_add_(axis, idx, src)
def _segment_sum(src, seg, n):
    out = torch.zeros((n,) + src.shape[1:], dtype=src.dtype)
    return out.index_add_(0, seg, src)
def _pad(x, pw):
    flat = tuple(v for pair in reversed(pw) for v in pair)
    return torch.nn.functional.pad(x, flat)

kernel_name = 'interleave_layers__ssm_conv_s4__sliding_block__prompt'

def setup_inputs():

    _w = (lambda a: (lambda t: t.to(torch.bfloat16) if t.is_floating_point() else t)(torch.as_tensor(a)))
    def _A_setup():
        B, L, D, N = 1, 2048, 512, 128
        A_re = -(lambda _x: torch.exp(torch.as_tensor(_x)))((lambda *s: torch.randn(*s, dtype=torch.bfloat16) * 1.6)(D, N))
        A_im = torch.pi * (lambda *s: torch.randn(*s, dtype=torch.bfloat16) * 0.05)(D, N)
        B_re = (lambda *s: torch.randn(*s, dtype=torch.bfloat16) * 0.05)(D, N)
        B_im = (lambda *s: torch.randn(*s, dtype=torch.bfloat16) * 0.05)(D, N)
        C_re = (lambda *s: torch.randn(*s, dtype=torch.bfloat16) * 0.05)(D, N)
        C_im = (lambda *s: torch.randn(*s, dtype=torch.bfloat16) * 0.05)(D, N)
        log_dt = (lambda *s: torch.randn(*s, dtype=torch.bfloat16) * 0.05)(D) * 0.5 - 4.0
        Dskip = (lambda *s: torch.randn(*s, dtype=torch.bfloat16) * 0.05)(D)
        return {
            "u": _w((lambda *s: torch.randn(*s, dtype=torch.bfloat16) * 0.05)(B, L, D)),
            "A_re": _w(A_re),
            "A_im": _w(A_im),
            "B_re": _w(B_re),
            "B_im": _w(B_im),
            "C_re": _w(C_re),
            "C_im": _w(C_im),
            "log_dt": _w(log_dt),
            "Dskip": _w(Dskip),
        }
    _A_in = _A_setup()

    def _B_setup():
        B, S, D = 1, 2048, 512
        return {
            "x": _w((lambda *s: torch.randn(*s, dtype=torch.bfloat16) * 0.05)(B, S, D)),
            "wqkv": _w((lambda *s: torch.randn(*s, dtype=torch.bfloat16) * 0.05)(D, 3 * D)),
            "wo": _w((lambda *s: torch.randn(*s, dtype=torch.bfloat16) * 0.05)(D, D)),
        }
    _B_in = _B_setup()

    return {
        "A_u": _A_in["u"],
        "A_A_re": _A_in["A_re"],
        "A_A_im": _A_in["A_im"],
        "A_B_re": _A_in["B_re"],
        "A_B_im": _A_in["B_im"],
        "A_C_re": _A_in["C_re"],
        "A_C_im": _A_in["C_im"],
        "A_log_dt": _A_in["log_dt"],
        "A_Dskip": _A_in["Dskip"],
        "B_x": _B_in["x"],
        "B_wqkv": _B_in["wqkv"],
        "B_wo": _B_in["wo"],
    }

def reference(A_u, A_A_re, A_A_im, A_B_re, A_B_im, A_C_re, A_C_im, A_log_dt, A_Dskip, B_x, B_wqkv, B_wo):
    def _A_ref(u, A_re, A_im, B_re, B_im, C_re, C_im, log_dt, Dskip):
        Bsz, L, D = u.shape
        dt = torch.exp(log_dt)[:, None]
        A = A_re + 1j * A_im
        Bc = B_re + 1j * B_im
        Cc = C_re + 1j * C_im
        logdA = dt * A
        dB = dt * Bc
        l = (lambda x, dt: x.to(dt))(torch.arange(L), A_re.dtype)
        P = torch.exp(logdA[:, :, None] * l[None, None, :])
        K = torch.einsum("dn,dnl,dn->dl", Cc, P, dB).real
        L2 = 2 * L
        Kp = _pad(K, ((0, 0), (0, L)))
        up = (lambda x, *d: x.permute(*d))(u, 0, 2, 1)
        up = _pad(up, ((0, 0), (0, 0), (0, L)))
        Kf = (lambda x, axes=(-2,-1): torch.fft.rfft2(x.float(), dim=axes))(Kp[:, None, :], axes=(-2, -1))
        Uf = (lambda x, axes=(-2,-1): torch.fft.rfft2(x.float(), dim=axes))(up[:, :, None, :], axes=(-2, -1))
        Yf = Uf * Kf[None, :, :, :]
        y = (lambda x, s, axes=(-2,-1): torch.fft.irfft2(x, s=s, dim=axes).to(torch.bfloat16))(Yf, (1, L2), axes=(-2, -1))[:, :, 0, :L]
        y = (lambda x, *d: x.permute(*d))(y, 0, 2, 1) + u * Dskip[None, None, :]
        return y

    def _B_ref(x, wqkv, wo):
        B, S, D = x.shape
        H = 32; Dh = D // H; W = 256
        qkv = (lambda x, *d: x.permute(*d))((x @ wqkv).reshape(B, S, 3, H, Dh), 2, 0, 3, 1, 4)
        q, k, v = qkv[0], qkv[1], qkv[2]
        scores = torch.einsum("bhqd,bhkd->bhqk", q, k) * (Dh ** -0.5)
        idx = torch.arange(S)
        mask = (idx[:, None] - idx[None, :] >= 0) & (idx[:, None] - idx[None, :] < W)
        scores = torch.where(mask[None, None], scores, -1e9)
        p = _softmax(scores, axis=-1)
        o = torch.einsum("bhqk,bhkd->bhqd", p, v)
        return (lambda x, *d: x.permute(*d))(o, 0, 2, 1, 3).reshape(B, S, D) @ wo

    x = A_u
    x = x + _A_ref(_layernorm(x, axis=-1), A_A_re, A_A_im, A_B_re, A_B_im, A_C_re, A_C_im, A_log_dt, A_Dskip)
    x = x + _B_ref(_layernorm(x, axis=-1), B_wqkv, B_wo)
    x = x + _A_ref(_layernorm(x, axis=-1), A_A_re, A_A_im, A_B_re, A_B_im, A_C_re, A_C_im, A_log_dt, A_Dskip)
    x = x + _B_ref(_layernorm(x, axis=-1), B_wqkv, B_wo)
    return x
```

```python
XT0, XT1, XT2, XT3 = 0x000000, 0x200000, 0x400000, 0x600000
KR   = 0x800000
WQT  = 0xD00000
WOT  = 0xF00000
QB, KB, VT = 0x1000000, 0x1200000, 0x1400000
OB   = 0x1600000
ST0, ST1 = 0x1800000, 0x1810000
WS_BYTES = 0x10000000

class K:
    def __init__(self, name):
        self.name = name; self.L = []
    def __call__(self, s):
        for line in s.strip("\n").split("\n"):
            self.L.append("    " + line.strip())
    def label(self, l): self.L.append(l + ":")
    def text(self): return "\n".join(self.L)

def header(k, nwg):
    n = k.name
    k.L.append(".globl %s\n.p2align 8\n.type %s,@function\n%s:" % (n, n, n))
    k("s_cmp_ge_u32 s2, %d\ns_cbranch_scc1 %s_end" % (nwg, n))

def footer(k):
    k.label(k.name + "_end"); k("s_endpgm")

def srd(k, d, b, nbytes):
    k("s_mov_b32 s%d, s%d\ns_and_b32 s%d, s%d, 0xffff\ns_mov_b32 s%d, 0x%x\ns_mov_b32 s%d, 0x00020000" % (d, b, d+1, b+1, d+2, nbytes, d+3))

def desc(name, vgpr, accum=None, sgpr=96):
    if accum is None: accum = (vgpr + 3) // 4 * 4
    return """.amdhsa_kernel %s
  .amdhsa_next_free_vgpr %d
  .amdhsa_next_free_sgpr %d
  .amdhsa_accum_offset %d
  .amdhsa_group_segment_fixed_size 0
  .amdhsa_kernarg_size 120
  .amdhsa_user_sgpr_count 2
  .amdhsa_user_sgpr_kernarg_segment_ptr 1
  .amdhsa_system_sgpr_workgroup_id_x 1
.end_amdhsa_kernel""" % (name, vgpr, sgpr, accum)

def unpack(k, lo, hi, src):
    k("v_lshlrev_b32 v%d, 16, v%d\nv_and_b32 v%d, 0xffff0000, v%d" % (lo, src, hi, src))

def ln_finalize(k, s1, s2, t0, t1):
    k(f"""v_mul_f32 v{s1}, 0x3b000000, v{s1}
    v_mul_f32 v{s2}, 0x3b000000, v{s2}
    v_fma_f32 v{s2}, -v{s1}, v{s1}, v{s2}
    v_max_f32 v{s2}, 0, v{s2}
    v_cvt_pk_bf16_f32 v{t0}, v{s1}, v{s2}
    v_lshlrev_b32 v{s1}, 16, v{t0}
    v_and_b32 v{s2}, 0xffff0000, v{t0}
    v_add_f32 v{s2}, 0x3727c5ac, v{s2}
    v_cvt_pk_bf16_f32 v{t0}, v{s2}, v{s2}
    v_lshlrev_b32 v{s2}, 16, v{t0}
    v_sqrt_f32 v{s2}, v{s2}
    s_nop 0
    v_cvt_pk_bf16_f32 v{t0}, v{s2}, v{s2}
    v_lshlrev_b32 v{s2}, 16, v{t0}
    v_rcp_f32 v{s2}, v{s2}
    s_nop 0""")
```

```python
from gen_common import *
def k1():
    k = K("prep_kernel"); header(k, 640)
    k("""s_cmp_ge_u32 s2, 128
    s_cbranch_scc1 prep_kgen
    s_load_dwordx2 s[4:5], s[0:1], 0
    s_load_dwordx2 s[6:7], s[0:1], 80
    s_load_dwordx2 s[8:9], s[0:1], 88
    s_load_dwordx2 s[10:11], s[0:1], 112
    s_waitcnt lgkmcnt(0)""")
    srd(k, 16, 10, WS_BYTES)
    k("""s_cmp_ge_u32 s2, 64
    s_cbranch_scc1 prep_m1""")
    srd(k, 12, 4, 0x200000)
    k(f"""s_lshl_b32 s20, s2, 15
    s_mov_b32 s21, 1024
    s_lshl_b32 s22, s2, 6
    s_add_u32 s22, s22, {XT0}
    s_mov_b32 s23, 4096
    s_mov_b32 s24, 0
    s_branch prep_go""")
    k.label("prep_m1")
    k("""s_cmp_ge_u32 s2, 112
    s_cbranch_scc1 prep_m2""")
    srd(k, 12, 6, 0x180000)
    k(f"""s_sub_u32 s3, s2, 64
    s_lshr_b32 s25, s3, 4
    s_and_b32 s26, s3, 15
    s_mul_i32 s20, s26, 98304
    s_lshl_b32 s27, s25, 10
    s_add_u32 s20, s20, s27
    s_mov_b32 s21, 3072
    s_lshl_b32 s22, s25, 19
    s_lshl_b32 s27, s26, 6
    s_add_u32 s22, s22, s27
    s_add_u32 s22, s22, {WQT}
    s_mov_b32 s23, 1024
    s_mov_b32 s24, 1
    s_branch prep_go""")
    k.label("prep_m2")
    srd(k, 12, 8, 0x80000)
    k(f"""s_sub_u32 s3, s2, 112
    s_lshl_b32 s20, s3, 15
    s_mov_b32 s21, 1024
    s_lshl_b32 s22, s3, 6
    s_add_u32 s22, s22, {WOT}
    s_mov_b32 s23, 1024
    s_mov_b32 s24, 2""")
    k.label("prep_go")
    k("""v_lshrrev_b32 v1, 3, v0
    v_and_b32 v2, 7, v0
    v_mul_lo_u32 v3, v1, s21
    v_lshl_add_u32 v3, v2, 4, v3
    v_mul_u32_u24 v4, 1088, v1
    v_lshl_add_u32 v4, v2, 4, v4""")
    for i in range(8):
        k(f"buffer_load_dwordx4 v[{8+4*i}:{11+4*i}], v3, s[12:15], s20 offen offset:{128*i}")
    k("""v_and_b32 v5, 15, v0
    v_lshrrev_b32 v5, 2, v5
    v_mul_u32_u24 v5, 1088, v5
    v_and_b32 v6, 0xf0, v0
    v_and_b32 v7, 3, v0
    v_lshl_add_u32 v6, v7, 2, v6
    v_lshl_add_u32 v5, v6, 1, v5
    v_mul_lo_u32 v6, v0, s23""")
    for i in range(8):
        k(f"s_waitcnt vmcnt({7-i})\nds_write_b128 v4, v[{8+4*i}:{11+4*i}] offset:{128*i}")
    k("""s_cmp_lg_u32 s24, 0
    s_cbranch_scc1 prep_nostats
    v_mov_b32 v60, 0
    v_mov_b32 v61, 0""")
    for r in range(8, 40):
        unpack(k, 62, 63, r)
        k("""v_add_f32 v60, v60, v62
        v_fmac_f32 v61, v62, v62
        v_add_f32 v60, v60, v63
        v_fmac_f32 v61, v63, v63""")
    for dpp in ("quad_perm:[1,0,3,2]", "quad_perm:[2,3,0,1]", "row_half_mirror"):
        k(f"""s_nop 1
        v_add_f32_dpp v60, v60, v60 {dpp} row_mask:0xf bank_mask:0xf
        v_add_f32_dpp v61, v61, v61 {dpp} row_mask:0xf bank_mask:0xf""")
    k(f"""s_lshl_b32 s3, s2, 8
    s_add_u32 s3, s3, {ST0}
    v_lshlrev_b32 v62, 3, v1
    v_cmp_eq_u32 vcc, 0, v2
    s_and_saveexec_b64 s[28:29], vcc
    buffer_store_dwordx2 v[60:61], v62, s[16:19], s3 offen
    s_mov_b64 exec, s[28:29]""")
    k.label("prep_nostats")
    k("""s_waitcnt lgkmcnt(0)
    s_barrier
    s_lshl_b32 s25, s23, 8
    s_add_u32 s25, s25, s22
    s_cmp_eq_u32 s24, 1
    s_cbranch_scc1 prep_perm""")
    for variant in (0, 1):
        if variant == 1: k.label("prep_perm")
        for p in range(2):
            for i in range(8):
                if variant == 0: d = 8 + 16*p + 2*i
                else: d = 8 + 16*p + (4*i if i < 4 else 4*(i-4)+2)
                k(f"ds_read_b64_tr_b16 v[{d}:{d+1}], v5 offset:{4352*i+512*p}")
        for p in range(2):
            k(f"s_waitcnt lgkmcnt({8*(1-p)})")
            for j in range(4):
                k(f"buffer_store_dwordx4 v[{8+16*p+4*j}:{11+16*p+4*j}], v6, s[16:19], s{22 if p==0 else 25} offen offset:{16*j}")
        k("s_endpgm")
    k.label("prep_kgen")
    k("""s_sub_u32 s3, s2, 128
    s_load_dwordx4 s[4:7], s[0:1], 8
    s_load_dwordx4 s[8:11], s[0:1], 24
    s_load_dwordx4 s[12:15], s[0:1], 40
    s_load_dwordx2 s[16:17], s[0:1], 56
    s_load_dwordx2 s[18:19], s[0:1], 112
    v_and_b32 v1, 127, v0
    s_lshl_b32 s20, s3, 8
    v_lshl_add_u32 v2, v1, 1, s20
    s_lshl_b32 s21, s3, 1
    v_mov_b32 v3, s21
    s_waitcnt lgkmcnt(0)
    global_load_ushort v4, v2, s[4:5]
    global_load_ushort v5, v2, s[6:7]
    global_load_ushort v6, v2, s[8:9]
    global_load_ushort v7, v2, s[10:11]
    global_load_ushort v8, v2, s[12:13]
    global_load_ushort v9, v2, s[14:15]
    global_load_ushort v10, v3, s[16:17]""")
    srd(k, 24, 18, WS_BYTES)
    k("""s_waitcnt vmcnt(0)
    v_lshlrev_b32 v4, 16, v4
    v_lshlrev_b32 v5, 16, v5
    v_lshlrev_b32 v6, 16, v6
    v_lshlrev_b32 v7, 16, v7
    v_lshlrev_b32 v8, 16, v8
    v_lshlrev_b32 v9, 16, v9
    v_lshlrev_b32 v10, 16, v10
    v_mul_f32 v10, 0x3fb8aa3b, v10
    v_exp_f32 v10, v10
    s_nop 0
    v_cvt_pk_bf16_f32 v10, v10, v10
    v_lshlrev_b32 v10, 16, v10
    v_mul_f32 v12, v10, v4
    v_mul_f32 v12, 0x3fb8aa3b, v12
    v_mul_f32 v13, v10, v5
    v_mul_f32 v13, 0x3e22f983, v13
    v_mul_f32 v6, v10, v6
    v_mul_f32 v7, v10, v7
    v_mul_f32 v14, v8, v6
    v_fma_f32 v14, -v9, v7, v14
    v_mul_f32 v15, v8, v7
    v_fma_f32 v15, v9, v6, v15
    v_lshlrev_b32 v2, 4, v1
    ds_write_b128 v2, v[12:15] offset:4352
    v_lshrrev_b32 v16, 6, v0
    v_and_b32 v17, 15, v0
    v_bfe_u32 v18, v0, 4, 2
    v_min_u32 v19, 1, v16
    v_lshlrev_b32 v19, 7, v19
    v_lshl_add_u32 v19, v17, 4, v19
    v_lshlrev_b32 v19, v16, v19
    v_cvt_f32_u32 v19, v19
    v_lshlrev_b32 v20, v16, v17
    v_cvt_f32_u32 v20, v20
    v_lshlrev_b32 v21, 4, v18
    v_mov_b32 v40, 0
    v_mov_b32 v41, 0
    v_mov_b32 v42, 0
    v_mov_b32 v43, 0
    v_mov_b32 v44, 0
    v_mov_b32 v45, 4096
    ds_write_b32 v45, v44
    s_waitcnt lgkmcnt(0)
    s_barrier
    ds_read_b128 v[24:27], v21 offset:4352""")
    for s in range(32):
        P = 24 if s % 2 == 0 else 28
        Pn = 28 if s % 2 == 0 else 24
        if s < 31: k(f"ds_read_b128 v[{Pn}:{Pn+3}], v21 offset:{4352+64*(s+1)}\ns_waitcnt lgkmcnt(1)")
        else: k("s_waitcnt lgkmcnt(0)")
        k(f"""v_mul_f32 v32, v{P}, v19
        v_mul_f32 v33, v{P+1}, v19
        v_mul_f32 v34, v{P}, v20
        v_mul_f32 v35, v{P+1}, v20
        v_exp_f32 v32, v32
        v_fract_f32 v33, v33
        v_exp_f32 v34, v34
        v_fract_f32 v35, v35
        v_sin_f32 v36, v33
        v_cos_f32 v33, v33
        v_sin_f32 v37, v35
        v_cos_f32 v35, v35
        v_mul_f32 v36, v36, v32
        v_mul_f32 v33, v33, v32
        v_mul_f32 v37, v37, v34
        v_mul_f32 v35, v35, v34
        v_mul_f32 v38, v{P+2}, v33
        v_fma_f32 v38, -v{P+3}, v36, v38
        v_mul_f32 v39, v{P+3}, v33
        v_fma_f32 v39, v{P+2}, v36, v39
        v_sub_f32 v39, 0, v39
        s_nop 1
        v_mfma_f32_16x16x4_f32 v[40:43], v38, v35, v[40:43]
        v_mfma_f32_16x16x4_f32 v[40:43], v39, v37, v[40:43]""")
    k("""v_lshlrev_b32 v22, 10, v16
    v_lshl_add_u32 v22, v18, 8, v22
    v_lshl_add_u32 v22, v17, 2, v22
    s_nop 10
    ds_write_b32 v22, v40
    ds_write_b32 v22, v41 offset:64
    ds_write_b32 v22, v42 offset:128
    ds_write_b32 v22, v43 offset:192
    v_lshlrev_b32 v1, 3, v0
    v_sub_u32 v1, 2047, v1
    s_waitcnt lgkmcnt(0)
    s_barrier""")
    for e in range(9):
        k(f"""v_subrev_u32 v2, {e}, v1
        v_cvt_f32_u32 v3, v2
        v_bfe_u32 v4, v3, 16, 1
        v_add3_u32 v4, v3, v4, s30
        v_and_b32 v4, 0xffff0000, v4
        v_cvt_u32_f32 v4, v4
        v_lshrrev_b32 v5, 23, v3
        v_subrev_u32 v5, 134, v5
        v_max_i32 v5, 0, v5
        v_lshrrev_b32 v4, v5, v4
        v_lshl_add_u32 v4, v5, 8, v4
        v_min_u32 v5, 1, v5
        v_lshlrev_b32 v5, 7, v5
        v_sub_u32 v4, v4, v5
        v_cmp_gt_i32 vcc, 0, v2
        v_cndmask_b32 v4, v4, v46, vcc
        v_lshlrev_b32 v4, 2, v4
        ds_read_b32 v{24+e}, v4""")
    k(f"""s_mul_i32 s20, s3, 8448
    s_add_u32 s20, s20, {KR}
    v_lshlrev_b32 v1, 4, v0
    s_waitcnt lgkmcnt(0)
    v_cvt_pk_bf16_f32 v8, v24, v25
    v_cvt_pk_bf16_f32 v9, v26, v27
    v_cvt_pk_bf16_f32 v10, v28, v29
    v_cvt_pk_bf16_f32 v11, v30, v31
    v_cvt_pk_bf16_f32 v12, v25, v26
    v_cvt_pk_bf16_f32 v13, v27, v28
    v_cvt_pk_bf16_f32 v14, v29, v30
    v_cvt_pk_bf16_f32 v15, v31, v32
    s_add_u32 s21, s20, 4224
    buffer_store_dwordx4 v[8:11], v1, s[24:27], s20 offen
    buffer_store_dwordx4 v[12:15], v1, s[24:27], s21 offen
    v_lshrrev_b32 v2, 3, v0
    v_mul_u32_u24 v2, 4224, v2
    v_and_b32 v3, 7, v0
    v_lshl_add_u32 v2, v3, 4, v2
    v_mov_b32 v16, 0
    v_mov_b32 v17, 0
    v_mov_b32 v18, 0
    v_mov_b32 v19, 0
    v_cmp_gt_u32 vcc, 16, v0
    s_and_saveexec_b64 s[28:29], vcc
    s_cbranch_execz prep_kgen_done
    buffer_store_dwordx4 v[16:19], v2, s[24:27], s20 offen offset:4095
    """)
    k.label("prep_kgen_done")
    footer(k)
    t = k.text()
    t = t.replace("v_lshlrev_b32 v1, 3, v0\n    v_sub_u32 v1, 2047, v1", "v_lshlrev_b32 v1, 3, v0\n    v_sub_u32 v1, 2047, v1\n    s_mov_b32 s30, 0x7fff\n    v_mov_b32 v46, 1024")
    t = t.replace("v_lshl_add_u32 v2, v3, 4, v2\n    v_mov_b32 v16, 0", "v_lshl_add_u32 v2, v3, 4, v2\n    v_add_u32 v2, 4096, v2\n    v_mov_b32 v16, 0")
    t = t.replace(" offen offset:4095", " offen")
    return t, desc("prep_kernel", 64)
```

```python
from gen_common import *
KC_CH = 34304; KC_CP = 4288; UB = 68608; U_CH = 7680; RED = 83968
CONV_LDS = RED + 16384
def k2(name, xin, xout, st):
    k = K(name); header(k, 256)
    k("""s_load_dwordx2 s[4:5], s[0:1], 112
    s_load_dwordx2 s[6:7], s[0:1], 64
    s_waitcnt lgkmcnt(0)""")
    srd(k, 8, 4, WS_BYTES)
    k(f"""s_mul_i32 s12, s2, 16896
    s_add_u32 s12, s12, {KR}
    s_lshl_b32 s13, s2, 13
    s_add_u32 s14, s13, {xout}
    s_add_u32 s13, s13, {xin}
    s_add_u32 s15, s13, 4096
    s_mov_b32 s16, {st}
    v_lshlrev_b32 v1, 4, v0
    v_lshlrev_b32 v2, 6, v0
    buffer_load_dwordx4 v[100:103], v1, s[8:11], s13 offen
    buffer_load_dwordx4 v[104:107], v1, s[8:11], s15 offen
    buffer_load_dwordx4 v[108:111], v2, s[8:11], s16 offen
    buffer_load_dwordx4 v[112:115], v2, s[8:11], s16 offen offset:16
    buffer_load_dwordx4 v[116:119], v2, s[8:11], s16 offen offset:32
    buffer_load_dwordx4 v[120:123], v2, s[8:11], s16 offen offset:48""")
    for ch in range(2):
        for r in range(8):
            off = ch*8448 + (r % 2)*4224 + 2*(r - r % 2)
            idx = ch*8 + r
            k(f"s_add_u32 s17, s12, {off}\nbuffer_load_dwordx4 v[{4+4*idx}:{7+4*idx}], v1, s[8:11], s17 offen")
    k("""v_lshrrev_b32 v70, 7, v0
    s_lshl_b32 s17, s2, 2
    v_lshl_add_u32 v71, v70, 1, s17
    global_load_ushort v72, v71, s[6:7]""")
    k(f"""v_mov_b32 v124, 0
    v_mov_b32 v125, 0
    v_mov_b32 v126, 0
    v_mov_b32 v127, 0
    v_cmp_gt_u32 vcc, 155, v0
    s_and_saveexec_b64 s[20:21], vcc
    ds_write_b128 v1, v[124:127] offset:{UB-65536+65536 if False else 0}+0
    s_mov_b64 exec, s[20:21]""".replace("offset:0+0", "offset:0"))
    k.L.pop(); k.L.pop();
    k(f"""v_add_u32 v73, {UB}, v1
    ds_write_b128 v73, v[124:127]
    ds_write_b128 v73, v[124:127] offset:{U_CH}
    s_mov_b64 exec, s[20:21]
    v_lshrrev_b32 v73, 2, v0
    v_mul_u32_u24 v73, {KC_CP}, v73
    v_and_b32 v74, 3, v0
    v_lshl_add_u32 v73, v74, 4, v73
    v_cmp_gt_u32 vcc, 64, v0
    s_and_saveexec_b64 s[20:21], vcc
    ds_write_b128 v73, v[124:127] offset:4096
    s_mov_b64 exec, s[20:21]""")
    k("s_waitcnt vmcnt(17)")
    for j in range(8):
        ln_finalize(k, 108+2*j, 109+2*j, 124, 125)
    for ch in range(2):
        for jj in range(4):
            src = 100 + 4*ch + jj
            unpack(k, 124, 125, src)
            m0, r0, m1, r1 = 108+4*jj, 109+4*jj, 110+4*jj, 111+4*jj
            k(f"""v_sub_f32 v124, v124, v{m0}
            v_sub_f32 v125, v125, v{m1}
            v_cvt_pk_bf16_f32 v126, v124, v125
            v_lshlrev_b32 v124, 16, v126
            v_and_b32 v125, 0xffff0000, v126
            v_mul_f32 v124, v124, v{r0}
            v_mul_f32 v125, v125, v{r1}
            v_cvt_pk_bf16_f32 v{src}, v124, v125""")
    k(f"""v_lshrrev_b32 v73, 2, v0
    v_mul_u32_u24 v73, 80, v73
    v_lshl_add_u32 v73, v74, 4, v73
    v_add_u32 v73, {UB + 31*80}, v73
    ds_write_b128 v73, v[100:103]
    ds_write_b128 v73, v[104:107] offset:{U_CH}""")
    for idx in range(16):
        ch, r = idx // 8, idx % 8
        k(f"s_waitcnt vmcnt({16-idx})")
        off = ch*KC_CH + r*KC_CP
        if off < 65536: k(f"ds_write_b128 v1, v[{4+4*idx}:{7+4*idx}] offset:{off}")
        else: raise Exception
    k(f"""v_and_b32 v75, 31, v0
    v_bfe_u32 v76, v0, 5, 1
    v_bfe_u32 v77, v0, 6, 1
    v_sub_u32 v78, 7, v75
    v_and_b32 v78, 7, v78
    v_mul_u32_u24 v79, {KC_CH}, v70
    v_mul_u32_u24 v80, {KC_CP}, v78
    v_add_u32 v79, v79, v80
    v_lshlrev_b32 v80, 3, v76
    v_add_u32 v80, 2047, v80
    v_sub_u32 v80, v80, v75
    v_sub_u32 v80, v80, v78
    v_lshl_add_u32 v79, v80, 1, v79
    v_lshlrev_b32 v80, 6, v77
    v_sub_u32 v79, v79, v80
    v_subrev_u32 v79, {64*62}, v79
    v_mul_u32_u24 v80, {U_CH}, v70
    v_sub_u32 v81, v75, v77
    v_mul_i32_i24 v81, 80, v81
    v_add3_u32 v80, v80, v81, {0})""".replace(", {0})", ", 0").replace(", 0)", ", 0"))
    k(f"""v_lshl_add_u32 v80, v76, 4, v80
    v_add_u32 v80, {UB}, v80""")
    for r in range(32): k(f"v_mov_b32 v{128+r}, 0")
    k("s_waitcnt lgkmcnt(0)\ns_barrier")
    def issue(m):
        b = 160 + 24*(m % 3); n = 0
        for c in range(2):
            k(f"ds_read_b128 v[{b+4*c}:{b+4*c+3}], v79 offset:{64*(62-2*m)+32*c}"); n += 1
        for c in range(2):
            k(f"ds_read_b128 v[{b+16+4*c}:{b+16+4*c+3}], v80 offset:{(63-2*m)*80+32*c}"); n += 1
        if m <= 15:
            for c in range(2):
                k(f"ds_read_b128 v[{b+8+4*c}:{b+8+4*c+3}], v80 offset:{(31-2*m)*80+32*c}"); n += 1
        return n
    cnt = {}
    cnt[0] = issue(0); cnt[1] = issue(1)
    for m in range(32):
        if m + 2 < 32: cnt[m+2] = issue(m+2)
        pend = sum(cnt[x] for x in (m+1, m+2) if x < 32)
        k(f"s_waitcnt lgkmcnt({pend})")
        b = 160 + 24*(m % 3)
        for c in range(2):
            k(f"v_mfma_f32_32x32x16_bf16 v[144:159], v[{b+4*c}:{b+4*c+3}], v[{b+16+4*c}:{b+16+4*c+3}], v[144:159]")
            if m <= 15:
                k(f"v_mfma_f32_32x32x16_bf16 v[128:143], v[{b+4*c}:{b+4*c+3}], v[{b+8+4*c}:{b+8+4*c+3}], v[128:143]")
    k(f"""v_and_b32 v82, 63, v0
    v_lshlrev_b32 v82, 4, v82
    v_lshl_add_u32 v82, v70, 13, v82
    v_add_u32 v82, {RED}, v82
    v_lshl_add_u32 v83, v77, 12, v82
    v_xor_b32 v84, 4096, v83
    v_lshlrev_b32 v85, 5, v77
    v_add_u32 v85, v85, v75
    v_lshlrev_b32 v86, 6, v85
    v_lshl_add_u32 v86, v76, 3, v86
    v_lshl_add_u32 v86, v70, 12, v86
    v_add_u32 v87, 31, v85
    v_mul_u32_u24 v87, 80, v87
    v_lshl_add_u32 v87, v76, 3, v87
    v_mul_u32_u24 v88, {U_CH}, v70
    v_add3_u32 v87, v87, v88, {UB}""".replace(f"v_add3_u32 v87, v87, v88, {UB}", f"v_add_u32 v87, v87, v88\nv_add_u32 v87, {UB}, v87"))
    for q in range(4):
        k(f"buffer_load_dwordx2 v[{4+2*q}:{5+2*q}], v86, s[8:11], s13 offen offset:{16*q}")
        k(f"ds_read_b64 v[{12+2*q}:{13+2*q}], v87 offset:{16*q}")
    k("""v_cmp_eq_u32 vcc, 0, v77
    s_nop 7
    s_nop 3""")
    for r in range(16):
        k(f"v_cndmask_b32 v{20+r}, v{128+r}, v{144+r}, vcc\nv_cndmask_b32 v{36+r}, v{144+r}, v{128+r}, vcc")
    for q in range(4):
        k(f"ds_write_b128 v84, v[{20+4*q}:{23+4*q}] offset:{1024*q}")
    k("s_waitcnt lgkmcnt(0)\ns_barrier")
    for q in range(4):
        k(f"ds_read_b128 v[{20+4*q}:{23+4*q}], v83 offset:{1024*q}")
    k("s_waitcnt vmcnt(0) lgkmcnt(0)\nv_lshlrev_b32 v72, 16, v72")
    for q in range(4):
        for h in range(2):
            y0, y1 = 36+4*q+2*h, 37+4*q+2*h
            k(f"""v_add_f32 v{y0}, v{y0}, v{20+4*q+2*h}
            v_add_f32 v{y1}, v{y1}, v{21+4*q+2*h}
            v_cvt_pk_bf16_f32 v60, v{y0}, v{y1}""")
            unpack(k, 61, 62, 12+2*q+h)
            k("""v_mul_f32 v61, v61, v72
            v_mul_f32 v62, v62, v72
            v_cvt_pk_bf16_f32 v63, v61, v62""")
            unpack(k, 61, 62, 63); unpack(k, 64, 65, 60)
            k("""v_add_f32 v61, v61, v64
            v_add_f32 v62, v62, v65
            v_cvt_pk_bf16_f32 v63, v61, v62""")
            unpack(k, 61, 62, 63); unpack(k, 64, 65, 4+2*q+h)
            k(f"""v_add_f32 v61, v61, v64
            v_add_f32 v62, v62, v65
            v_cvt_pk_bf16_f32 v{52+2*q+h}, v61, v62""")
        k(f"buffer_store_dwordx2 v[{52+2*q}:{53+2*q}], v86, s[8:11], s14 offen offset:{16*q}")
    footer(k)
    return k.text(), desc(name, 232)
```

```python
from gen_common import *
QKV_LDS = 81920 + 2048
def k3(name, xin):
    k = K(name); header(k, 256)
    k("""s_load_dwordx2 s[4:5], s[0:1], 112
    s_waitcnt lgkmcnt(0)""")
    srd(k, 8, 4, WS_BYTES)
    k(f"""s_and_b32 s12, s2, 7
    s_lshr_b32 s13, s2, 3
    s_lshl_b32 s14, s13, 7
    s_add_u32 s14, s14, {xin}
    v_and_b32 v1, 7, v0
    v_lshrrev_b32 v2, 3, v0
    v_lshlrev_b32 v3, 12, v2
    v_lshl_add_u32 v3, v1, 4, v3
    s_mov_b32 s15, s14""")
    for i in range(16):
        k(f"buffer_load_dwordx4 v[{16+4*i}:{19+4*i}], v3, s[8:11], s15 offen")
        if i < 15: k("s_add_u32 s15, s15, 0x20000")
    k(f"""v_lshrrev_b32 v4, 6, v0
    s_lshl_b32 s16, s12, 2
    v_add_u32 v4, s16, v4
    v_and_b32 v5, 15, v0
    v_lshl_add_u32 v6, v4, 4, v5
    v_lshlrev_b32 v6, 10, v6
    v_bfe_u32 v7, v0, 4, 2
    v_lshl_add_u32 v6, v7, 4, v6
    s_mov_b32 s17, {WQT}
    s_mov_b32 s18, {WQT + 0x80000}
    s_mov_b32 s19, {WQT + 0x100000}""")
    for s in range(16):
        for p in range(3):
            a = 12*s + 4*p
            k(f"buffer_load_dwordx4 a[{a}:{a+3}], v6, s[8:11], s{17+p} offen offset:{64*s}")
    for j in range(16): k(f"v_mov_b32 v{80+j}, 0")
    k("s_waitcnt vmcnt(48)")
    for i in range(16):
        for jj in range(4):
            unpack(k, 96, 97, 16+4*i+jj)
            k(f"""v_add_f32 v{80+2*jj}, v{80+2*jj}, v96
            v_fmac_f32 v{88+2*jj}, v96, v96
            v_add_f32 v{81+2*jj}, v{81+2*jj}, v97
            v_fmac_f32 v{89+2*jj}, v97, v97""")
    k("s_nop 1")
    for j in range(16):
        k(f"v_add_f32_dpp v{80+j}, v{80+j}, v{80+j} row_ror:8 row_mask:0xf bank_mask:0xf")
    for op in ("v_permlane16_swap_b32", "v_permlane32_swap_b32"):
        for j in range(16): k(f"v_mov_b32 v{96+j}, v{80+j}")
        k("s_nop 1")
        for j in range(16): k(f"{op} v{80+j}, v{96+j}")
        for j in range(16): k(f"v_add_f32 v{80+j}, v{80+j}, v{96+j}")
    k(f"""v_lshrrev_b32 v8, 6, v0
    v_lshlrev_b32 v8, 9, v8
    v_lshl_add_u32 v8, v1, 6, v8
    v_add_u32 v8, 81920, v8
    v_lshlrev_b32 v9, 6, v1
    v_add_u32 v9, 81920, v9
    v_and_b32 v10, 63, v0
    v_cmp_gt_u32 vcc, 8, v10
    s_and_saveexec_b64 s[20:21], vcc""")
    for q in range(4): k(f"ds_write_b128 v8, v[{80+4*q}:{83+4*q}] offset:{16*q}")
    k("s_mov_b64 exec, s[20:21]\ns_waitcnt lgkmcnt(0)\ns_barrier")
    for w in range(4):
        for q in range(4):
            d = (80 if w == 0 else 96) + 4*q
            k(f"ds_read_b128 v[{d}:{d+3}], v9 offset:{512*w+16*q}")
        if w > 0:
            k("s_waitcnt lgkmcnt(0)")
            for j in range(16): k(f"v_add_f32 v{80+j}, v{80+j}, v{96+j}")
    for j in range(8):
        ln_finalize(k, 80+j, 88+j, 96, 97)
    k("""v_mul_u32_u24 v11, 160, v2
    v_lshl_add_u32 v11, v1, 4, v11""")
    for i in range(16):
        for jj in range(4):
            src = 16+4*i+jj
            unpack(k, 96, 97, src)
            k(f"""v_sub_f32 v96, v96, v{80+2*jj}
            v_sub_f32 v97, v97, v{81+2*jj}
            v_cvt_pk_bf16_f32 v98, v96, v97
            v_lshlrev_b32 v96, 16, v98
            v_and_b32 v97, 0xffff0000, v98
            v_mul_f32 v96, v96, v{88+2*jj}
            v_mul_f32 v97, v97, v{89+2*jj}
            v_cvt_pk_bf16_f32 v{src}, v96, v97""")
        if 5120*i < 65536: k(f"ds_write_b128 v11, v[{16+4*i}:{19+4*i}] offset:{5120*i}")
        else:
            if 5120*(i-1) < 65536: k("v_add_u32 v12, 40960, v11")
            k(f"ds_write_b128 v12, v[{16+4*i}:{19+4*i}] offset:{5120*i-40960}")
    k("""v_lshrrev_b32 v13, 2, v5
    v_lshl_add_u32 v13, v7, 2, v13
    v_mul_u32_u24 v13, 160, v13
    v_and_b32 v14, 3, v0
    v_lshl_add_u32 v13, v14, 3, v13
    v_add_u32 v14, 40960, v13""")
    for r in range(48): k(f"v_mov_b32 v{64+r}, 0")
    k("s_waitcnt lgkmcnt(0)\ns_barrier")
    def issue(s):
        b = 16 + 16*(s % 2)
        base, so = ("v13", 5120*s) if s < 8 else ("v14", 5120*(s-8))
        for tq in range(4):
            k(f"ds_read_b64_tr_b16 v[{b+4*tq}:{b+4*tq+1}], {base} offset:{so+32*tq}")
            k(f"ds_read_b64_tr_b16 v[{b+4*tq+2}:{b+4*tq+3}], {base} offset:{so+32*tq+2560}")
    issue(0)
    for s in range(16):
        if s < 15: issue(s+1)
        k(f"s_waitcnt vmcnt({45-3*s}) lgkmcnt({8 if s < 15 else 0})")
        b = 16 + 16*(s % 2)
        for tq in range(4):
            for p in range(3):
                a = 12*s + 4*p; c = 64 + 16*p + 4*tq
                if p < 2: k(f"v_mfma_f32_16x16x32_bf16 v[{c}:{c+3}], a[{a}:{a+3}], v[{b+4*tq}:{b+4*tq+3}], v[{c}:{c+3}]")
                else: k(f"v_mfma_f32_16x16x32_bf16 v[{c}:{c+3}], v[{b+4*tq}:{b+4*tq+3}], a[{a}:{a+3}], v[{c}:{c+3}]")
    k(f"""s_lshl_b32 s22, s13, 16
    s_add_u32 s23, s22, {KB}
    s_add_u32 s22, s22, {QB}
    v_lshlrev_b32 v15, 10, v5
    v_lshl_add_u32 v15, v4, 5, v15
    v_lshl_add_u32 v15, v7, 3, v15
    s_lshl_b32 s24, s13, 7
    s_add_u32 s24, s24, {VT}
    v_lshl_add_u32 v16, v4, 4, v5
    v_lshlrev_b32 v16, 12, v16
    v_and_b32 v17, 1, v7
    v_lshl_add_u32 v16, v17, 4, v16
    v_lshrrev_b32 v17, 1, v7
    v_lshl_add_u32 v16, v17, 3, v16
    s_nop 4""")
    for p in range(3):
        for tq in range(4):
            c = 64 + 16*p + 4*tq
            k(f"v_cvt_pk_bf16_f32 v{c}, v{c}, v{c+1}\nv_cvt_pk_bf16_f32 v{c+1}, v{c+2}, v{c+3}")
            if p < 2:
                k(f"s_add_u32 s25, s{22+p}, {16384*tq}\nbuffer_store_dwordx2 v[{c}:{c+1}], v15, s[8:11], s25 offen")
            else:
                k(f"buffer_store_dwordx2 v[{c}:{c+1}], v16, s[8:11], s24 offen offset:{32*tq}")
    footer(k)
    return k.text(), desc(name, 128+192, 128)
```

```python
from gen_common import *
def k4(name, zero_st):
    k = K(name); header(k, 512)
    k("""s_load_dwordx2 s[4:5], s[0:1], 112
    s_waitcnt lgkmcnt(0)""")
    srd(k, 8, 4, WS_BYTES)
    k(f"""s_lshr_b32 s12, s2, 3
    s_and_b32 s13, s2, 7
    v_lshrrev_b32 v1, 6, v0
    s_lshl_b32 s14, s13, 2
    v_add_u32 v1, s14, v1
    v_and_b32 v2, 31, v0
    v_bfe_u32 v3, v0, 5, 1
    v_lshlrev_b32 v4, 10, v2
    v_lshl_add_u32 v4, v1, 5, v4
    v_lshl_add_u32 v4, v3, 4, v4
    s_lshl_b32 s15, s12, 15
    s_add_u32 s16, s15, {QB}
    buffer_load_dwordx4 v[8:11], v4, s[8:11], s16 offen""")
    for j in range(9):
        k(f"""s_add_i32 s17, s12, {j-8}
        s_max_i32 s17, s17, 0
        s_lshl_b32 s17, s17, 15
        s_add_u32 s17, s17, {KB}
        buffer_load_dwordx4 v[{12+4*j}:{15+4*j}], v4, s[8:11], s17 offen""")
    k("v_mov_b32 v7, 0xf149f2ca\nv_lshlrev_b32 v5, 2, v3")
    for r in range(16):
        k(f"""v_add_u32 v6, {8*(r//4)+r%4}, v5
        v_cmp_gt_u32 vcc, v6, v2
        s_nop 1
        v_cndmask_b32 v{48+r}, v7, 0, vcc
        v_cndmask_b32 v{64+r}, 0, v7, vcc""")
    for j in range(9):
        k(f"s_waitcnt vmcnt({8-j})")
        c = "v[48:63]" if j == 0 else ("v[64:79]" if j == 8 else "0")
        k(f"v_mfma_f32_32x32x16_bf16 v[{96+16*j}:{111+16*j}], v[{12+4*j}:{15+4*j}], v[8:11], {c}")
    k("""v_cmp_eq_u32 vcc, 16, v2
    v_cmp_eq_u32 s[20:21], 20, v2
    s_or_b64 vcc, vcc, s[20:21]
    v_mov_b32 v5, 0x3f803f80
    v_cndmask_b32 v5, 0, v5, vcc
    s_nop 7""")
    for r in range(72): k(f"v_mov_b32 v{12+r}, v5")
    k(f"""v_lshl_add_u32 v6, v1, 4, v2
    v_lshlrev_b32 v6, 12, v6
    v_lshl_add_u32 v6, v3, 4, v6
    v_cmp_gt_u32 vcc, 16, v2
    s_and_saveexec_b64 s[20:21], vcc""")
    for j in range(9):
        k(f"""s_add_i32 s17, s12, {j-8}
        s_max_i32 s17, s17, 0
        s_lshl_b32 s17, s17, 6
        s_add_u32 s17, s17, {VT}
        buffer_load_dwordx4 v[{12+8*j}:{15+8*j}], v6, s[8:11], s17 offen
        buffer_load_dwordx4 v[{16+8*j}:{19+8*j}], v6, s[8:11], s17 offen offset:32""")
    k("s_mov_b64 exec, s[20:21]")
    for j in range(8):
        k(f"s_cmp_ge_u32 s12, {8-j}\ns_cbranch_scc1 {name}_mk")
        for r in range(16): k(f"v_mov_b32 v{96+16*j+r}, v7")
    k.label(name + "_mk")
    k("v_max3_f32 v84, v96, v97, v98")
    r = 99
    while r + 1 < 240:
        k(f"v_max3_f32 v84, v84, v{r}, v{r+1}"); r += 2
    k("v_max_f32 v84, v84, v239")
    k("""v_mov_b32 v85, v84
    s_nop 1
    v_permlane32_swap_b32 v84, v85
    v_max_f32 v84, v84, v85
    s_mov_b32 s22, 0x3eb8aa3b
    v_mul_f32 v84, s22, v84""")
    for r in range(16): k(f"v_mov_b32 v{240+r}, 0")
    for j in range(9):
        b = 96 + 16*j
        for r in range(16):
            k(f"v_fma_f32 v{b+r}, v{b+r}, s22, -v84")
        for r in range(16):
            k(f"v_exp_f32 v{b+r}, v{b+r}")
        k("s_nop 0")
        for r in range(8):
            k(f"v_cvt_pk_bf16_f32 v{b+r}, v{b+2*r}, v{b+2*r+1}")
        k(f"s_waitcnt vmcnt({16-2*j})\ns_nop 0")
        k(f"v_mfma_f32_32x32x16_bf16 v[240:255], v[{12+8*j}:{15+8*j}], v[{b}:{b+3}], v[240:255]")
        k(f"v_mfma_f32_32x32x16_bf16 v[240:255], v[{16+8*j}:{19+8*j}], v[{b+4}:{b+7}], v[240:255]")
    k(f"""v_lshlrev_b32 v4, 10, v2
    v_lshl_add_u32 v4, v1, 5, v4
    v_lshl_add_u32 v4, v3, 3, v4
    s_add_u32 s16, s15, {OB}
    s_nop 7
    v_rcp_f32 v84, v248
    s_nop 0""")
    for r in range(8): k(f"v_mul_f32 v{240+r}, v{240+r}, v84")
    k("""v_cvt_pk_bf16_f32 v240, v240, v241
    v_cvt_pk_bf16_f32 v241, v242, v243
    v_cvt_pk_bf16_f32 v242, v244, v245
    v_cvt_pk_bf16_f32 v243, v246, v247
    buffer_store_dwordx2 v[240:241], v4, s[8:11], s16 offen
    buffer_store_dwordx2 v[242:243], v4, s[8:11], s16 offen offset:16""")
    if zero_st:
        k(f"""s_cmp_ge_u32 s2, 16
        s_cbranch_scc1 {name}_nz
        v_mov_b32 v5, 0
        s_lshl_b32 s17, s2, 10
        s_add_u32 s17, s17, {ST1}
        v_lshlrev_b32 v6, 2, v0
        buffer_store_dword v5, v6, s[8:11], s17 offen""")
        k.label(name + "_nz")
    footer(k)
    return k.text(), desc(name, 256)

def k5(name, xin, xout, final):
    k = K(name); header(k, 256)
    k("""s_load_dwordx2 s[4:5], s[0:1], 112
    s_load_dwordx2 s[6:7], s[0:1], 96
    s_waitcnt lgkmcnt(0)""")
    srd(k, 8, 4, WS_BYTES)
    if final: srd(k, 24, 6, 0x200000)
    k(f"""s_and_b32 s12, s2, 7
    s_lshr_b32 s13, s2, 3
    v_and_b32 v1, 31, v0
    v_bfe_u32 v2, v0, 5, 1
    v_bfe_u32 v3, v0, 6, 1
    v_lshrrev_b32 v4, 7, v0
    v_lshl_add_u32 v5, v3, 5, v1
    v_lshl_add_u32 v6, v4, 5, v1
    v_lshlrev_b32 v7, 10, v5
    v_lshl_add_u32 v7, v2, 4, v7
    v_lshlrev_b32 v8, 10, v6
    v_lshl_add_u32 v8, v2, 4, v8
    s_lshl_b32 s14, s12, 16
    s_add_u32 s14, s14, {WOT}
    s_lshl_b32 s15, s13, 16
    s_add_u32 s15, s15, {OB}""")
    k(f"""v_lshlrev_b32 v9, 5, v3
    v_lshl_add_u32 v9, v2, 2, v9
    v_lshlrev_b32 v9, 12, v9
    v_lshl_add_u32 v9, v6, 1, v9
    s_lshl_b32 s16, s12, 18
    s_lshl_b32 s17, s13, 7
    s_add_u32 s16, s16, s17
    s_add_u32 s17, s16, {xout if not final else 0}
    s_add_u32 s16, s16, {xin}""")
    for r in range(16):
        k(f"s_add_u32 s18, s16, {(8*(r//4)+r%4)*4096}\nbuffer_load_ushort v{32+r}, v9, s[8:11], s18 offen")
    for s in range(32):
        k(f"buffer_load_dwordx4 a[{4*s}:{4*s+3}], v7, s[8:11], s14 offen offset:{32*s}")
        k(f"buffer_load_dwordx4 v[{64+4*s}:{67+4*s}], v8, s[8:11], s15 offen offset:{32*s}")
    for r in range(16): k(f"v_mov_b32 v{16+r}, 0")
    for s in range(32):
        k(f"s_waitcnt vmcnt({62-2*s})")
        k(f"v_mfma_f32_32x32x16_bf16 v[16:31], a[{4*s}:{4*s+3}], v[{64+4*s}:{67+4*s}], v[16:31]")
    k("s_waitcnt vmcnt(0)\ns_nop 7\ns_nop 3\nv_mov_b32 v50, 0\nv_mov_b32 v51, 0")
    for r in range(0, 16, 2):
        k(f"""v_cvt_pk_bf16_f32 v48, v{16+r}, v{17+r}
        v_lshlrev_b32 v{16+r}, 16, v48
        v_and_b32 v{17+r}, 0xffff0000, v48
        v_lshlrev_b32 v{32+r}, 16, v{32+r}
        v_lshlrev_b32 v{33+r}, 16, v{33+r}
        v_add_f32 v{16+r}, v{16+r}, v{32+r}
        v_add_f32 v{17+r}, v{17+r}, v{33+r}
        v_cvt_pk_bf16_f32 v{32+r//2}, v{16+r}, v{17+r}""")
    if final:
        k("""v_lshlrev_b32 v10, 10, v6
        v_lshl_add_u32 v10, v3, 6, v10
        v_lshl_add_u32 v10, v2, 3, v10
        s_lshl_b32 s18, s13, 16
        s_lshl_b32 s19, s12, 7
        s_add_u32 s18, s18, s19""")
        for q in range(4):
            k(f"buffer_store_dwordx2 v[{32+2*q}:{33+2*q}], v10, s[24:27], s18 offen offset:{16*q}")
    else:
        for r in range(0, 16, 2):
            unpack(k, 48, 49, 32+r//2)
            k(f"""v_add_f32 v50, v50, v48
            v_fmac_f32 v51, v48, v48
            v_add_f32 v50, v50, v49
            v_fmac_f32 v51, v49, v49
            s_add_u32 s18, s17, {(8*(r//4)+r%4)*4096}
            s_add_u32 s19, s17, {(8*(r//4)+r%4+1)*4096}
            buffer_store_short v{32+r//2}, v9, s[8:11], s18 offen
            buffer_store_short_d16_hi v{32+r//2}, v9, s[8:11], s19 offen""")
        k(f"""v_mov_b32 v52, v50
        v_mov_b32 v53, v51
        s_nop 1
        v_permlane32_swap_b32 v50, v52
        v_permlane32_swap_b32 v51, v53
        v_add_f32 v50, v50, v52
        v_add_f32 v51, v51, v53
        v_cndmask_b32 v50, v50, v51, vcc""".replace("v_cndmask_b32 v50, v50, v51, vcc", "v_cmp_eq_u32 vcc, 1, v2\ns_nop 1\nv_cndmask_b32 v50, v50, v51, vcc"))
        k(f"""v_lshlrev_b32 v10, 3, v6
        v_lshl_add_u32 v10, v2, 2, v10
        s_lshl_b32 s18, s13, 9
        s_add_u32 s18, s18, {ST1}
        buffer_atomic_add_f32 v50, v10, s[8:11], s18 offen""")
    footer(k)
    return k.text(), desc(name, 192+128, 192)
```

```python
import sys
from gen_common import *
from gen_k1 import k1
from gen_k2 import k2, CONV_LDS
from gen_k3 import k3, QKV_LDS
from gen_k4 import k4, k5
hdr = open('interleave_layers__ssm_conv_s4__sliding_block__prompt.s.ref').read().split('; Override')[0]
ks = [k1(), k2("conv1_kernel", XT0, XT1, ST0), k3("qkv1_kernel", XT1), k4("attn1_kernel", True), k5("oproj1_kernel", XT1, XT2, False),
      k2("conv2_kernel", XT2, XT3, ST1), k3("qkv2_kernel", XT3), k4("attn2_kernel", False), k5("oproj2_kernel", XT3, 0, True)]
launch = [("prep_kernel", 640, 34816), ("conv1_kernel", 256, CONV_LDS), ("qkv1_kernel", 256, QKV_LDS), ("attn1_kernel", 512, 0), ("oproj1_kernel", 256, 0),
          ("conv2_kernel", 256, CONV_LDS), ("qkv2_kernel", 256, QKV_LDS), ("attn2_kernel", 512, 0), ("oproj2_kernel", 256, 0)]
extra = None
if len(sys.argv) > 2:
    n = int(sys.argv[2]); off = int(sys.argv[3], 0)
    launch = launch[:n] + [("dump_kernel", 512, 0)]
    k = K("dump_kernel"); header(k, 512)
    k("s_load_dwordx2 s[4:5], s[0:1], 112\ns_load_dwordx2 s[6:7], s[0:1], 96\ns_waitcnt lgkmcnt(0)")
    srd(k, 8, 4, WS_BYTES); srd(k, 12, 6, 0x200000)
    k(f"s_lshl_b32 s3, s2, 12\nv_lshl_add_u32 v1, v0, 4, s3\ns_mov_b32 s16, {off}\nbuffer_load_dwordx4 v[4:7], v1, s[8:11], s16 offen\ns_waitcnt vmcnt(0)\nbuffer_store_dwordx4 v[4:7], v1, s[12:15], 0 offen")
    footer(k); ks.append((k.text(), desc("dump_kernel", 16)))
out = hdr
for n, g, l in launch: out += "; @launch kernel=%s grid=(%d,1,1) block=(256,1,1) lds=%d\n" % (n, g, l)
out += '.amdgcn_target "amdgcn-amd-amdhsa--gfx950"\n.text\n'
names = set(n for n, _, _ in launch)
for t, d in ks:
    if any(('.globl ' + n + '\n') in t for n in names): out += t + "\n"
out += '.section .rodata,"a"\n'
for t, d in ks:
    if any(('.globl ' + n + '\n') in t for n in names): out += ".p2align 6\n" + d + "\n"
open(sys.argv[1], 'w').write(out)
```

```python
import sys
from gen_common import *
from gen_k1 import k1
from gen_k2 import k2, CONV_LDS
from gen_k3 import k3, QKV_LDS
from gen_k4 import k4, k5
hdr = open('interleave_layers__ssm_conv_s4__sliding_block__prompt.s.ref').read().split('; Override')[0]
ks = [k1(), k2("conv1_kernel", XT0, XT1, ST0), k3("qkv1_kernel", XT1), k4("attn1_kernel", True), k5("oproj1_kernel", XT1, XT2, False),
      k2("conv2_kernel", XT2, XT3, ST1), k3("qkv2_kernel", XT3), k4("attn2_kernel", False), k5("oproj2_kernel", XT3, 0, True)]
launch = [("prep_kernel", 640, 34816), ("conv1_kernel", 256, CONV_LDS), ("qkv1_kernel", 256, QKV_LDS), ("attn1_kernel", 512, 0), ("oproj1_kernel", 256, 0),
          ("conv2_kernel", 256, CONV_LDS), ("qkv2_kernel", 256, QKV_LDS), ("attn2_kernel", 512, 0), ("oproj2_kernel", 256, 0)]
import os
rep = os.environ.get('REP')
if rep:
    nl = []
    for x in launch:
        nl.append(x)
        if x[0] == rep: nl.append(x)
    launch = nl
if len(sys.argv) > 2:
    n = int(sys.argv[2]); off = int(sys.argv[3], 0)
    launch = launch[:n] + [("dump_kernel", 512, 0)]
    k = K("dump_kernel"); header(k, 512)
    k("s_load_dwordx2 s[4:5], s[0:1], 112\ns_load_dwordx2 s[6:7], s[0:1], 96\ns_waitcnt lgkmcnt(0)")
    srd(k, 8, 4, WS_BYTES); srd(k, 12, 6, 0x200000)
    k(f"s_lshl_b32 s3, s2, 12\nv_lshl_add_u32 v1, v0, 4, s3\ns_mov_b32 s16, {off}\nbuffer_load_dwordx4 v[4:7], v1, s[8:11], s16 offen\ns_waitcnt vmcnt(0)\nbuffer_store_dwordx4 v[4:7], v1, s[12:15], 0 offen")
    footer(k); ks.append((k.text(), desc("dump_kernel", 16)))
pre = os.environ.get('PRE')
if pre: launch = launch + launch[:int(pre)]
pad = os.environ.get('PAD')
if pad:
    k = K("pad_kernel"); header(k, 256)
    if pad == 'A':
        for i in range(4096): k(f"v_add3_u32 v{1+i%8}, v{1+i%8}, v0, v0")
    elif pad == 'B':
        k("s_mov_b32 s3, 64"); k.label("pad_loop")
        for i in range(64): k(f"v_add3_u32 v{1+i%8}, v{1+i%8}, v0, v0")
        k("s_sub_u32 s3, s3, 1\ns_cmp_lg_u32 s3, 0\ns_cbranch_scc1 pad_loop")
    footer(k); ks.append((k.text(), desc("pad_kernel", 16)))
    launch = launch + [("pad_kernel", 256, 0)]
out = hdr
for n, g, l in launch: out += "; @launch kernel=%s grid=(%d,1,1) block=(256,1,1) lds=%d\n" % (n, g, l)
out += '.amdgcn_target "amdgcn-amd-amdhsa--gfx950"\n.text\n'
names = set(n for n, _, _ in launch)
for t, d in ks:
    if any(('.globl ' + n + '\n') in t for n in names): out += t + "\n"
out += '.section .rodata,"a"\n'
for t, d in ks:
    if any(('.globl ' + n + '\n') in t for n in names): out += ".p2align 6\n" + d + "\n"
open(sys.argv[1], 'w').write(out)
```

```python
from gen_common import *
def k1():
    k = K("prep_kernel"); header(k, 640)
    k("""s_cmp_ge_u32 s2, 128
    s_cbranch_scc1 prep_kgen
    s_load_dwordx2 s[4:5], s[0:1], 0
    s_load_dwordx2 s[6:7], s[0:1], 80
    s_load_dwordx2 s[8:9], s[0:1], 88
    s_load_dwordx2 s[10:11], s[0:1], 112
    s_waitcnt lgkmcnt(0)""")
    srd(k, 16, 10, WS_BYTES)
    k("""s_cmp_ge_u32 s2, 64
    s_cbranch_scc1 prep_m1""")
    srd(k, 12, 4, 0x200000)
    k(f"""s_lshl_b32 s20, s2, 15
    s_mov_b32 s21, 1024
    s_lshl_b32 s22, s2, 6
    s_add_u32 s22, s22, {XT0}
    s_mov_b32 s23, 0x100000
    s_mov_b32 s24, 0
    v_lshlrev_b32 v50, 12, v0
    s_branch prep_go""")
    k.label("prep_m1")
    k("""s_cmp_ge_u32 s2, 112
    s_cbranch_scc1 prep_m2""")
    srd(k, 12, 6, 0x180000)
    k(f"""s_sub_u32 s3, s2, 64
    s_lshr_b32 s25, s3, 4
    s_and_b32 s26, s3, 15
    s_mul_i32 s20, s26, 98304
    s_lshl_b32 s27, s25, 10
    s_add_u32 s20, s20, s27
    s_mov_b32 s21, 3072
    s_lshl_b32 s22, s25, 14
    s_lshl_b32 s27, s26, 10
    s_add_u32 s22, s22, s27
    s_add_u32 s22, s22, {WQT}
    s_mov_b32 s23, 786432
    s_mov_b32 s24, 1
    v_lshrrev_b32 v6, 4, v0
    v_mul_u32_u24 v6, 49152, v6
    v_and_b32 v7, 15, v0
    v_lshl_add_u32 v50, v7, 4, v6
    s_branch prep_go""")
    k.label("prep_m2")
    srd(k, 12, 8, 0x80000)
    k(f"""s_sub_u32 s3, s2, 112
    s_lshl_b32 s20, s3, 15
    s_mov_b32 s21, 1024
    s_lshl_b32 s22, s3, 11
    s_add_u32 s22, s22, {WOT}
    s_mov_b32 s23, 262144
    s_mov_b32 s24, 2
    v_lshrrev_b32 v6, 5, v0
    v_lshlrev_b32 v6, 15, v6
    v_and_b32 v7, 31, v0
    v_lshl_add_u32 v50, v7, 4, v6""")
    k.label("prep_go")
    k("""v_lshrrev_b32 v1, 3, v0
    v_and_b32 v2, 7, v0
    v_mul_lo_u32 v3, v1, s21
    v_lshl_add_u32 v3, v2, 4, v3
    v_mul_u32_u24 v4, 1088, v1
    v_lshl_add_u32 v4, v2, 4, v4""")
    for i in range(8):
        k(f"buffer_load_dwordx4 v[{8+4*i}:{11+4*i}], v3, s[12:15], s20 offen offset:{128*i}")
    k("""v_and_b32 v5, 15, v0
    v_lshrrev_b32 v5, 2, v5
    v_mul_u32_u24 v5, 1088, v5
    v_and_b32 v6, 0xf0, v0
    v_and_b32 v7, 3, v0
    v_lshl_add_u32 v6, v7, 2, v6
    v_lshl_add_u32 v5, v6, 1, v5""")
    for i in range(8):
        k(f"s_waitcnt vmcnt({7-i})\nds_write_b128 v4, v[{8+4*i}:{11+4*i}] offset:{128*i}")
    k("""s_cmp_lg_u32 s24, 0
    s_cbranch_scc1 prep_nostats
    v_mov_b32 v60, 0
    v_mov_b32 v61, 0""")
    for r in range(8, 40):
        unpack(k, 62, 63, r)
        k("""v_add_f32 v60, v60, v62
        v_fmac_f32 v61, v62, v62
        v_add_f32 v60, v60, v63
        v_fmac_f32 v61, v63, v63""")
    for dpp in ("quad_perm:[1,0,3,2]", "quad_perm:[2,3,0,1]", "row_half_mirror"):
        k(f"""s_nop 1
        v_add_f32_dpp v60, v60, v60 {dpp} row_mask:0xf bank_mask:0xf
        v_add_f32_dpp v61, v61, v61 {dpp} row_mask:0xf bank_mask:0xf""")
    k(f"""s_lshl_b32 s3, s2, 8
    s_add_u32 s3, s3, {ST0}
    v_lshlrev_b32 v62, 3, v1
    v_cmp_eq_u32 vcc, 0, v2
    s_and_saveexec_b64 s[28:29], vcc
    buffer_store_dwordx2 v[60:61], v62, s[16:19], s3 offen
    s_mov_b64 exec, s[28:29]""")
    k.label("prep_nostats")
    k("""s_waitcnt lgkmcnt(0)
    s_barrier
    s_add_u32 s25, s23, s22
    s_cmp_eq_u32 s24, 1
    s_cbranch_scc1 prep_perm
    s_cmp_eq_u32 s24, 2
    s_cbranch_scc1 prep_wo""")
    for variant in (0, 1, 2):
        if variant == 1: k.label("prep_perm")
        if variant == 2: k.label("prep_wo")
        for p in range(2):
            for i in range(8):
                if variant != 1: d = 8 + 16*p + 2*i
                else: d = 8 + 16*p + (4*i if i < 4 else 4*(i-4)+2)
                k(f"ds_read_b64_tr_b16 v[{d}:{d+1}], v5 offset:{4352*i+512*p}")
        for p in range(2):
            k(f"s_waitcnt lgkmcnt({8*(1-p)})")
            for j in range(4):
                k(f"buffer_store_dwordx4 v[{8+16*p+4*j}:{11+16*p+4*j}], v50, s[16:19], s{22 if p==0 else 25} offen offset:{(16,256,512)[variant]*j}")
        k("s_endpgm")
    k.label("prep_kgen")
    k("""s_sub_u32 s3, s2, 128
    s_load_dwordx4 s[4:7], s[0:1], 8
    s_load_dwordx4 s[8:11], s[0:1], 24
    s_load_dwordx4 s[12:15], s[0:1], 40
    s_load_dwordx2 s[16:17], s[0:1], 56
    s_load_dwordx2 s[18:19], s[0:1], 112
    v_and_b32 v1, 127, v0
    s_lshl_b32 s20, s3, 8
    v_lshl_add_u32 v2, v1, 1, s20
    s_lshl_b32 s21, s3, 1
    v_mov_b32 v3, s21
    s_waitcnt lgkmcnt(0)
    global_load_ushort v4, v2, s[4:5]
    global_load_ushort v5, v2, s[6:7]
    global_load_ushort v6, v2, s[8:9]
    global_load_ushort v7, v2, s[10:11]
    global_load_ushort v8, v2, s[12:13]
    global_load_ushort v9, v2, s[14:15]
    global_load_ushort v10, v3, s[16:17]""")
    srd(k, 24, 18, WS_BYTES)
    k("""s_waitcnt vmcnt(0)
    v_lshlrev_b32 v4, 16, v4
    v_lshlrev_b32 v5, 16, v5
    v_lshlrev_b32 v6, 16, v6
    v_lshlrev_b32 v7, 16, v7
    v_lshlrev_b32 v8, 16, v8
    v_lshlrev_b32 v9, 16, v9
    v_lshlrev_b32 v10, 16, v10
    v_mul_f32 v10, 0x3fb8aa3b, v10
    v_exp_f32 v10, v10
    s_nop 0
    v_cvt_pk_bf16_f32 v10, v10, v10
    v_lshlrev_b32 v10, 16, v10
    v_mul_f32 v12, v10, v4
    v_mul_f32 v12, 0x3fb8aa3b, v12
    v_mul_f32 v13, v10, v5
    v_mul_f32 v13, 0x3e22f983, v13
    v_mul_f32 v6, v10, v6
    v_mul_f32 v7, v10, v7
    v_mul_f32 v14, v8, v6
    v_fma_f32 v14, -v9, v7, v14
    v_mul_f32 v15, v8, v7
    v_fma_f32 v15, v9, v6, v15
    v_lshlrev_b32 v2, 4, v1
    ds_write_b128 v2, v[12:15] offset:4352
    v_lshrrev_b32 v16, 6, v0
    v_and_b32 v17, 15, v0
    v_bfe_u32 v18, v0, 4, 2
    v_min_u32 v19, 1, v16
    v_lshlrev_b32 v19, 7, v19
    v_lshl_add_u32 v19, v17, 4, v19
    v_lshlrev_b32 v19, v16, v19
    v_cvt_f32_u32 v19, v19
    v_lshlrev_b32 v20, v16, v17
    v_cvt_f32_u32 v20, v20
    v_lshlrev_b32 v21, 4, v18
    v_mov_b32 v40, 0
    v_mov_b32 v41, 0
    v_mov_b32 v42, 0
    v_mov_b32 v43, 0
    v_mov_b32 v44, 0
    v_mov_b32 v45, 4096
    ds_write_b32 v45, v44
    s_waitcnt lgkmcnt(0)
    s_barrier
    ds_read_b128 v[24:27], v21 offset:4352""")
    for s in range(32):
        P = 24 if s % 2 == 0 else 28
        Pn = 28 if s % 2 == 0 else 24
        if s < 31: k(f"ds_read_b128 v[{Pn}:{Pn+3}], v21 offset:{4352+64*(s+1)}\ns_waitcnt lgkmcnt(1)")
        else: k("s_waitcnt lgkmcnt(0)")
        k(f"""v_mul_f32 v32, v{P}, v19
        v_mul_f32 v33, v{P+1}, v19
        v_mul_f32 v34, v{P}, v20
        v_mul_f32 v35, v{P+1}, v20
        v_exp_f32 v32, v32
        v_fract_f32 v33, v33
        v_exp_f32 v34, v34
        v_fract_f32 v35, v35
        v_sin_f32 v36, v33
        v_cos_f32 v33, v33
        v_sin_f32 v37, v35
        v_cos_f32 v35, v35
        v_mul_f32 v36, v36, v32
        v_mul_f32 v33, v33, v32
        v_mul_f32 v37, v37, v34
        v_mul_f32 v35, v35, v34
        v_mul_f32 v38, v{P+2}, v33
        v_fma_f32 v38, -v{P+3}, v36, v38
        v_mul_f32 v39, v{P+3}, v33
        v_fma_f32 v39, v{P+2}, v36, v39
        v_sub_f32 v39, 0, v39
        s_nop 1
        v_mfma_f32_16x16x4_f32 v[40:43], v38, v35, v[40:43]
        v_mfma_f32_16x16x4_f32 v[40:43], v39, v37, v[40:43]""")
    k("""v_lshlrev_b32 v22, 10, v16
    v_lshl_add_u32 v22, v18, 8, v22
    v_lshl_add_u32 v22, v17, 2, v22
    s_nop 10
    ds_write_b32 v22, v40
    ds_write_b32 v22, v41 offset:64
    ds_write_b32 v22, v42 offset:128
    ds_write_b32 v22, v43 offset:192
    v_lshlrev_b32 v1, 3, v0
    v_sub_u32 v1, 2047, v1
    s_waitcnt lgkmcnt(0)
    s_barrier""")
    for e in range(9):
        k(f"""v_subrev_u32 v2, {e}, v1
        v_cvt_f32_u32 v3, v2
        v_bfe_u32 v4, v3, 16, 1
        v_add3_u32 v4, v3, v4, s30
        v_and_b32 v4, 0xffff0000, v4
        v_cvt_u32_f32 v4, v4
        v_lshrrev_b32 v5, 23, v3
        v_subrev_u32 v5, 134, v5
        v_max_i32 v5, 0, v5
        v_lshrrev_b32 v4, v5, v4
        v_lshl_add_u32 v4, v5, 8, v4
        v_min_u32 v5, 1, v5
        v_lshlrev_b32 v5, 7, v5
        v_sub_u32 v4, v4, v5
        v_cmp_gt_i32 vcc, 0, v2
        v_cndmask_b32 v4, v4, v46, vcc
        v_lshlrev_b32 v4, 2, v4
        ds_read_b32 v{24+e}, v4""")
    k(f"""s_mul_i32 s20, s3, 8448
    s_add_u32 s20, s20, {KR}
    v_lshlrev_b32 v1, 4, v0
    s_waitcnt lgkmcnt(0)
    v_cvt_pk_bf16_f32 v8, v24, v25
    v_cvt_pk_bf16_f32 v9, v26, v27
    v_cvt_pk_bf16_f32 v10, v28, v29
    v_cvt_pk_bf16_f32 v11, v30, v31
    v_cvt_pk_bf16_f32 v12, v25, v26
    v_cvt_pk_bf16_f32 v13, v27, v28
    v_cvt_pk_bf16_f32 v14, v29, v30
    v_cvt_pk_bf16_f32 v15, v31, v32
    s_add_u32 s21, s20, 4224
    buffer_store_dwordx4 v[8:11], v1, s[24:27], s20 offen
    buffer_store_dwordx4 v[12:15], v1, s[24:27], s21 offen
    v_lshrrev_b32 v2, 3, v0
    v_mul_u32_u24 v2, 4224, v2
    v_and_b32 v3, 7, v0
    v_lshl_add_u32 v2, v3, 4, v2
    v_mov_b32 v16, 0
    v_mov_b32 v17, 0
    v_mov_b32 v18, 0
    v_mov_b32 v19, 0
    v_cmp_gt_u32 vcc, 16, v0
    s_and_saveexec_b64 s[28:29], vcc
    s_cbranch_execz prep_kgen_done
    buffer_store_dwordx4 v[16:19], v2, s[24:27], s20 offen offset:4095
    """)
    k.label("prep_kgen_done")
    footer(k)
    t = k.text()
    t = t.replace("v_lshlrev_b32 v1, 3, v0\n    v_sub_u32 v1, 2047, v1", "v_lshlrev_b32 v1, 3, v0\n    v_sub_u32 v1, 2047, v1\n    s_mov_b32 s30, 0x7fff\n    v_mov_b32 v46, 1024")
    t = t.replace("v_lshl_add_u32 v2, v3, 4, v2\n    v_mov_b32 v16, 0", "v_lshl_add_u32 v2, v3, 4, v2\n    v_add_u32 v2, 4096, v2\n    v_mov_b32 v16, 0")
    t = t.replace(" offen offset:4095", " offen")
    return t, desc("prep_kernel", 64)
```

```python
from gen_common import *
QKV_LDS = 81920 + 512
STAT = 81920
def k3(name, xin):
    k = K(name); header(k, 256)
    k("""s_load_dwordx2 s[4:5], s[0:1], 112
    s_waitcnt lgkmcnt(0)""")
    srd(k, 8, 4, WS_BYTES)
    k(f"""s_and_b32 s12, s2, 7
    s_lshr_b32 s13, s2, 3
    s_lshl_b32 s14, s13, 7
    s_add_u32 s14, s14, {xin}
    v_and_b32 v1, 7, v0
    v_lshrrev_b32 v2, 3, v0
    v_lshlrev_b32 v3, 12, v2
    v_lshl_add_u32 v3, v1, 4, v3
    s_mov_b32 s15, s14""")
    for i in range(16):
        k(f"buffer_load_dwordx4 v[{16+4*i}:{19+4*i}], v3, s[8:11], s15 offen")
        if i < 15: k("s_add_u32 s15, s15, 0x20000")
    k(f"""v_lshrrev_b32 v4, 6, v0
    v_mul_u32_u24 v6, 49152, v4
    v_and_b32 v5, 63, v0
    v_lshl_add_u32 v6, v5, 4, v6
    s_mul_i32 s17, s12, 196608
    s_add_u32 s17, s17, {WQT}
    s_add_u32 s18, s17, 16384
    s_add_u32 s19, s17, 32768""")
    for s in range(16):
        for p in range(3):
            a = 12*s + 4*p
            k(f"buffer_load_dwordx4 a[{a}:{a+3}], v6, s[8:11], s{17+p} offen offset:{1024*(s%4)}")
        if s % 4 == 3 and s < 15: k("s_add_u32 s17, s17, 4096\ns_add_u32 s18, s18, 4096\ns_add_u32 s19, s19, 4096")
    k(f"""v_and_b32 v5, 15, v0
    v_bfe_u32 v7, v0, 4, 2
    v_mul_u32_u24 v11, 160, v2
    v_lshl_add_u32 v11, v1, 4, v11
    v_add_u32 v12, 40960, v11
    v_lshrrev_b32 v13, 2, v5
    v_lshl_add_u32 v13, v7, 2, v13
    v_mul_u32_u24 v13, 160, v13
    v_and_b32 v14, 3, v0
    v_lshl_add_u32 v13, v14, 3, v13
    v_add_u32 v14, 40960, v13
    v_lshl_add_u32 v8, v4, 5, v13
    v_add_u32 v9, 40960, v8
    v_mov_b32 v180, 0x3f803f80
    v_mov_b32 v181, 0x3f803f80
    v_mov_b32 v182, 0x3f803f80
    v_mov_b32 v183, 0x3f803f80
    s_lshl_b32 s16, s12, 2
    v_add_u32 v4, s16, v4""")
    for i in range(16):
        k(f"s_waitcnt vmcnt({63-i})")
        if i < 8: k(f"ds_write_b128 v11, v[{16+4*i}:{19+4*i}] offset:{5120*i}")
        else: k(f"ds_write_b128 v12, v[{16+4*i}:{19+4*i}] offset:{5120*(i-8)}")
    k(f"""s_lshl_b32 s22, s13, 11
    s_add_u32 s23, s22, {KB}
    s_add_u32 s24, s22, {VT}
    s_add_u32 s22, s22, {QB}
    v_lshlrev_b32 v15, 16, v4
    v_lshl_add_u32 v15, v5, 4, v15
    v_lshrrev_b32 v82, 1, v7
    v_and_b32 v83, 1, v7
    v_lshl_add_u32 v10, v83, 8, v15
    v_lshl_add_u32 v10, v82, 3, v10
    v_lshl_add_u32 v15, v82, 9, v15
    v_lshl_add_u32 v15, v83, 3, v15""")
    k("s_waitcnt lgkmcnt(0)\ns_barrier")
    def issue(s):
        b = 16 + 20*(s % 2)
        base, b2, so = ("v13", "v8", 5120*s) if s < 8 else ("v14", "v9", 5120*(s-8))
        for tq in range(4):
            k(f"ds_read_b64_tr_b16 v[{b+4*tq}:{b+4*tq+1}], {base} offset:{so+32*tq}")
            k(f"ds_read_b64_tr_b16 v[{b+4*tq+2}:{b+4*tq+3}], {base} offset:{so+32*tq+2560}")
        k(f"ds_read_b64_tr_b16 v[{b+16}:{b+17}], {b2} offset:{so}")
        k(f"ds_read_b64_tr_b16 v[{b+18}:{b+19}], {b2} offset:{so+2560}")
    issue(0)
    for s in range(16):
        if s < 15: issue(s+1)
        k(f"s_waitcnt vmcnt({45-3*s}) lgkmcnt({10 if s < 15 else 0})")
        b = 16 + 20*(s % 2)
        def C(c): return "0" if s == 0 else f"v[{c}:{c+3}]"
        k(f"v_mfma_f32_16x16x32_bf16 v[172:175], v[{b+16}:{b+19}], v[{b+16}:{b+19}], {C(172)}")
        k(f"v_mfma_f32_16x16x32_bf16 v[176:179], v[180:183], v[{b+16}:{b+19}], {C(176)}")
        for tq in range(4):
            for p in range(3):
                a = 12*s + 4*p; c = 112 + 16*p + 4*tq
                if p < 2: k(f"v_mfma_f32_16x16x32_bf16 v[{c}:{c+3}], a[{a}:{a+3}], v[{b+4*tq}:{b+4*tq+3}], {C(c)}")
                else: k(f"v_mfma_f32_16x16x32_bf16 v[{c}:{c+3}], v[{b+4*tq}:{b+4*tq+3}], a[{a}:{a+3}], {C(c)}")
        for p in range(3):
            a = 12*s + 4*p; c = 160 + 4*p
            if p < 2: k(f"v_mfma_f32_16x16x32_bf16 v[{c}:{c+3}], a[{a}:{a+3}], v[180:183], {C(c)}")
            else: k(f"v_mfma_f32_16x16x32_bf16 v[{c}:{c+3}], v[180:183], a[{a}:{a+3}], {C(c)}")
    k(f"""v_lshlrev_b32 v56, 2, v7
    v_sub_u32 v56, v5, v56
    v_cmp_eq_u32 vcc, 1, v56
    v_cmp_eq_u32 s[26:27], 2, v56
    v_cmp_eq_u32 s[28:29], 3, v56
    v_lshrrev_b32 v57, 6, v0
    v_lshl_add_u32 v57, v57, 4, v5
    v_lshlrev_b32 v57, 2, v57
    v_add_u32 v57, {STAT}, v57
    v_cndmask_b32 v172, v172, v173, vcc
    v_cndmask_b32 v172, v172, v174, s[26:27]
    v_cndmask_b32 v172, v172, v175, s[28:29]""")
    ln_finalize(k, 176, 172, 58, 59)
    k(f"""v_mul_f32 v176, v176, v172
    v_cmp_gt_u32 vcc, 4, v56
    s_and_saveexec_b64 s[20:21], vcc
    ds_write2_b32 v57, v172, v176 offset0:0 offset1:64
    s_mov_b64 exec, s[20:21]
    v_lshlrev_b32 v58, 2, v5
    v_add_u32 v58, {STAT}, v58
    v_lshlrev_b32 v59, 4, v7
    v_add_u32 v59, {STAT}, v59
    s_waitcnt lgkmcnt(0)
    s_barrier""")
    for tq in range(4):
        k(f"ds_read2_b32 v[{16+2*tq}:{17+2*tq}], v58 offset0:{16*tq} offset1:{64+16*tq}")
    for tq in range(4):
        k(f"ds_read_b128 v[{24+8*tq}:{27+8*tq}], v59 offset:{64*tq}")
        k(f"ds_read_b128 v[{28+8*tq}:{31+8*tq}], v59 offset:{256+64*tq}")
    k("s_waitcnt lgkmcnt(8)")
    for p in range(2):
        for tq in range(4):
            c = 112 + 16*p + 4*tq; R = 16 + 2*tq; cs = 160 + 4*p
            for h in range(2):
                k(f"""v_pk_mul_f32 v[60:61], v[{cs+2*h}:{cs+2*h+1}], v[{R}:{R+1}] op_sel:[0,1] op_sel_hi:[1,1]
                v_pk_fma_f32 v[{c+2*h}:{c+2*h+1}], v[{c+2*h}:{c+2*h+1}], v[{R}:{R+1}], v[60:61] op_sel:[0,0,0] op_sel_hi:[1,0,1] neg_lo:[0,0,1] neg_hi:[0,0,1]""")
            k(f"v_cvt_pk_bf16_f32 v{c}, v{c}, v{c+1}\nv_cvt_pk_bf16_f32 v{c+1}, v{c+2}, v{c+3}")
            k(f"buffer_store_dwordx2 v[{c}:{c+1}], v15, s[8:11], s{22+p} offen offset:{(tq//2)*1024+(tq%2)*256}")
    k("s_waitcnt lgkmcnt(0)")
    for tq in range(4):
        c = 144 + 4*tq; R = 24 + 8*tq
        for h in range(2):
            k(f"""v_pk_mul_f32 v[60:61], v[{R+4+2*h}:{R+5+2*h}], v[168:169] op_sel:[0,0] op_sel_hi:[1,0]
            v_pk_fma_f32 v[{c+2*h}:{c+2*h+1}], v[{c+2*h}:{c+2*h+1}], v[{R+2*h}:{R+2*h+1}], v[60:61] neg_lo:[0,0,1] neg_hi:[0,0,1]""")
        k(f"v_cvt_pk_bf16_f32 v{c}, v{c}, v{c+1}\nv_cvt_pk_bf16_f32 v{c+1}, v{c+2}, v{c+3}")
        k(f"buffer_store_dwordx2 v[{c}:{c+1}], v10, s[8:11], s24 offen offset:{512*tq}")
    footer(k)
    return k.text(), desc(name, 192+192, 192)
```

```python
from gen_common import *
def k4(name, zero_st):
    k = K(name); header(k, 512)
    k("""s_load_dwordx2 s[4:5], s[0:1], 112
    s_waitcnt lgkmcnt(0)""")
    srd(k, 8, 4, WS_BYTES)
    k(f"""s_lshr_b32 s12, s2, 3
    s_and_b32 s13, s2, 7
    v_lshrrev_b32 v1, 6, v0
    s_lshl_b32 s14, s13, 2
    v_add_u32 v1, s14, v1
    v_and_b32 v2, 31, v0
    v_bfe_u32 v3, v0, 5, 1
    v_and_b32 v4, 63, v0
    v_lshlrev_b32 v4, 4, v4
    v_lshl_add_u32 v4, v1, 16, v4
    s_lshl_b32 s15, s12, 10
    s_add_u32 s16, s15, {QB}
    buffer_load_dwordx4 v[8:11], v4, s[8:11], s16 offen""")
    for j in range(9):
        k(f"""s_add_i32 s17, s12, {j-8}
        s_max_i32 s17, s17, 0
        s_lshl_b32 s17, s17, 10
        s_add_u32 s17, s17, {KB}
        buffer_load_dwordx4 v[{12+4*j}:{15+4*j}], v4, s[8:11], s17 offen""")
    k("v_mov_b32 v7, 0xf149f2ca\nv_lshlrev_b32 v5, 2, v3")
    for r in range(16):
        k(f"""v_add_u32 v6, {8*(r//4)+r%4}, v5
        v_cmp_gt_u32 vcc, v6, v2
        s_nop 1
        v_cndmask_b32 v{48+r}, v7, 0, vcc
        v_cndmask_b32 v{64+r}, 0, v7, vcc""")
    for j in range(9):
        k(f"s_waitcnt vmcnt({8-j})")
        c = "v[48:63]" if j == 0 else ("v[64:79]" if j == 8 else "0")
        k(f"v_mfma_f32_32x32x16_bf16 v[{96+16*j}:{111+16*j}], v[{12+4*j}:{15+4*j}], v[8:11], {c}")
    k("""v_cmp_eq_u32 vcc, 16, v2
    v_cmp_eq_u32 s[20:21], 20, v2
    s_or_b64 vcc, vcc, s[20:21]
    v_mov_b32 v5, 0x3f803f80
    v_cndmask_b32 v5, 0, v5, vcc
    s_nop 7""")
    for r in range(72): k(f"v_mov_b32 v{12+r}, v5")
    k(f"""v_lshlrev_b32 v6, 16, v1
    v_lshl_add_u32 v6, v2, 4, v6
    v_lshl_add_u32 v6, v3, 8, v6
    v_cmp_gt_u32 vcc, 16, v2
    s_and_saveexec_b64 s[20:21], vcc""")
    for j in range(9):
        k(f"""s_add_i32 s17, s12, {j-8}
        s_max_i32 s17, s17, 0
        s_lshl_b32 s17, s17, 10
        s_add_u32 s17, s17, {VT}
        buffer_load_dwordx4 v[{12+8*j}:{15+8*j}], v6, s[8:11], s17 offen
        buffer_load_dwordx4 v[{16+8*j}:{19+8*j}], v6, s[8:11], s17 offen offset:512""")
    k("s_mov_b64 exec, s[20:21]")
    for j in range(8):
        k(f"s_cmp_ge_u32 s12, {8-j}\ns_cbranch_scc1 {name}_mk")
        for r in range(16): k(f"v_mov_b32 v{96+16*j+r}, v7")
    k.label(name + "_mk")
    k("v_max3_f32 v84, v96, v97, v98")
    r = 99
    while r + 1 < 240:
        k(f"v_max3_f32 v84, v84, v{r}, v{r+1}"); r += 2
    k("v_max_f32 v84, v84, v239")
    k("""v_mov_b32 v85, v84
    s_nop 1
    v_permlane32_swap_b32 v84, v85
    v_max_f32 v84, v84, v85
    s_mov_b32 s22, 0x3eb8aa3b
    v_mul_f32 v84, s22, v84""")
    for r in range(16): k(f"v_mov_b32 v{240+r}, 0")
    for j in range(9):
        b = 96 + 16*j
        for r in range(16):
            k(f"v_fma_f32 v{b+r}, v{b+r}, s22, -v84")
        for r in range(16):
            k(f"v_exp_f32 v{b+r}, v{b+r}")
        k("s_nop 0")
        for r in range(8):
            k(f"v_cvt_pk_bf16_f32 v{b+r}, v{b+2*r}, v{b+2*r+1}")
        k(f"s_waitcnt vmcnt({16-2*j})\ns_nop 0")
        k(f"v_mfma_f32_32x32x16_bf16 v[240:255], v[{12+8*j}:{15+8*j}], v[{b}:{b+3}], v[240:255]")
        k(f"v_mfma_f32_32x32x16_bf16 v[240:255], v[{16+8*j}:{19+8*j}], v[{b+4}:{b+7}], v[240:255]")
    k(f"""v_lshlrev_b32 v4, 4, v2
    v_lshl_add_u32 v4, v1, 10, v4
    v_lshl_add_u32 v4, v3, 3, v4
    s_lshl_b32 s15, s12, 15
    s_add_u32 s16, s15, {OB}
    s_nop 7
    v_rcp_f32 v84, v248
    s_nop 0""")
    for r in range(8): k(f"v_mul_f32 v{240+r}, v{240+r}, v84")
    k("""v_cvt_pk_bf16_f32 v240, v240, v241
    v_cvt_pk_bf16_f32 v241, v242, v243
    v_cvt_pk_bf16_f32 v242, v244, v245
    v_cvt_pk_bf16_f32 v243, v246, v247
    buffer_store_dwordx2 v[240:241], v4, s[8:11], s16 offen
    buffer_store_dwordx2 v[242:243], v4, s[8:11], s16 offen offset:512""")
    if zero_st:
        k(f"""s_cmp_ge_u32 s2, 16
        s_cbranch_scc1 {name}_nz
        v_mov_b32 v5, 0
        s_lshl_b32 s17, s2, 10
        s_add_u32 s17, s17, {ST1}
        v_lshlrev_b32 v6, 2, v0
        buffer_store_dword v5, v6, s[8:11], s17 offen""")
        k.label(name + "_nz")
    footer(k)
    return k.text(), desc(name, 256)

def k5(name, xin, xout, final):
    k = K(name); header(k, 256)
    k("""s_load_dwordx2 s[4:5], s[0:1], 112
    s_load_dwordx2 s[6:7], s[0:1], 96
    s_waitcnt lgkmcnt(0)""")
    srd(k, 8, 4, WS_BYTES)
    if final: srd(k, 24, 6, 0x200000)
    k(f"""s_and_b32 s12, s2, 7
    s_lshr_b32 s13, s2, 3
    v_and_b32 v1, 31, v0
    v_bfe_u32 v2, v0, 5, 1
    v_bfe_u32 v3, v0, 6, 1
    v_lshrrev_b32 v4, 7, v0
    v_lshl_add_u32 v5, v3, 5, v1
    v_lshl_add_u32 v6, v4, 5, v1
    v_and_b32 v7, 63, v0
    v_lshlrev_b32 v7, 4, v7
    v_lshl_add_u32 v8, v4, 15, v7
    v_lshl_add_u32 v7, v3, 15, v7
    s_lshl_b32 s14, s12, 16
    s_add_u32 s14, s14, {WOT}
    s_lshl_b32 s15, s13, 16
    s_add_u32 s15, s15, {OB}""")
    k(f"""v_lshlrev_b32 v9, 5, v3
    v_lshl_add_u32 v9, v2, 2, v9
    v_lshlrev_b32 v9, 12, v9
    v_lshl_add_u32 v9, v6, 1, v9
    s_lshl_b32 s16, s12, 18
    s_lshl_b32 s17, s13, 7
    s_add_u32 s16, s16, s17
    s_add_u32 s17, s16, {xout if not final else 0}
    s_add_u32 s16, s16, {xin}""")
    for r in range(16):
        k(f"s_add_u32 s18, s16, {(8*(r//4)+r%4)*4096}\nbuffer_load_ushort v{32+r}, v9, s[8:11], s18 offen")
    for s in range(32):
        k(f"buffer_load_dwordx4 a[{4*s}:{4*s+3}], v7, s[8:11], s14 offen offset:{1024*(s%4)}")
        k(f"buffer_load_dwordx4 v[{64+4*s}:{67+4*s}], v8, s[8:11], s15 offen offset:{1024*(s%4)}")
        if s % 4 == 3 and s < 31: k("s_add_u32 s14, s14, 4096\ns_add_u32 s15, s15, 4096")
    for r in range(16): k(f"v_mov_b32 v{16+r}, 0")
    for s in range(32):
        k(f"s_waitcnt vmcnt({62-2*s})")
        k(f"v_mfma_f32_32x32x16_bf16 v[16:31], a[{4*s}:{4*s+3}], v[{64+4*s}:{67+4*s}], v[16:31]")
    k("s_waitcnt vmcnt(0)\ns_nop 7\ns_nop 3\nv_mov_b32 v50, 0\nv_mov_b32 v51, 0")
    for r in range(0, 16, 2):
        k(f"""v_cvt_pk_bf16_f32 v48, v{16+r}, v{17+r}
        v_lshlrev_b32 v{16+r}, 16, v48
        v_and_b32 v{17+r}, 0xffff0000, v48
        v_lshlrev_b32 v{32+r}, 16, v{32+r}
        v_lshlrev_b32 v{33+r}, 16, v{33+r}
        v_add_f32 v{16+r}, v{16+r}, v{32+r}
        v_add_f32 v{17+r}, v{17+r}, v{33+r}
        v_cvt_pk_bf16_f32 v{32+r//2}, v{16+r}, v{17+r}""")
    if final:
        k("""v_lshlrev_b32 v10, 10, v6
        v_lshl_add_u32 v10, v3, 6, v10
        v_lshl_add_u32 v10, v2, 3, v10
        s_lshl_b32 s18, s13, 16
        s_lshl_b32 s19, s12, 7
        s_add_u32 s18, s18, s19""")
        for q in range(4):
            k(f"buffer_store_dwordx2 v[{32+2*q}:{33+2*q}], v10, s[24:27], s18 offen offset:{16*q}")
    else:
        for r in range(0, 16, 2):
            unpack(k, 48, 49, 32+r//2)
            k(f"""v_add_f32 v50, v50, v48
            v_fmac_f32 v51, v48, v48
            v_add_f32 v50, v50, v49
            v_fmac_f32 v51, v49, v49
            s_add_u32 s18, s17, {(8*(r//4)+r%4)*4096}
            s_add_u32 s19, s17, {(8*(r//4)+r%4+1)*4096}
            buffer_store_short v{32+r//2}, v9, s[8:11], s18 offen
            buffer_store_short_d16_hi v{32+r//2}, v9, s[8:11], s19 offen""")
        k(f"""v_mov_b32 v52, v50
        v_mov_b32 v53, v51
        s_nop 1
        v_permlane32_swap_b32 v50, v52
        v_permlane32_swap_b32 v51, v53
        v_add_f32 v50, v50, v52
        v_add_f32 v51, v51, v53
        v_cndmask_b32 v50, v50, v51, vcc""".replace("v_cndmask_b32 v50, v50, v51, vcc", "v_cmp_eq_u32 vcc, 1, v2\ns_nop 1\nv_cndmask_b32 v50, v50, v51, vcc"))
        k(f"""v_lshlrev_b32 v10, 3, v6
        v_lshl_add_u32 v10, v2, 2, v10
        s_lshl_b32 s18, s13, 9
        s_add_u32 s18, s18, {ST1}
        buffer_atomic_add_f32 v50, v10, s[8:11], s18 offen""")
    footer(k)
    return k.text(), desc(name, 192+128, 192)
```

```python
XT0, XT1, XT2, XT3 = 0x000000, 0x200000, 0x400000, 0x600000
KR   = 0x800000
WQT  = 0xD00000
WOT  = 0xF00000
QB, KB, VT = 0x1000000, 0x1200000, 0x1400000
OB   = 0x1600000
ST0, ST1 = 0x1800000, 0x1810000
WS_BYTES = 0x10000000

class K:
    def __init__(self, name):
        self.name = name; self.L = []
    def __call__(self, s):
        for line in s.strip("\n").split("\n"):
            self.L.append("    " + line.strip())
    def label(self, l): self.L.append(l + ":")
    def text(self): return "\n".join(self.L)

def header(k, nwg):
    n = k.name
    k.L.append(".globl %s\n.p2align 8\n.type %s,@function\n%s:" % (n, n, n))
    k("s_cmp_ge_u32 s2, %d\ns_cbranch_scc1 %s_end" % (nwg, n))

def footer(k):
    k.label(k.name + "_end"); k("s_endpgm")

def srd(k, d, b, nbytes):
    k("s_mov_b32 s%d, s%d\ns_and_b32 s%d, s%d, 0xffff\ns_mov_b32 s%d, 0x%x\ns_mov_b32 s%d, 0x00020000" % (d, b, d+1, b+1, d+2, nbytes, d+3))

def desc(name, vgpr, accum=None, sgpr=96):
    if accum is None: accum = (vgpr + 3) // 4 * 4
    return """.amdhsa_kernel %s
  .amdhsa_next_free_vgpr %d
  .amdhsa_next_free_sgpr %d
  .amdhsa_accum_offset %d
  .amdhsa_group_segment_fixed_size 0
  .amdhsa_kernarg_size 120
  .amdhsa_user_sgpr_count 2
  .amdhsa_user_sgpr_kernarg_segment_ptr 1
  .amdhsa_system_sgpr_workgroup_id_x 1
.end_amdhsa_kernel""" % (name, vgpr, sgpr, accum)

def unpack(k, lo, hi, src):
    k("v_lshlrev_b32 v%d, 16, v%d\nv_and_b32 v%d, 0xffff0000, v%d" % (lo, src, hi, src))

def ln_finalize(k, s1, s2, t0, t1):
    k(f"""v_mul_f32 v{s1}, 0x3b000000, v{s1}
    v_mul_f32 v{s2}, 0x3b000000, v{s2}
    v_fma_f32 v{s2}, -v{s1}, v{s1}, v{s2}
    v_max_f32 v{s2}, 0, v{s2}
    v_cvt_pk_bf16_f32 v{t0}, v{s1}, v{s2}
    v_lshlrev_b32 v{s1}, 16, v{t0}
    v_and_b32 v{s2}, 0xffff0000, v{t0}
    v_add_f32 v{s2}, 0x3727c5ac, v{s2}
    v_cvt_pk_bf16_f32 v{t0}, v{s2}, v{s2}
    v_lshlrev_b32 v{s2}, 16, v{t0}
    v_sqrt_f32 v{s2}, v{s2}
    s_nop 0
    v_cvt_pk_bf16_f32 v{t0}, v{s2}, v{s2}
    v_lshlrev_b32 v{s2}, 16, v{t0}
    v_rcp_f32 v{s2}, v{s2}
    s_nop 0""")

def header2(k, nwg, entries):
    n = k.name
    for i, (en, init) in enumerate(reversed(entries)):
        k.L.append(".globl %s\n.p2align 8\n.type %s,@function\n%s:" % (en, en, en))
        k("s_cmp_ge_u32 s2, %d\ns_cbranch_scc1 %s_end" % (nwg, n))
        for l in init: k(l)
        if i < len(entries) - 1: k("s_branch %s_body" % n)
    k.label(n + "_body")
```

```python
from gen_common import *
KC_CH = 34304; KC_CP = 4288; UB = 68608; U_CH = 7680; RED = 83968
CONV_LDS = RED + 16384
def k2():
    name = "conv1_kernel"; k = K(name)
    header2(k, 256, [("conv1_kernel", [f"s_mov_b32 s40, {XT0}", f"s_mov_b32 s41, {XT1}", f"s_mov_b32 s16, {ST0}"]), ("conv2_kernel", [f"s_mov_b32 s40, {XT2}", f"s_mov_b32 s41, {XT3}", f"s_mov_b32 s16, {ST1}"])])
    k("""s_load_dwordx2 s[4:5], s[0:1], 112
    s_load_dwordx2 s[6:7], s[0:1], 64
    s_waitcnt lgkmcnt(0)""")
    srd(k, 8, 4, WS_BYTES)
    k(f"""s_mul_i32 s12, s2, 16896
    s_add_u32 s12, s12, {KR}
    s_lshl_b32 s13, s2, 13
    s_add_u32 s14, s13, s41
    s_add_u32 s13, s13, s40
    s_add_u32 s15, s13, 4096
    v_lshlrev_b32 v1, 4, v0
    v_lshlrev_b32 v2, 6, v0
    buffer_load_dwordx4 v[100:103], v1, s[8:11], s13 offen
    buffer_load_dwordx4 v[104:107], v1, s[8:11], s15 offen
    buffer_load_dwordx4 v[108:111], v2, s[8:11], s16 offen
    buffer_load_dwordx4 v[112:115], v2, s[8:11], s16 offen offset:16
    buffer_load_dwordx4 v[116:119], v2, s[8:11], s16 offen offset:32
    buffer_load_dwordx4 v[120:123], v2, s[8:11], s16 offen offset:48""")
    for ch in range(2):
        for r in range(8):
            off = ch*8448 + (r % 2)*4224 + 2*(r - r % 2)
            idx = ch*8 + r
            k(f"s_add_u32 s17, s12, {off}\nbuffer_load_dwordx4 v[{4+4*idx}:{7+4*idx}], v1, s[8:11], s17 offen")
    k("""v_lshrrev_b32 v70, 7, v0
    s_lshl_b32 s17, s2, 2
    v_lshl_add_u32 v71, v70, 1, s17
    global_load_ushort v72, v71, s[6:7]""")
    k(f"""v_mov_b32 v124, 0
    v_mov_b32 v125, 0
    v_mov_b32 v126, 0
    v_mov_b32 v127, 0
    v_cmp_gt_u32 vcc, 155, v0
    s_and_saveexec_b64 s[20:21], vcc
    ds_write_b128 v1, v[124:127] offset:{UB-65536+65536 if False else 0}+0
    s_mov_b64 exec, s[20:21]""".replace("offset:0+0", "offset:0"))
    k.L.pop(); k.L.pop();
    k(f"""v_add_u32 v73, {UB}, v1
    ds_write_b128 v73, v[124:127]
    ds_write_b128 v73, v[124:127] offset:{U_CH}
    s_mov_b64 exec, s[20:21]
    v_lshrrev_b32 v73, 2, v0
    v_mul_u32_u24 v73, {KC_CP}, v73
    v_and_b32 v74, 3, v0
    v_lshl_add_u32 v73, v74, 4, v73
    v_cmp_gt_u32 vcc, 64, v0
    s_and_saveexec_b64 s[20:21], vcc
    ds_write_b128 v73, v[124:127] offset:4096
    s_mov_b64 exec, s[20:21]""")
    k("s_waitcnt vmcnt(17)")
    for j in range(8):
        ln_finalize(k, 108+2*j, 109+2*j, 124, 125)
    for ch in range(2):
        for jj in range(4):
            src = 100 + 4*ch + jj
            unpack(k, 124, 125, src)
            m0, r0, m1, r1 = 108+4*jj, 109+4*jj, 110+4*jj, 111+4*jj
            k(f"""v_sub_f32 v124, v124, v{m0}
            v_sub_f32 v125, v125, v{m1}
            v_cvt_pk_bf16_f32 v126, v124, v125
            v_lshlrev_b32 v124, 16, v126
            v_and_b32 v125, 0xffff0000, v126
            v_mul_f32 v124, v124, v{r0}
            v_mul_f32 v125, v125, v{r1}
            v_cvt_pk_bf16_f32 v{src}, v124, v125""")
    k(f"""v_lshrrev_b32 v73, 2, v0
    v_mul_u32_u24 v73, 80, v73
    v_lshl_add_u32 v73, v74, 4, v73
    v_add_u32 v73, {UB + 31*80}, v73
    ds_write_b128 v73, v[100:103]
    ds_write_b128 v73, v[104:107] offset:{U_CH}""")
    for idx in range(16):
        ch, r = idx // 8, idx % 8
        k(f"s_waitcnt vmcnt({16-idx})")
        off = ch*KC_CH + r*KC_CP
        if off < 65536: k(f"ds_write_b128 v1, v[{4+4*idx}:{7+4*idx}] offset:{off}")
        else: raise Exception
    k(f"""v_and_b32 v75, 31, v0
    v_bfe_u32 v76, v0, 5, 1
    v_bfe_u32 v77, v0, 6, 1
    v_sub_u32 v78, 7, v75
    v_and_b32 v78, 7, v78
    v_mul_u32_u24 v79, {KC_CH}, v70
    v_mul_u32_u24 v80, {KC_CP}, v78
    v_add_u32 v79, v79, v80
    v_lshlrev_b32 v80, 3, v76
    v_add_u32 v80, 2047, v80
    v_sub_u32 v80, v80, v75
    v_sub_u32 v80, v80, v78
    v_lshl_add_u32 v79, v80, 1, v79
    v_lshlrev_b32 v80, 6, v77
    v_sub_u32 v79, v79, v80
    v_subrev_u32 v79, {64*62}, v79
    v_mul_u32_u24 v80, {U_CH}, v70
    v_sub_u32 v81, v75, v77
    v_mul_i32_i24 v81, 80, v81
    v_add3_u32 v80, v80, v81, {0})""".replace(", {0})", ", 0").replace(", 0)", ", 0"))
    k(f"""v_lshl_add_u32 v80, v76, 4, v80
    v_add_u32 v80, {UB}, v80""")
    for r in range(32): k(f"v_mov_b32 v{128+r}, 0")
    k("s_waitcnt lgkmcnt(0)\ns_barrier")
    def issue(m):
        b = 160 + 24*(m % 3); n = 0
        for c in range(2):
            k(f"ds_read_b128 v[{b+4*c}:{b+4*c+3}], v79 offset:{64*(62-2*m)+32*c}"); n += 1
        for c in range(2):
            k(f"ds_read_b128 v[{b+16+4*c}:{b+16+4*c+3}], v80 offset:{(63-2*m)*80+32*c}"); n += 1
        if m <= 15:
            for c in range(2):
                k(f"ds_read_b128 v[{b+8+4*c}:{b+8+4*c+3}], v80 offset:{(31-2*m)*80+32*c}"); n += 1
        return n
    cnt = {}
    cnt[0] = issue(0); cnt[1] = issue(1)
    for m in range(32):
        if m + 2 < 32: cnt[m+2] = issue(m+2)
        pend = sum(cnt[x] for x in (m+1, m+2) if x < 32)
        k(f"s_waitcnt lgkmcnt({pend})")
        b = 160 + 24*(m % 3)
        for c in range(2):
            k(f"v_mfma_f32_32x32x16_bf16 v[144:159], v[{b+4*c}:{b+4*c+3}], v[{b+16+4*c}:{b+16+4*c+3}], v[144:159]")
            if m <= 15:
                k(f"v_mfma_f32_32x32x16_bf16 v[128:143], v[{b+4*c}:{b+4*c+3}], v[{b+8+4*c}:{b+8+4*c+3}], v[128:143]")
    k(f"""v_and_b32 v82, 63, v0
    v_lshlrev_b32 v82, 4, v82
    v_lshl_add_u32 v82, v70, 13, v82
    v_add_u32 v82, {RED}, v82
    v_lshl_add_u32 v83, v77, 12, v82
    v_xor_b32 v84, 4096, v83
    v_lshlrev_b32 v85, 5, v77
    v_add_u32 v85, v85, v75
    v_lshlrev_b32 v86, 6, v85
    v_lshl_add_u32 v86, v76, 3, v86
    v_lshl_add_u32 v86, v70, 12, v86
    v_add_u32 v87, 31, v85
    v_mul_u32_u24 v87, 80, v87
    v_lshl_add_u32 v87, v76, 3, v87
    v_mul_u32_u24 v88, {U_CH}, v70
    v_add3_u32 v87, v87, v88, {UB}""".replace(f"v_add3_u32 v87, v87, v88, {UB}", f"v_add_u32 v87, v87, v88\nv_add_u32 v87, {UB}, v87"))
    for q in range(4):
        k(f"buffer_load_dwordx2 v[{4+2*q}:{5+2*q}], v86, s[8:11], s13 offen offset:{16*q}")
        k(f"ds_read_b64 v[{12+2*q}:{13+2*q}], v87 offset:{16*q}")
    k("""v_cmp_eq_u32 vcc, 0, v77
    s_nop 7
    s_nop 3""")
    for r in range(16):
        k(f"v_cndmask_b32 v{20+r}, v{128+r}, v{144+r}, vcc\nv_cndmask_b32 v{36+r}, v{144+r}, v{128+r}, vcc")
    for q in range(4):
        k(f"ds_write_b128 v84, v[{20+4*q}:{23+4*q}] offset:{1024*q}")
    k("s_waitcnt lgkmcnt(0)\ns_barrier")
    for q in range(4):
        k(f"ds_read_b128 v[{20+4*q}:{23+4*q}], v83 offset:{1024*q}")
    k("s_waitcnt vmcnt(0) lgkmcnt(0)\nv_lshlrev_b32 v72, 16, v72")
    for q in range(4):
        for h in range(2):
            y0, y1 = 36+4*q+2*h, 37+4*q+2*h
            k(f"""v_add_f32 v{y0}, v{y0}, v{20+4*q+2*h}
            v_add_f32 v{y1}, v{y1}, v{21+4*q+2*h}
            v_cvt_pk_bf16_f32 v60, v{y0}, v{y1}""")
            unpack(k, 61, 62, 12+2*q+h)
            k("""v_mul_f32 v61, v61, v72
            v_mul_f32 v62, v62, v72
            v_cvt_pk_bf16_f32 v63, v61, v62""")
            unpack(k, 61, 62, 63); unpack(k, 64, 65, 60)
            k("""v_add_f32 v61, v61, v64
            v_add_f32 v62, v62, v65
            v_cvt_pk_bf16_f32 v63, v61, v62""")
            unpack(k, 61, 62, 63); unpack(k, 64, 65, 4+2*q+h)
            k(f"""v_add_f32 v61, v61, v64
            v_add_f32 v62, v62, v65
            v_cvt_pk_bf16_f32 v{52+2*q+h}, v61, v62""")
        k(f"buffer_store_dwordx2 v[{52+2*q}:{53+2*q}], v86, s[8:11], s14 offen offset:{16*q}")
    footer(k)
    return k.text(), desc(name, 232) + "\n.p2align 6\n" + desc("conv2_kernel", 232)
```

```python
from gen_common import *
QKV_LDS = 81920 + 512
STAT = 81920
def k3():
    name = "qkv1_kernel"; k = K(name)
    header2(k, 256, [("qkv1_kernel", [f"s_mov_b32 s40, {XT1}"]), ("qkv2_kernel", [f"s_mov_b32 s40, {XT3}"])])
    k("""s_load_dwordx2 s[4:5], s[0:1], 112
    s_waitcnt lgkmcnt(0)""")
    srd(k, 8, 4, WS_BYTES)
    k(f"""s_and_b32 s12, s2, 7
    s_lshr_b32 s13, s2, 3
    s_lshl_b32 s14, s13, 7
    s_add_u32 s14, s14, s40
    v_and_b32 v1, 7, v0
    v_lshrrev_b32 v2, 3, v0
    v_lshlrev_b32 v3, 12, v2
    v_lshl_add_u32 v3, v1, 4, v3
    s_mov_b32 s15, s14""")
    for i in range(16):
        k(f"buffer_load_dwordx4 v[{16+4*i}:{19+4*i}], v3, s[8:11], s15 offen")
        if i < 15: k("s_add_u32 s15, s15, 0x20000")
    k(f"""v_lshrrev_b32 v4, 6, v0
    v_mul_u32_u24 v6, 49152, v4
    v_and_b32 v5, 63, v0
    v_lshl_add_u32 v6, v5, 4, v6
    s_mul_i32 s17, s12, 196608
    s_add_u32 s17, s17, {WQT}
    s_add_u32 s18, s17, 16384
    s_add_u32 s19, s17, 32768""")
    for s in range(16):
        for p in range(3):
            a = 12*s + 4*p
            k(f"buffer_load_dwordx4 a[{a}:{a+3}], v6, s[8:11], s{17+p} offen offset:{1024*(s%4)}")
        if s % 4 == 3 and s < 15: k("s_add_u32 s17, s17, 4096\ns_add_u32 s18, s18, 4096\ns_add_u32 s19, s19, 4096")
    k(f"""v_and_b32 v5, 15, v0
    v_bfe_u32 v7, v0, 4, 2
    v_mul_u32_u24 v11, 160, v2
    v_lshl_add_u32 v11, v1, 4, v11
    v_add_u32 v12, 40960, v11
    v_lshrrev_b32 v13, 2, v5
    v_lshl_add_u32 v13, v7, 2, v13
    v_mul_u32_u24 v13, 160, v13
    v_and_b32 v14, 3, v0
    v_lshl_add_u32 v13, v14, 3, v13
    v_add_u32 v14, 40960, v13
    v_lshl_add_u32 v8, v4, 5, v13
    v_add_u32 v9, 40960, v8
    v_mov_b32 v180, 0x3f803f80
    v_mov_b32 v181, 0x3f803f80
    v_mov_b32 v182, 0x3f803f80
    v_mov_b32 v183, 0x3f803f80
    s_lshl_b32 s16, s12, 2
    v_add_u32 v4, s16, v4""")
    for i in range(16):
        k(f"s_waitcnt vmcnt({63-i})")
        if i < 8: k(f"ds_write_b128 v11, v[{16+4*i}:{19+4*i}] offset:{5120*i}")
        else: k(f"ds_write_b128 v12, v[{16+4*i}:{19+4*i}] offset:{5120*(i-8)}")
    k(f"""s_lshl_b32 s22, s13, 11
    s_add_u32 s23, s22, {KB}
    s_add_u32 s24, s22, {VT}
    s_add_u32 s22, s22, {QB}
    v_lshlrev_b32 v15, 16, v4
    v_lshl_add_u32 v15, v5, 4, v15
    v_lshrrev_b32 v82, 1, v7
    v_and_b32 v83, 1, v7
    v_lshl_add_u32 v10, v83, 8, v15
    v_lshl_add_u32 v10, v82, 3, v10
    v_lshl_add_u32 v15, v82, 9, v15
    v_lshl_add_u32 v15, v83, 3, v15""")
    k("s_waitcnt lgkmcnt(0)\ns_barrier")
    def issue(s):
        b = 16 + 20*(s % 2)
        base, b2, so = ("v13", "v8", 5120*s) if s < 8 else ("v14", "v9", 5120*(s-8))
        for tq in range(4):
            k(f"ds_read_b64_tr_b16 v[{b+4*tq}:{b+4*tq+1}], {base} offset:{so+32*tq}")
            k(f"ds_read_b64_tr_b16 v[{b+4*tq+2}:{b+4*tq+3}], {base} offset:{so+32*tq+2560}")
        k(f"ds_read_b64_tr_b16 v[{b+16}:{b+17}], {b2} offset:{so}")
        k(f"ds_read_b64_tr_b16 v[{b+18}:{b+19}], {b2} offset:{so+2560}")
    issue(0)
    for s in range(16):
        if s < 15: issue(s+1)
        k(f"s_waitcnt vmcnt({45-3*s}) lgkmcnt({10 if s < 15 else 0})")
        b = 16 + 20*(s % 2)
        def C(c): return "0" if s == 0 else f"v[{c}:{c+3}]"
        k(f"v_mfma_f32_16x16x32_bf16 v[172:175], v[{b+16}:{b+19}], v[{b+16}:{b+19}], {C(172)}")
        k(f"v_mfma_f32_16x16x32_bf16 v[176:179], v[180:183], v[{b+16}:{b+19}], {C(176)}")
        for tq in range(4):
            for p in range(3):
                a = 12*s + 4*p; c = 112 + 16*p + 4*tq
                if p < 2: k(f"v_mfma_f32_16x16x32_bf16 v[{c}:{c+3}], a[{a}:{a+3}], v[{b+4*tq}:{b+4*tq+3}], {C(c)}")
                else: k(f"v_mfma_f32_16x16x32_bf16 v[{c}:{c+3}], v[{b+4*tq}:{b+4*tq+3}], a[{a}:{a+3}], {C(c)}")
        for p in range(3):
            a = 12*s + 4*p; c = 160 + 4*p
            if p < 2: k(f"v_mfma_f32_16x16x32_bf16 v[{c}:{c+3}], a[{a}:{a+3}], v[180:183], {C(c)}")
            else: k(f"v_mfma_f32_16x16x32_bf16 v[{c}:{c+3}], v[180:183], a[{a}:{a+3}], {C(c)}")
    k(f"""v_lshlrev_b32 v56, 2, v7
    v_sub_u32 v56, v5, v56
    v_cmp_eq_u32 vcc, 1, v56
    v_cmp_eq_u32 s[26:27], 2, v56
    v_cmp_eq_u32 s[28:29], 3, v56
    v_lshrrev_b32 v57, 6, v0
    v_lshl_add_u32 v57, v57, 4, v5
    v_lshlrev_b32 v57, 2, v57
    v_add_u32 v57, {STAT}, v57
    v_cndmask_b32 v172, v172, v173, vcc
    v_cndmask_b32 v172, v172, v174, s[26:27]
    v_cndmask_b32 v172, v172, v175, s[28:29]""")
    ln_finalize(k, 176, 172, 58, 59)
    k(f"""v_mul_f32 v176, v176, v172
    v_cmp_gt_u32 vcc, 4, v56
    s_and_saveexec_b64 s[20:21], vcc
    ds_write2_b32 v57, v172, v176 offset0:0 offset1:64
    s_mov_b64 exec, s[20:21]
    v_lshlrev_b32 v58, 2, v5
    v_add_u32 v58, {STAT}, v58
    v_lshlrev_b32 v59, 4, v7
    v_add_u32 v59, {STAT}, v59
    s_waitcnt lgkmcnt(0)
    s_barrier""")
    for tq in range(4):
        k(f"ds_read2_b32 v[{16+2*tq}:{17+2*tq}], v58 offset0:{16*tq} offset1:{64+16*tq}")
    for tq in range(4):
        k(f"ds_read_b128 v[{24+8*tq}:{27+8*tq}], v59 offset:{64*tq}")
        k(f"ds_read_b128 v[{28+8*tq}:{31+8*tq}], v59 offset:{256+64*tq}")
    k("s_waitcnt lgkmcnt(8)")
    for p in range(2):
        for tq in range(4):
            c = 112 + 16*p + 4*tq; R = 16 + 2*tq; cs = 160 + 4*p
            for h in range(2):
                k(f"""v_pk_mul_f32 v[60:61], v[{cs+2*h}:{cs+2*h+1}], v[{R}:{R+1}] op_sel:[0,1] op_sel_hi:[1,1]
                v_pk_fma_f32 v[{c+2*h}:{c+2*h+1}], v[{c+2*h}:{c+2*h+1}], v[{R}:{R+1}], v[60:61] op_sel:[0,0,0] op_sel_hi:[1,0,1] neg_lo:[0,0,1] neg_hi:[0,0,1]""")
            k(f"v_cvt_pk_bf16_f32 v{c}, v{c}, v{c+1}\nv_cvt_pk_bf16_f32 v{c+1}, v{c+2}, v{c+3}")
            k(f"buffer_store_dwordx2 v[{c}:{c+1}], v15, s[8:11], s{22+p} offen offset:{(tq//2)*1024+(tq%2)*256}")
    k("s_waitcnt lgkmcnt(0)")
    for tq in range(4):
        c = 144 + 4*tq; R = 24 + 8*tq
        for h in range(2):
            k(f"""v_pk_mul_f32 v[60:61], v[{R+4+2*h}:{R+5+2*h}], v[168:169] op_sel:[0,0] op_sel_hi:[1,0]
            v_pk_fma_f32 v[{c+2*h}:{c+2*h+1}], v[{c+2*h}:{c+2*h+1}], v[{R+2*h}:{R+2*h+1}], v[60:61] neg_lo:[0,0,1] neg_hi:[0,0,1]""")
        k(f"v_cvt_pk_bf16_f32 v{c}, v{c}, v{c+1}\nv_cvt_pk_bf16_f32 v{c+1}, v{c+2}, v{c+3}")
        k(f"buffer_store_dwordx2 v[{c}:{c+1}], v10, s[8:11], s24 offen offset:{512*tq}")
    footer(k)
    return k.text(), desc(name, 192+192, 192) + "\n.p2align 6\n" + desc("qkv2_kernel", 192+192, 192)
```

```python
from gen_common import *
def k4(name, zero_st):
    k = K(name); header(k, 512)
    k("""s_load_dwordx2 s[4:5], s[0:1], 112
    s_waitcnt lgkmcnt(0)""")
    srd(k, 8, 4, WS_BYTES)
    k(f"""s_lshr_b32 s12, s2, 3
    s_and_b32 s13, s2, 7
    v_lshrrev_b32 v1, 6, v0
    s_lshl_b32 s14, s13, 2
    v_add_u32 v1, s14, v1
    v_and_b32 v2, 31, v0
    v_bfe_u32 v3, v0, 5, 1
    v_and_b32 v4, 63, v0
    v_lshlrev_b32 v4, 4, v4
    v_lshl_add_u32 v4, v1, 16, v4
    s_lshl_b32 s15, s12, 10
    s_add_u32 s16, s15, {QB}
    buffer_load_dwordx4 v[8:11], v4, s[8:11], s16 offen""")
    for j in range(9):
        k(f"""s_add_i32 s17, s12, {j-8}
        s_max_i32 s17, s17, 0
        s_lshl_b32 s17, s17, 10
        s_add_u32 s17, s17, {KB}
        buffer_load_dwordx4 v[{12+4*j}:{15+4*j}], v4, s[8:11], s17 offen""")
    k("v_mov_b32 v7, 0xf149f2ca\nv_lshlrev_b32 v5, 2, v3")
    for r in range(16):
        k(f"""v_add_u32 v6, {8*(r//4)+r%4}, v5
        v_cmp_gt_u32 vcc, v6, v2
        s_nop 1
        v_cndmask_b32 v{48+r}, v7, 0, vcc
        v_cndmask_b32 v{64+r}, 0, v7, vcc""")
    for j in range(9):
        k(f"s_waitcnt vmcnt({8-j})")
        c = "v[48:63]" if j == 0 else ("v[64:79]" if j == 8 else "0")
        k(f"v_mfma_f32_32x32x16_bf16 v[{96+16*j}:{111+16*j}], v[{12+4*j}:{15+4*j}], v[8:11], {c}")
    k("""v_cmp_eq_u32 vcc, 16, v2
    v_cmp_eq_u32 s[20:21], 20, v2
    s_or_b64 vcc, vcc, s[20:21]
    v_mov_b32 v5, 0x3f803f80
    v_cndmask_b32 v5, 0, v5, vcc
    s_nop 7""")
    for r in range(72): k(f"v_mov_b32 v{12+r}, v5")
    k(f"""v_lshlrev_b32 v6, 16, v1
    v_lshl_add_u32 v6, v2, 4, v6
    v_lshl_add_u32 v6, v3, 8, v6
    v_cmp_gt_u32 vcc, 16, v2
    s_and_saveexec_b64 s[20:21], vcc""")
    for j in range(9):
        k(f"""s_add_i32 s17, s12, {j-8}
        s_max_i32 s17, s17, 0
        s_lshl_b32 s17, s17, 10
        s_add_u32 s17, s17, {VT}
        buffer_load_dwordx4 v[{12+8*j}:{15+8*j}], v6, s[8:11], s17 offen
        buffer_load_dwordx4 v[{16+8*j}:{19+8*j}], v6, s[8:11], s17 offen offset:512""")
    k("s_mov_b64 exec, s[20:21]")
    for j in range(8):
        k(f"s_cmp_ge_u32 s12, {8-j}\ns_cbranch_scc1 {name}_mk")
        for r in range(16): k(f"v_mov_b32 v{96+16*j+r}, v7")
    k.label(name + "_mk")
    k("v_max3_f32 v84, v96, v97, v98")
    r = 99
    while r + 1 < 240:
        k(f"v_max3_f32 v84, v84, v{r}, v{r+1}"); r += 2
    k("v_max_f32 v84, v84, v239")
    k("""v_mov_b32 v85, v84
    s_nop 1
    v_permlane32_swap_b32 v84, v85
    v_max_f32 v84, v84, v85
    s_mov_b32 s22, 0x3eb8aa3b
    v_mul_f32 v84, s22, v84""")
    for r in range(16): k(f"v_mov_b32 v{240+r}, 0")
    for j in range(9):
        b = 96 + 16*j
        for r in range(16):
            k(f"v_fma_f32 v{b+r}, v{b+r}, s22, -v84")
        for r in range(16):
            k(f"v_exp_f32 v{b+r}, v{b+r}")
        k("s_nop 0")
        for r in range(8):
            k(f"v_cvt_pk_bf16_f32 v{b+r}, v{b+2*r}, v{b+2*r+1}")
        k(f"s_waitcnt vmcnt({16-2*j})\ns_nop 0")
        k(f"v_mfma_f32_32x32x16_bf16 v[240:255], v[{12+8*j}:{15+8*j}], v[{b}:{b+3}], v[240:255]")
        k(f"v_mfma_f32_32x32x16_bf16 v[240:255], v[{16+8*j}:{19+8*j}], v[{b+4}:{b+7}], v[240:255]")
    k(f"""v_lshlrev_b32 v4, 4, v2
    v_lshl_add_u32 v4, v1, 10, v4
    v_lshl_add_u32 v4, v3, 3, v4
    s_lshl_b32 s15, s12, 15
    s_add_u32 s16, s15, {OB}
    s_nop 7
    v_rcp_f32 v84, v248
    s_nop 0""")
    for r in range(8): k(f"v_mul_f32 v{240+r}, v{240+r}, v84")
    k("""v_cvt_pk_bf16_f32 v240, v240, v241
    v_cvt_pk_bf16_f32 v241, v242, v243
    v_cvt_pk_bf16_f32 v242, v244, v245
    v_cvt_pk_bf16_f32 v243, v246, v247
    buffer_store_dwordx2 v[240:241], v4, s[8:11], s16 offen
    buffer_store_dwordx2 v[242:243], v4, s[8:11], s16 offen offset:512""")
    if zero_st:
        k(f"""s_cmp_ge_u32 s2, 16
        s_cbranch_scc1 {name}_nz
        v_mov_b32 v5, 0
        s_lshl_b32 s17, s2, 10
        s_add_u32 s17, s17, {ST1}
        v_lshlrev_b32 v6, 2, v0
        buffer_store_dword v5, v6, s[8:11], s17 offen""")
        k.label(name + "_nz")
    footer(k)
    return k.text(), desc(name, 256)

def k5():
    name = "oproj1_kernel"; k = K(name)
    header2(k, 256, [("oproj1_kernel", [f"s_mov_b32 s40, {XT1}", "s_mov_b32 s42, 0"]), ("oproj2_kernel", [f"s_mov_b32 s40, {XT3}", "s_mov_b32 s42, 1"])])
    k("""s_load_dwordx2 s[4:5], s[0:1], 112
    s_load_dwordx2 s[6:7], s[0:1], 96
    s_waitcnt lgkmcnt(0)""")
    srd(k, 8, 4, WS_BYTES)
    srd(k, 24, 6, 0x200000)
    k(f"""s_and_b32 s12, s2, 7
    s_lshr_b32 s13, s2, 3
    v_and_b32 v1, 31, v0
    v_bfe_u32 v2, v0, 5, 1
    v_bfe_u32 v3, v0, 6, 1
    v_lshrrev_b32 v4, 7, v0
    v_lshl_add_u32 v5, v3, 5, v1
    v_lshl_add_u32 v6, v4, 5, v1
    v_and_b32 v7, 63, v0
    v_lshlrev_b32 v7, 4, v7
    v_lshl_add_u32 v8, v4, 15, v7
    v_lshl_add_u32 v7, v3, 15, v7
    s_lshl_b32 s14, s12, 16
    s_add_u32 s14, s14, {WOT}
    s_lshl_b32 s15, s13, 16
    s_add_u32 s15, s15, {OB}""")
    k(f"""v_lshlrev_b32 v9, 5, v3
    v_lshl_add_u32 v9, v2, 2, v9
    v_lshlrev_b32 v9, 12, v9
    v_lshl_add_u32 v9, v6, 1, v9
    s_lshl_b32 s16, s12, 18
    s_lshl_b32 s17, s13, 7
    s_add_u32 s16, s16, s17
    s_add_u32 s17, s16, {XT2}
    s_add_u32 s16, s16, s40""")
    for r in range(16):
        k(f"s_add_u32 s18, s16, {(8*(r//4)+r%4)*4096}\nbuffer_load_ushort v{32+r}, v9, s[8:11], s18 offen")
    for s in range(32):
        k(f"buffer_load_dwordx4 a[{4*s}:{4*s+3}], v7, s[8:11], s14 offen offset:{1024*(s%4)}")
        k(f"buffer_load_dwordx4 v[{64+4*s}:{67+4*s}], v8, s[8:11], s15 offen offset:{1024*(s%4)}")
        if s % 4 == 3 and s < 31: k("s_add_u32 s14, s14, 4096\ns_add_u32 s15, s15, 4096")
    for r in range(16): k(f"v_mov_b32 v{16+r}, 0")
    for s in range(32):
        k(f"s_waitcnt vmcnt({62-2*s})")
        k(f"v_mfma_f32_32x32x16_bf16 v[16:31], a[{4*s}:{4*s+3}], v[{64+4*s}:{67+4*s}], v[16:31]")
    k("s_waitcnt vmcnt(0)\ns_nop 7\ns_nop 3\nv_mov_b32 v50, 0\nv_mov_b32 v51, 0")
    for r in range(0, 16, 2):
        k(f"""v_cvt_pk_bf16_f32 v48, v{16+r}, v{17+r}
        v_lshlrev_b32 v{16+r}, 16, v48
        v_and_b32 v{17+r}, 0xffff0000, v48
        v_lshlrev_b32 v{32+r}, 16, v{32+r}
        v_lshlrev_b32 v{33+r}, 16, v{33+r}
        v_add_f32 v{16+r}, v{16+r}, v{32+r}
        v_add_f32 v{17+r}, v{17+r}, v{33+r}
        v_cvt_pk_bf16_f32 v{32+r//2}, v{16+r}, v{17+r}""")
    k('s_cmp_eq_u32 s42, 0\ns_cbranch_scc1 oproj_mid')
    if True:
        k("""v_lshlrev_b32 v10, 10, v6
        v_lshl_add_u32 v10, v3, 6, v10
        v_lshl_add_u32 v10, v2, 3, v10
        s_lshl_b32 s18, s13, 16
        s_lshl_b32 s19, s12, 7
        s_add_u32 s18, s18, s19""")
        for q in range(4):
            k(f"buffer_store_dwordx2 v[{32+2*q}:{33+2*q}], v10, s[24:27], s18 offen offset:{16*q}")
        k('s_endpgm'); k.label('oproj_mid')
        for r in range(0, 16, 2):
            unpack(k, 48, 49, 32+r//2)
            k(f"""v_add_f32 v50, v50, v48
            v_fmac_f32 v51, v48, v48
            v_add_f32 v50, v50, v49
            v_fmac_f32 v51, v49, v49
            s_add_u32 s18, s17, {(8*(r//4)+r%4)*4096}
            s_add_u32 s19, s17, {(8*(r//4)+r%4+1)*4096}
            buffer_store_short v{32+r//2}, v9, s[8:11], s18 offen
            buffer_store_short_d16_hi v{32+r//2}, v9, s[8:11], s19 offen""")
        k(f"""v_mov_b32 v52, v50
        v_mov_b32 v53, v51
        s_nop 1
        v_permlane32_swap_b32 v50, v52
        v_permlane32_swap_b32 v51, v53
        v_add_f32 v50, v50, v52
        v_add_f32 v51, v51, v53
        v_cndmask_b32 v50, v50, v51, vcc""".replace("v_cndmask_b32 v50, v50, v51, vcc", "v_cmp_eq_u32 vcc, 1, v2\ns_nop 1\nv_cndmask_b32 v50, v50, v51, vcc"))
        k(f"""v_lshlrev_b32 v10, 3, v6
        v_lshl_add_u32 v10, v2, 2, v10
        s_lshl_b32 s18, s13, 9
        s_add_u32 s18, s18, {ST1}
        buffer_atomic_add_f32 v50, v10, s[8:11], s18 offen""")
    footer(k)
    return k.text(), desc(name, 192+128, 192) + "\n.p2align 6\n" + desc("oproj2_kernel", 192+128, 192)
```

```python
import sys
from gen_common import *
from gen_k1 import k1
from gen_k2 import k2, CONV_LDS
from gen_k3 import k3, QKV_LDS
from gen_k4 import k4, k5
hdr = open('interleave_layers__ssm_conv_s4__sliding_block__prompt.s.ref').read().split('; Override')[0]
ks = [k1(), k2(), k3(), k4("attn1_kernel", True), k5()]
launch = [("prep_kernel", 640, 34816), ("conv1_kernel", 256, CONV_LDS), ("qkv1_kernel", 256, QKV_LDS), ("attn1_kernel", 512, 0), ("oproj1_kernel", 256, 0),
          ("conv2_kernel", 256, CONV_LDS), ("qkv2_kernel", 256, QKV_LDS), ("attn1_kernel", 512, 0), ("oproj2_kernel", 256, 0)]
import os
rep = os.environ.get('REP')
if rep:
    nl = []
    for x in launch:
        nl.append(x)
        if x[0] == rep: nl.append(x)
    launch = nl
if len(sys.argv) > 2:
    n = int(sys.argv[2]); off = int(sys.argv[3], 0)
    launch = launch[:n] + [("dump_kernel", 512, 0)]
    k = K("dump_kernel"); header(k, 512)
    k("s_load_dwordx2 s[4:5], s[0:1], 112\ns_load_dwordx2 s[6:7], s[0:1], 96\ns_waitcnt lgkmcnt(0)")
    srd(k, 8, 4, WS_BYTES); srd(k, 12, 6, 0x200000)
    k(f"s_lshl_b32 s3, s2, 12\nv_lshl_add_u32 v1, v0, 4, s3\ns_mov_b32 s16, {off}\nbuffer_load_dwordx4 v[4:7], v1, s[8:11], s16 offen\ns_waitcnt vmcnt(0)\nbuffer_store_dwordx4 v[4:7], v1, s[12:15], 0 offen")
    footer(k); ks.append((k.text(), desc("dump_kernel", 16)))
pre = os.environ.get('PRE')
if pre: launch = launch + launch[:int(pre)]
pad = os.environ.get('PAD')
if pad:
    k = K("pad_kernel"); header(k, 256)
    if pad == 'A':
        for i in range(4096): k(f"v_add3_u32 v{1+i%8}, v{1+i%8}, v0, v0")
    elif pad == 'B':
        k("s_mov_b32 s3, 64"); k.label("pad_loop")
        for i in range(64): k(f"v_add3_u32 v{1+i%8}, v{1+i%8}, v0, v0")
        k("s_sub_u32 s3, s3, 1\ns_cmp_lg_u32 s3, 0\ns_cbranch_scc1 pad_loop")
    footer(k); ks.append((k.text(), desc("pad_kernel", 16)))
    launch = launch + [("pad_kernel", 256, 0)]
out = hdr
for n, g, l in launch: out += "; @launch kernel=%s grid=(%d,1,1) block=(256,1,1) lds=%d\n" % (n, g, l)
out += '.amdgcn_target "amdgcn-amd-amdhsa--gfx950"\n.text\n'
names = set(n for n, _, _ in launch)
for t, d in ks:
    if any(('.globl ' + n + '\n') in t for n in names): out += t + "\n"
out += '.section .rodata,"a"\n'
for t, d in ks:
    if any(('.globl ' + n + '\n') in t for n in names): out += ".p2align 6\n" + d + "\n"
open(sys.argv[1], 'w').write(out)
```

```python
from gen_common import *
def k1():
    k = K("prep_kernel"); header(k, 640)
    k("""s_cmp_ge_u32 s2, 128
    s_cbranch_scc1 prep_kgen
    s_load_dwordx2 s[4:5], s[0:1], 0
    s_load_dwordx2 s[6:7], s[0:1], 80
    s_load_dwordx2 s[8:9], s[0:1], 88
    s_load_dwordx2 s[10:11], s[0:1], 112
    s_waitcnt lgkmcnt(0)""")
    srd(k, 16, 10, WS_BYTES)
    k("""s_cmp_ge_u32 s2, 64
    s_cbranch_scc1 prep_m1""")
    srd(k, 12, 4, 0x200000)
    k(f"""s_lshl_b32 s20, s2, 15
    s_mov_b32 s21, 1024
    s_lshl_b32 s22, s2, 6
    s_add_u32 s22, s22, {XT0}
    s_mov_b32 s23, 0x100000
    s_mov_b32 s24, 0
    v_lshlrev_b32 v50, 12, v0
    s_branch prep_go""")
    k.label("prep_m1")
    k("""s_cmp_ge_u32 s2, 112
    s_cbranch_scc1 prep_m2""")
    srd(k, 12, 6, 0x180000)
    k(f"""s_sub_u32 s3, s2, 64
    s_lshr_b32 s25, s3, 4
    s_and_b32 s26, s3, 15
    s_mul_i32 s20, s26, 98304
    s_lshl_b32 s27, s25, 10
    s_add_u32 s20, s20, s27
    s_mov_b32 s21, 3072
    s_lshl_b32 s22, s25, 14
    s_lshl_b32 s27, s26, 10
    s_add_u32 s22, s22, s27
    s_add_u32 s22, s22, {WQT}
    s_mov_b32 s23, 786432
    s_mov_b32 s24, 1
    v_lshrrev_b32 v6, 4, v0
    v_mul_u32_u24 v6, 49152, v6
    v_and_b32 v7, 15, v0
    v_lshl_add_u32 v50, v7, 4, v6
    s_branch prep_go""")
    k.label("prep_m2")
    srd(k, 12, 8, 0x80000)
    k(f"""s_sub_u32 s3, s2, 112
    s_lshl_b32 s20, s3, 15
    s_mov_b32 s21, 1024
    s_lshl_b32 s22, s3, 11
    s_add_u32 s22, s22, {WOT}
    s_mov_b32 s23, 262144
    s_mov_b32 s24, 2
    v_lshrrev_b32 v6, 5, v0
    v_lshlrev_b32 v6, 15, v6
    v_and_b32 v7, 31, v0
    v_lshl_add_u32 v50, v7, 4, v6""")
    k.label("prep_go")
    k("""v_lshrrev_b32 v1, 3, v0
    v_and_b32 v2, 7, v0
    v_mul_lo_u32 v3, v1, s21
    v_lshl_add_u32 v3, v2, 4, v3
    v_mul_u32_u24 v4, 1088, v1
    v_lshl_add_u32 v4, v2, 4, v4""")
    for i in range(8):
        k(f"buffer_load_dwordx4 v[{8+4*i}:{11+4*i}], v3, s[12:15], s20 offen offset:{128*i}")
    k("""v_and_b32 v5, 15, v0
    v_lshrrev_b32 v5, 2, v5
    v_mul_u32_u24 v5, 1088, v5
    v_and_b32 v6, 0xf0, v0
    v_and_b32 v7, 3, v0
    v_lshl_add_u32 v6, v7, 2, v6
    v_lshl_add_u32 v5, v6, 1, v5""")
    for i in range(8):
        k(f"s_waitcnt vmcnt({7-i})\nds_write_b128 v4, v[{8+4*i}:{11+4*i}] offset:{128*i}")
    k("""s_cmp_lg_u32 s24, 0
    s_cbranch_scc1 prep_nostats
    v_mov_b32 v60, 0
    v_mov_b32 v61, 0""")
    for r in range(8, 40):
        unpack(k, 62, 63, r)
        k("""v_add_f32 v60, v60, v62
        v_fmac_f32 v61, v62, v62
        v_add_f32 v60, v60, v63
        v_fmac_f32 v61, v63, v63""")
    for dpp in ("quad_perm:[1,0,3,2]", "quad_perm:[2,3,0,1]", "row_half_mirror"):
        k(f"""s_nop 1
        v_add_f32_dpp v60, v60, v60 {dpp} row_mask:0xf bank_mask:0xf
        v_add_f32_dpp v61, v61, v61 {dpp} row_mask:0xf bank_mask:0xf""")
    k(f"""s_lshl_b32 s3, s2, 8
    s_add_u32 s3, s3, {ST0}
    v_lshlrev_b32 v62, 3, v1
    v_cmp_eq_u32 vcc, 0, v2
    s_and_saveexec_b64 s[28:29], vcc
    buffer_store_dwordx2 v[60:61], v62, s[16:19], s3 offen
    s_mov_b64 exec, s[28:29]""")
    k.label("prep_nostats")
    k("""s_waitcnt lgkmcnt(0)
    s_barrier
    s_add_u32 s25, s23, s22
    s_cmp_eq_u32 s24, 1
    s_cbranch_scc1 prep_perm
    s_cmp_eq_u32 s24, 2
    s_cbranch_scc1 prep_wo""")
    for variant in (0, 1, 2):
        if variant == 1: k.label("prep_perm")
        if variant == 2: k.label("prep_wo")
        for p in range(2):
            for i in range(8):
                if variant != 1: d = 8 + 16*p + 2*i
                else: d = 8 + 16*p + (4*i if i < 4 else 4*(i-4)+2)
                k(f"ds_read_b64_tr_b16 v[{d}:{d+1}], v5 offset:{4352*i+512*p}")
        for p in range(2):
            k(f"s_waitcnt lgkmcnt({8*(1-p)})")
            for j in range(4):
                k(f"buffer_store_dwordx4 v[{8+16*p+4*j}:{11+16*p+4*j}], v50, s[16:19], s{22 if p==0 else 25} offen offset:{(16,256,512)[variant]*j}")
        k("s_endpgm")
    k.label("prep_kgen")
    k("""s_sub_u32 s3, s2, 128
    s_load_dwordx4 s[4:7], s[0:1], 8
    s_load_dwordx4 s[8:11], s[0:1], 24
    s_load_dwordx4 s[12:15], s[0:1], 40
    s_load_dwordx2 s[16:17], s[0:1], 56
    s_load_dwordx2 s[18:19], s[0:1], 112
    v_and_b32 v1, 127, v0
    s_lshl_b32 s20, s3, 8
    v_lshl_add_u32 v2, v1, 1, s20
    s_lshl_b32 s21, s3, 1
    v_mov_b32 v3, s21
    s_waitcnt lgkmcnt(0)
    global_load_ushort v4, v2, s[4:5]
    global_load_ushort v5, v2, s[6:7]
    global_load_ushort v6, v2, s[8:9]
    global_load_ushort v7, v2, s[10:11]
    global_load_ushort v8, v2, s[12:13]
    global_load_ushort v9, v2, s[14:15]
    global_load_ushort v10, v3, s[16:17]""")
    srd(k, 24, 18, WS_BYTES)
    k("""s_waitcnt vmcnt(0)
    v_lshlrev_b32 v4, 16, v4
    v_lshlrev_b32 v5, 16, v5
    v_lshlrev_b32 v6, 16, v6
    v_lshlrev_b32 v7, 16, v7
    v_lshlrev_b32 v8, 16, v8
    v_lshlrev_b32 v9, 16, v9
    v_lshlrev_b32 v10, 16, v10
    v_mul_f32 v10, 0x3fb8aa3b, v10
    v_exp_f32 v10, v10
    s_nop 0
    v_cvt_pk_bf16_f32 v10, v10, v10
    v_lshlrev_b32 v10, 16, v10
    v_mul_f32 v12, v10, v4
    v_mul_f32 v12, 0x3fb8aa3b, v12
    v_mul_f32 v13, v10, v5
    v_mul_f32 v13, 0x3e22f983, v13
    v_mul_f32 v6, v10, v6
    v_mul_f32 v7, v10, v7
    v_mul_f32 v14, v8, v6
    v_fma_f32 v14, -v9, v7, v14
    v_mul_f32 v15, v8, v7
    v_fma_f32 v15, v9, v6, v15
    v_mul_f32 v16, 0x43800000, v12
    v_mul_f32 v17, 0x43800000, v13
    v_exp_f32 v16, v16
    v_fract_f32 v17, v17
    v_sub_f32 v21, 0, v15
    v_sin_f32 v19, v17
    v_cos_f32 v18, v17
    v_mov_b32 v20, v14
    v_sub_f32 v23, 0, v14
    v_mov_b32 v22, v21
    v_mul_f32 v15, v19, v16
    v_mul_f32 v14, v18, v16
    v_lshlrev_b32 v2, 5, v1
    ds_write_b128 v2, v[12:15] offset:4352
    ds_write_b128 v2, v[20:23] offset:4368
    v_lshlrev_b32 v2, 2, v0
    v_mov_b32 v3, 0
    ds_write_b32 v2, v3
    ds_write_b32 v2, v3 offset:1024
    ds_write_b32 v2, v3 offset:2048
    v_lshrrev_b32 v16, 6, v0
    v_and_b32 v17, 15, v0
    v_bfe_u32 v18, v0, 4, 2
    v_cvt_f32_u32 v21, v17
    v_mul_f32 v20, 0x41800000, v21
    v_lshlrev_b32 v19, 10, v16
    v_lshl_add_u32 v19, v18, 5, v19
    v_lshlrev_b32 v22, 8, v18
    v_lshl_add_u32 v22, v17, 2, v22
    s_waitcnt lgkmcnt(0)
    s_barrier
    ds_read_b128 v[24:27], v19 offset:4352
    ds_read_b128 v[28:31], v19 offset:4368""")
    for s in range(8):
        P = 24 if s % 2 == 0 else 32
        Pn = 32 if s % 2 == 0 else 24
        if s < 7: k(f"ds_read_b128 v[{Pn}:{Pn+3}], v19 offset:{4352+128*(s+1)}\nds_read_b128 v[{Pn+4}:{Pn+7}], v19 offset:{4368+128*(s+1)}\ns_waitcnt lgkmcnt(2)")
        else: k("s_waitcnt lgkmcnt(0)")
        k(f"""v_pk_mul_f32 v[40:41], v[20:21], v[{P}:{P+1}] op_sel:[0,0] op_sel_hi:[1,0]
        v_pk_mul_f32 v[42:43], v[20:21], v[{P}:{P+1}] op_sel:[0,1] op_sel_hi:[1,1]
        v_exp_f32 v40, v40
        v_exp_f32 v41, v41
        v_fract_f32 v42, v42
        v_fract_f32 v43, v43
        v_sin_f32 v44, v42
        v_sin_f32 v45, v43
        v_cos_f32 v46, v42
        v_cos_f32 v47, v43
        s_nop 0
        v_pk_mul_f32 v[66:67], v[44:45], v[40:41]
        v_pk_mul_f32 v[64:65], v[46:47], v[40:41]""")
        for w in range(4):
            re, im, A = 64+4*w, 66+4*w, 56+2*w
            k(f"""v_pk_mul_f32 v[{A}:{A+1}], v[{P+4}:{P+5}], v[{re}:{re+1}] op_sel:[0,0] op_sel_hi:[1,0]
            v_pk_fma_f32 v[{A}:{A+1}], v[{P+6}:{P+7}], v[{im}:{im+1}], v[{A}:{A+1}] op_sel:[0,0,0] op_sel_hi:[1,0,1]""")
            if w < 3:
                k(f"""v_pk_mul_f32 v[52:53], v[{im}:{im+1}], v[{im}:{im+1}]
                v_pk_add_f32 v[54:55], v[{re}:{re+1}], v[{re}:{re+1}]
                v_pk_fma_f32 v[{re+4}:{re+5}], v[{re}:{re+1}], v[{re}:{re+1}], v[52:53] neg_lo:[0,0,1] neg_hi:[0,0,1]
                v_pk_mul_f32 v[{im+4}:{im+5}], v[54:55], v[{im}:{im+1}]""")
            else: k("s_nop 1")
            if w == 0:
                k(f"""v_mul_f32 v52, v{im+4}, v{P+3}
                v_mul_f32 v53, v{im+4}, v{P+2}
                v_fma_f32 v{im+4}, v{re+4}, v{P+3}, v53
                v_fma_f32 v{re+4}, v{re+4}, v{P+2}, -v52""")
            c = 80+4*w; C = "0" if s == 0 else f"v[{c}:{c+3}]"
            k(f"""v_mfma_f32_16x16x4_f32 v[{c}:{c+3}], v{A}, v{re+1}, {C}
            v_mfma_f32_16x16x4_f32 v[{c}:{c+3}], v{A+1}, v{im+1}, v[{c}:{c+3}]""")
    k("""v_lshlrev_b32 v1, 3, v0
    v_sub_u32 v1, 2047, v1
    v_cmp_gt_u32 vcc, 2, v18
    s_nop 7""")
    for w in (0, 3, 1, 2):
        if w == 1: k("s_and_saveexec_b64 s[28:29], vcc")
        for r in range(4):
            k(f"ds_add_f32 v22, v{80+4*w+r} offset:{4 + 64*r + 512*w + (512 if w else 0)}")
    k("s_mov_b64 exec, s[28:29]")
    for e in range(9):
        k(f"""v_subrev_u32 v{24+e}, {e}, v1
        v_max_i32 v{34+e}, 0, v{24+e}
        v_cvt_f32_u32 v{34+e}, v{34+e}
        v_min_i32 v{24+e}, 127, v{24+e}""")
    for e in range(0, 9, 2):
        k(f"v_cvt_pk_bf16_f32 v{34+e}, v{34+e}, v{34+min(e+1,8)}")
        if e < 8: k(f"v_lshrrev_b32 v{35+e}, 16, v{34+e}")
        k(f"v_and_b32 v{34+e}, 0xffff, v{34+e}")
    for e in range(9):
        k(f"""v_subrev_u32 v{34+e}, 17024, v{34+e}
        v_max_i32 v{24+e}, v{24+e}, v{34+e}
        v_lshlrev_b32 v{24+e}, 2, v{24+e}""")
    k("s_waitcnt lgkmcnt(0)\ns_barrier")
    for e in range(9):
        k(f"ds_read_b32 v{24+e}, v{24+e} offset:4")
    k(f"""s_mul_i32 s20, s3, 8448
    s_add_u32 s20, s20, {KR}
    v_lshlrev_b32 v1, 4, v0
    s_waitcnt lgkmcnt(0)
    v_cvt_pk_bf16_f32 v8, v24, v25
    v_cvt_pk_bf16_f32 v9, v26, v27
    v_cvt_pk_bf16_f32 v10, v28, v29
    v_cvt_pk_bf16_f32 v11, v30, v31
    v_cvt_pk_bf16_f32 v12, v25, v26
    v_cvt_pk_bf16_f32 v13, v27, v28
    v_cvt_pk_bf16_f32 v14, v29, v30
    v_cvt_pk_bf16_f32 v15, v31, v32
    s_add_u32 s21, s20, 4224
    buffer_store_dwordx4 v[8:11], v1, s[24:27], s20 offen
    buffer_store_dwordx4 v[12:15], v1, s[24:27], s21 offen
    v_lshrrev_b32 v2, 3, v0
    v_mul_u32_u24 v2, 4224, v2
    v_and_b32 v3, 7, v0
    v_lshl_add_u32 v2, v3, 4, v2
    v_mov_b32 v16, 0
    v_mov_b32 v17, 0
    v_mov_b32 v18, 0
    v_mov_b32 v19, 0
    v_cmp_gt_u32 vcc, 16, v0
    s_and_saveexec_b64 s[28:29], vcc
    s_cbranch_execz prep_kgen_done
    buffer_store_dwordx4 v[16:19], v2, s[24:27], s20 offen offset:4095
    """)
    k.label("prep_kgen_done")
    footer(k)
    t = k.text()
    t = t.replace("v_lshl_add_u32 v2, v3, 4, v2\n    v_mov_b32 v16, 0", "v_lshl_add_u32 v2, v3, 4, v2\n    v_add_u32 v2, 4096, v2\n    v_mov_b32 v16, 0")
    t = t.replace(" offen offset:4095", " offen")
    return t, desc("prep_kernel", 96)
```

```python
from gen_common import *
def k1():
    k = K("prep_kernel"); header(k, 640)
    k("""s_cmp_ge_u32 s2, 128
    s_cbranch_scc1 prep_kgen
    s_load_dwordx2 s[4:5], s[0:1], 0
    s_load_dwordx2 s[6:7], s[0:1], 80
    s_load_dwordx2 s[8:9], s[0:1], 88
    s_load_dwordx2 s[10:11], s[0:1], 112
    s_waitcnt lgkmcnt(0)""")
    srd(k, 16, 10, WS_BYTES)
    k("""s_cmp_ge_u32 s2, 64
    s_cbranch_scc1 prep_m1""")
    srd(k, 12, 4, 0x200000)
    k(f"""s_lshl_b32 s20, s2, 15
    s_mov_b32 s21, 1024
    s_lshl_b32 s22, s2, 6
    s_add_u32 s22, s22, {XT0}
    s_mov_b32 s23, 0x100000
    s_mov_b32 s24, 0
    v_lshlrev_b32 v50, 12, v0
    s_branch prep_go""")
    k.label("prep_m1")
    k("""s_cmp_ge_u32 s2, 112
    s_cbranch_scc1 prep_m2""")
    srd(k, 12, 6, 0x180000)
    k(f"""s_sub_u32 s3, s2, 64
    s_lshr_b32 s25, s3, 4
    s_and_b32 s26, s3, 15
    s_mul_i32 s20, s26, 98304
    s_lshl_b32 s27, s25, 10
    s_add_u32 s20, s20, s27
    s_mov_b32 s21, 3072
    s_lshl_b32 s22, s25, 14
    s_lshl_b32 s27, s26, 10
    s_add_u32 s22, s22, s27
    s_add_u32 s22, s22, {WQT}
    s_mov_b32 s23, 786432
    s_mov_b32 s24, 1
    v_lshrrev_b32 v6, 4, v0
    v_mul_u32_u24 v6, 49152, v6
    v_and_b32 v7, 15, v0
    v_lshl_add_u32 v50, v7, 4, v6
    s_branch prep_go""")
    k.label("prep_m2")
    srd(k, 12, 8, 0x80000)
    k(f"""s_sub_u32 s3, s2, 112
    s_lshl_b32 s20, s3, 15
    s_mov_b32 s21, 1024
    s_lshl_b32 s22, s3, 11
    s_add_u32 s22, s22, {WOT}
    s_mov_b32 s23, 262144
    s_mov_b32 s24, 2
    v_lshrrev_b32 v6, 5, v0
    v_lshlrev_b32 v6, 15, v6
    v_and_b32 v7, 31, v0
    v_lshl_add_u32 v50, v7, 4, v6""")
    k.label("prep_go")
    k("""v_lshrrev_b32 v1, 3, v0
    v_and_b32 v2, 7, v0
    v_mul_lo_u32 v3, v1, s21
    v_lshl_add_u32 v3, v2, 4, v3
    v_mul_u32_u24 v4, 1088, v1
    v_lshl_add_u32 v4, v2, 4, v4""")
    for i in range(8):
        k(f"buffer_load_dwordx4 v[{8+4*i}:{11+4*i}], v3, s[12:15], s20 offen offset:{128*i}")
    k("""v_and_b32 v5, 15, v0
    v_lshrrev_b32 v5, 2, v5
    v_mul_u32_u24 v5, 1088, v5
    v_and_b32 v6, 0xf0, v0
    v_and_b32 v7, 3, v0
    v_lshl_add_u32 v6, v7, 2, v6
    v_lshl_add_u32 v5, v6, 1, v5""")
    for i in range(8):
        k(f"s_waitcnt vmcnt({7-i})\nds_write_b128 v4, v[{8+4*i}:{11+4*i}] offset:{128*i}")
    k("""s_cmp_lg_u32 s24, 0
    s_cbranch_scc1 prep_nostats
    v_mov_b32 v60, 0
    v_mov_b32 v61, 0""")
    for r in range(8, 40):
        unpack(k, 62, 63, r)
        k("""v_add_f32 v60, v60, v62
        v_fmac_f32 v61, v62, v62
        v_add_f32 v60, v60, v63
        v_fmac_f32 v61, v63, v63""")
    for dpp in ("quad_perm:[1,0,3,2]", "quad_perm:[2,3,0,1]", "row_half_mirror"):
        k(f"""s_nop 1
        v_add_f32_dpp v60, v60, v60 {dpp} row_mask:0xf bank_mask:0xf
        v_add_f32_dpp v61, v61, v61 {dpp} row_mask:0xf bank_mask:0xf""")
    k(f"""s_lshl_b32 s3, s2, 8
    s_add_u32 s3, s3, {ST0}
    v_lshlrev_b32 v62, 3, v1
    v_cmp_eq_u32 vcc, 0, v2
    s_and_saveexec_b64 s[28:29], vcc
    buffer_store_dwordx2 v[60:61], v62, s[16:19], s3 offen
    s_mov_b64 exec, s[28:29]""")
    k.label("prep_nostats")
    k("""s_waitcnt lgkmcnt(0)
    s_barrier
    s_add_u32 s25, s23, s22
    s_cmp_eq_u32 s24, 1
    s_cbranch_scc1 prep_perm
    s_cmp_eq_u32 s24, 2
    s_cbranch_scc1 prep_wo""")
    for variant in (0, 1, 2):
        if variant == 1: k.label("prep_perm")
        if variant == 2: k.label("prep_wo")
        for p in range(2):
            for i in range(8):
                if variant != 1: d = 8 + 16*p + 2*i
                else: d = 8 + 16*p + (4*i if i < 4 else 4*(i-4)+2)
                k(f"ds_read_b64_tr_b16 v[{d}:{d+1}], v5 offset:{4352*i+512*p}")
        for p in range(2):
            k(f"s_waitcnt lgkmcnt({8*(1-p)})")
            for j in range(4):
                k(f"buffer_store_dwordx4 v[{8+16*p+4*j}:{11+16*p+4*j}], v50, s[16:19], s{22 if p==0 else 25} offen offset:{(16,256,512)[variant]*j}")
        k("s_endpgm")
    k.label("prep_kgen")
    k("""s_sub_u32 s3, s2, 128
    s_load_dwordx4 s[4:7], s[0:1], 8
    s_load_dwordx4 s[8:11], s[0:1], 24
    s_load_dwordx4 s[12:15], s[0:1], 40
    s_load_dwordx2 s[16:17], s[0:1], 56
    s_load_dwordx2 s[18:19], s[0:1], 112
    v_and_b32 v1, 127, v0
    s_lshl_b32 s20, s3, 8
    v_lshl_add_u32 v2, v1, 1, s20
    s_lshl_b32 s21, s3, 1
    v_mov_b32 v3, s21
    s_waitcnt lgkmcnt(0)
    global_load_ushort v4, v2, s[4:5]
    global_load_ushort v5, v2, s[6:7]
    global_load_ushort v6, v2, s[8:9]
    global_load_ushort v7, v2, s[10:11]
    global_load_ushort v8, v2, s[12:13]
    global_load_ushort v9, v2, s[14:15]
    global_load_ushort v10, v3, s[16:17]""")
    srd(k, 24, 18, WS_BYTES)
    k("""s_waitcnt vmcnt(0)
    v_lshlrev_b32 v4, 16, v4
    v_lshlrev_b32 v5, 16, v5
    v_lshlrev_b32 v6, 16, v6
    v_lshlrev_b32 v7, 16, v7
    v_lshlrev_b32 v8, 16, v8
    v_lshlrev_b32 v9, 16, v9
    v_lshlrev_b32 v10, 16, v10
    v_mul_f32 v10, 0x3fb8aa3b, v10
    v_exp_f32 v10, v10
    s_nop 0
    v_cvt_pk_bf16_f32 v10, v10, v10
    v_lshlrev_b32 v10, 16, v10
    v_mul_f32 v12, v10, v4
    v_mul_f32 v12, 0x3fb8aa3b, v12
    v_mul_f32 v13, v10, v5
    v_mul_f32 v13, 0x3e22f983, v13
    v_mul_f32 v6, v10, v6
    v_mul_f32 v7, v10, v7
    v_mul_f32 v14, v8, v6
    v_fma_f32 v14, -v9, v7, v14
    v_mul_f32 v15, v8, v7
    v_fma_f32 v15, v9, v6, v15
    v_mul_f32 v16, 0x43800000, v12
    v_mul_f32 v17, 0x43800000, v13
    v_exp_f32 v16, v16
    v_fract_f32 v17, v17
    v_sub_f32 v21, 0, v15
    v_sin_f32 v19, v17
    v_cos_f32 v18, v17
    v_mov_b32 v20, v14
    v_sub_f32 v23, 0, v14
    v_mov_b32 v22, v21
    v_mul_f32 v15, v19, v16
    v_mul_f32 v14, v18, v16
    v_lshlrev_b32 v2, 5, v1
    ds_write_b128 v2, v[12:15] offset:13312
    ds_write_b128 v2, v[20:23] offset:13328
    v_and_b32 v2, 3, v0
    v_lshlrev_b32 v2, 2, v2
    v_mov_b32 v3, 0
    ds_write_b32 v2, v3
    v_lshrrev_b32 v16, 6, v0
    v_and_b32 v17, 15, v0
    v_bfe_u32 v18, v0, 4, 2
    v_cvt_f32_u32 v21, v17
    v_mul_f32 v20, 0x41800000, v21
    v_lshlrev_b32 v19, 10, v16
    v_lshl_add_u32 v19, v18, 5, v19
    v_lshlrev_b32 v22, 10, v18
    v_lshl_add_u32 v22, v17, 4, v22
    v_lshl_add_u32 v22, v16, 2, v22
    s_waitcnt lgkmcnt(0)
    s_barrier
    ds_read_b128 v[24:27], v19 offset:13312
    ds_read_b128 v[28:31], v19 offset:13328""")
    for s in range(8):
        P = 24 if s % 2 == 0 else 32
        Pn = 32 if s % 2 == 0 else 24
        if s < 7: k(f"ds_read_b128 v[{Pn}:{Pn+3}], v19 offset:{13312+128*(s+1)}\nds_read_b128 v[{Pn+4}:{Pn+7}], v19 offset:{13328+128*(s+1)}\ns_waitcnt lgkmcnt(2)")
        else: k("s_waitcnt lgkmcnt(0)")
        k(f"""v_pk_mul_f32 v[40:41], v[20:21], v[{P}:{P+1}] op_sel:[0,0] op_sel_hi:[1,0]
        v_pk_mul_f32 v[42:43], v[20:21], v[{P}:{P+1}] op_sel:[0,1] op_sel_hi:[1,1]
        v_exp_f32 v40, v40
        v_exp_f32 v41, v41
        v_fract_f32 v42, v42
        v_fract_f32 v43, v43
        v_sin_f32 v44, v42
        v_sin_f32 v45, v43
        v_cos_f32 v46, v42
        v_cos_f32 v47, v43
        s_nop 0
        v_pk_mul_f32 v[66:67], v[44:45], v[40:41]
        v_pk_mul_f32 v[64:65], v[46:47], v[40:41]""")
        for w in range(4):
            re, im, A = 64+4*w, 66+4*w, 56+2*w
            k(f"""v_pk_mul_f32 v[{A}:{A+1}], v[{P+4}:{P+5}], v[{re}:{re+1}] op_sel:[0,0] op_sel_hi:[1,0]
            v_pk_fma_f32 v[{A}:{A+1}], v[{P+6}:{P+7}], v[{im}:{im+1}], v[{A}:{A+1}] op_sel:[0,0,0] op_sel_hi:[1,0,1]""")
            if w < 3:
                k(f"""v_pk_mul_f32 v[52:53], v[{im}:{im+1}], v[{im}:{im+1}]
                v_pk_add_f32 v[54:55], v[{re}:{re+1}], v[{re}:{re+1}]
                v_pk_fma_f32 v[{re+4}:{re+5}], v[{re}:{re+1}], v[{re}:{re+1}], v[52:53] neg_lo:[0,0,1] neg_hi:[0,0,1]
                v_pk_mul_f32 v[{im+4}:{im+5}], v[54:55], v[{im}:{im+1}]""")
            else: k("s_nop 1")
            if w == 0:
                k(f"""v_mul_f32 v52, v{im+4}, v{P+3}
                v_mul_f32 v53, v{im+4}, v{P+2}
                v_fma_f32 v{im+4}, v{re+4}, v{P+3}, v53
                v_fma_f32 v{re+4}, v{re+4}, v{P+2}, -v52""")
            c = 80+4*w; C = "0" if s == 0 else f"v[{c}:{c+3}]"
            k(f"""v_mfma_f32_16x16x4_f32 v[{c}:{c+3}], v{A}, v{re+1}, {C}
            v_mfma_f32_16x16x4_f32 v[{c}:{c+3}], v{A+1}, v{im+1}, v[{c}:{c+3}]""")
    k("""v_lshlrev_b32 v1, 3, v0
    v_sub_u32 v1, 2047, v1
    v_cmp_gt_u32 vcc, 2, v18
    s_nop 7""")
    for w in (0, 3, 1, 2):
        if w == 1: k("s_and_saveexec_b64 s[28:29], vcc")
        for r in range(4):
            k(f"ds_write_b32 v22, v{80+4*w+r} offset:{4*(4 + 64*r + 512*w + (512 if w else 0))}")
    k("s_mov_b64 exec, s[28:29]")
    for e in range(9):
        k(f"""v_subrev_u32 v{24+e}, {e}, v1
        v_max_i32 v{34+e}, 0, v{24+e}
        v_cvt_f32_u32 v{34+e}, v{34+e}
        v_min_i32 v{24+e}, 127, v{24+e}""")
    for e in range(0, 9, 2):
        k(f"v_cvt_pk_bf16_f32 v{34+e}, v{34+e}, v{34+min(e+1,8)}")
        if e < 8: k(f"v_lshrrev_b32 v{35+e}, 16, v{34+e}")
        k(f"v_and_b32 v{34+e}, 0xffff, v{34+e}")
    for e in range(9):
        k(f"""v_subrev_u32 v{34+e}, 17024, v{34+e}
        v_max_i32 v{24+e}, v{24+e}, v{34+e}
        v_lshlrev_b32 v{24+e}, 4, v{24+e}""")
    k("s_waitcnt lgkmcnt(0)\ns_barrier")
    for e in range(9):
        k(f"ds_read_b128 v[{44+4*e}:{47+4*e}], v{24+e} offset:16")
    for e in range(9):
        k(f"s_waitcnt lgkmcnt({8-e})\nv_pk_add_f32 v[{44+4*e}:{45+4*e}], v[{44+4*e}:{45+4*e}], v[{46+4*e}:{47+4*e}]\nv_add_f32 v{24+e}, v{44+4*e}, v{45+4*e}")
    k(f"""s_mul_i32 s20, s3, 8448
    s_add_u32 s20, s20, {KR}
    v_lshlrev_b32 v1, 4, v0
    s_waitcnt lgkmcnt(0)
    v_cvt_pk_bf16_f32 v8, v24, v25
    v_cvt_pk_bf16_f32 v9, v26, v27
    v_cvt_pk_bf16_f32 v10, v28, v29
    v_cvt_pk_bf16_f32 v11, v30, v31
    v_cvt_pk_bf16_f32 v12, v25, v26
    v_cvt_pk_bf16_f32 v13, v27, v28
    v_cvt_pk_bf16_f32 v14, v29, v30
    v_cvt_pk_bf16_f32 v15, v31, v32
    s_add_u32 s21, s20, 4224
    buffer_store_dwordx4 v[8:11], v1, s[24:27], s20 offen
    buffer_store_dwordx4 v[12:15], v1, s[24:27], s21 offen
    v_lshrrev_b32 v2, 3, v0
    v_mul_u32_u24 v2, 4224, v2
    v_and_b32 v3, 7, v0
    v_lshl_add_u32 v2, v3, 4, v2
    v_mov_b32 v16, 0
    v_mov_b32 v17, 0
    v_mov_b32 v18, 0
    v_mov_b32 v19, 0
    v_cmp_gt_u32 vcc, 16, v0
    s_and_saveexec_b64 s[28:29], vcc
    s_cbranch_execz prep_kgen_done
    buffer_store_dwordx4 v[16:19], v2, s[24:27], s20 offen offset:4095
    """)
    k.label("prep_kgen_done")
    footer(k)
    t = k.text()
    t = t.replace("v_lshl_add_u32 v2, v3, 4, v2\n    v_mov_b32 v16, 0", "v_lshl_add_u32 v2, v3, 4, v2\n    v_add_u32 v2, 4096, v2\n    v_mov_b32 v16, 0")
    t = t.replace(" offen offset:4095", " offen")
    return t, desc("prep_kernel", 96)
```

```python
import sys
from gen_common import *
from gen_k1 import k1
from gen_k2 import k2, CONV_LDS
from gen_k3 import k3, QKV_LDS
from gen_k4 import k4, k5
hdr = open('interleave_layers__ssm_conv_s4__sliding_block__prompt.s.ref').read().split('; Override')[0]
ks = [k1(), k2(), k3(), k4("attn1_kernel", True), k5()]
launch = [("prep_kernel", 664, 34816), ("conv1_kernel", 256, CONV_LDS), ("qkv1_kernel", 256, QKV_LDS), ("attn1_kernel", 512, 0), ("oproj1_kernel", 256, 32768),
          ("conv2_kernel", 256, CONV_LDS), ("qkv2_kernel", 256, QKV_LDS), ("attn1_kernel", 512, 0), ("oproj2_kernel", 256, 32768)]
import os
rep = os.environ.get('REP')
if rep:
    nl = []
    for x in launch:
        nl.append(x)
        if x[0] == rep: nl.append(x)
    launch = nl
if len(sys.argv) > 2:
    n = int(sys.argv[2]); off = int(sys.argv[3], 0)
    launch = launch[:n] + [("dump_kernel", 512, 0)]
    k = K("dump_kernel"); header(k, 512)
    k("s_load_dwordx2 s[4:5], s[0:1], 112\ns_load_dwordx2 s[6:7], s[0:1], 96\ns_waitcnt lgkmcnt(0)")
    srd(k, 8, 4, WS_BYTES); srd(k, 12, 6, 0x200000)
    k(f"s_lshl_b32 s3, s2, 12\nv_lshl_add_u32 v1, v0, 4, s3\ns_mov_b32 s16, {off}\nbuffer_load_dwordx4 v[4:7], v1, s[8:11], s16 offen\ns_waitcnt vmcnt(0)\nbuffer_store_dwordx4 v[4:7], v1, s[12:15], 0 offen")
    footer(k); ks.append((k.text(), desc("dump_kernel", 16)))
pre = os.environ.get('PRE')
if pre: launch = launch + launch[:int(pre)]
px = os.environ.get('PX')
if px:
    t, d = k1()
    t = t.replace('prep_', 'prepx_'); d = d.replace('prep_', 'prepx_')
    if px == 'A': t = t.replace('s_cbranch_scc1 prepx_kgen\n', 's_cbranch_scc1 prepx_kernel_end\n')
    elif px == 'B': t = t.replace('s_cbranch_scc1 prepx_kgen\n', 's_cbranch_scc1 prepx_kgen\n    s_endpgm\n')
    elif px == 'C': t = t.replace('s_cmp_ge_u32 s2, 64\n    s_cbranch_scc1 prepx_m1', 's_cmp_ge_u32 s2, 64\n    s_cbranch_scc1 prepx_kernel_end').replace('s_cbranch_scc1 prepx_kgen\n', 's_cbranch_scc1 prepx_kernel_end\n')
    ks.append((t, d)); launch = launch + [("prepx_kernel", 640, 34816)]
pad = os.environ.get('PAD')
if pad:
    k = K("pad_kernel"); header(k, 256)
    if pad == 'A':
        for i in range(4096): k(f"v_add3_u32 v{1+i%8}, v{1+i%8}, v0, v0")
    elif pad == 'B':
        k("s_mov_b32 s3, 64"); k.label("pad_loop")
        for i in range(64): k(f"v_add3_u32 v{1+i%8}, v{1+i%8}, v0, v0")
        k("s_sub_u32 s3, s3, 1\ns_cmp_lg_u32 s3, 0\ns_cbranch_scc1 pad_loop")
    footer(k); ks.append((k.text(), desc("pad_kernel", 16)))
    launch = launch + [("pad_kernel", 256, 0)]
out = hdr
for n, g, l in launch: out += "; @launch kernel=%s grid=(%d,1,1) block=(256,1,1) lds=%d\n" % (n, g, l)
out += '.amdgcn_target "amdgcn-amd-amdhsa--gfx950"\n.text\n'
names = set(n for n, _, _ in launch)
for t, d in ks:
    if any(('.globl ' + n + '\n') in t for n in names): out += t + "\n"
out += '.section .rodata,"a"\n'
for t, d in ks:
    if any(('.globl ' + n + '\n') in t for n in names): out += ".p2align 6\n" + d + "\n"
open(sys.argv[1], 'w').write(out)
```

```python
from gen_common import *
QKV_LDS = 81920 + 512
STAT = 81920
def k3():
    name = "qkv1_kernel"; k = K(name)
    header2(k, 256, [("qkv1_kernel", [f"s_mov_b32 s40, {XT1}"]), ("qkv2_kernel", [f"s_mov_b32 s40, {XT3}"])])
    k("""s_load_dwordx2 s[4:5], s[0:1], 112
    s_waitcnt lgkmcnt(0)""")
    srd(k, 8, 4, WS_BYTES)
    k(f"""s_and_b32 s12, s2, 1
    s_lshl_b32 s12, s12, 2
    s_bfe_u32 s13, s2, 0x20003
    s_add_u32 s12, s12, s13
    s_bfe_u32 s13, s2, 0x20001
    s_lshl_b32 s13, s13, 3
    s_lshr_b32 s14, s2, 5
    s_add_u32 s13, s13, s14
    s_lshl_b32 s14, s13, 7
    s_add_u32 s14, s14, s40
    v_and_b32 v1, 7, v0
    v_lshrrev_b32 v2, 3, v0
    v_lshlrev_b32 v3, 12, v2
    v_lshl_add_u32 v3, v1, 4, v3
    s_mov_b32 s15, s14""")
    for i in range(16):
        k(f"buffer_load_dwordx4 v[{16+4*i}:{19+4*i}], v3, s[8:11], s15 offen")
        if i < 15: k("s_add_u32 s15, s15, 0x20000")
    k(f"""v_lshrrev_b32 v4, 6, v0
    v_mul_u32_u24 v6, 49152, v4
    v_and_b32 v5, 63, v0
    v_lshl_add_u32 v6, v5, 4, v6
    s_mul_i32 s17, s12, 196608
    s_add_u32 s17, s17, {WQT}
    s_add_u32 s18, s17, 16384
    s_add_u32 s19, s17, 32768""")
    for s in range(16):
        for p in range(3):
            a = 12*s + 4*p
            k(f"buffer_load_dwordx4 a[{a}:{a+3}], v6, s[8:11], s{17+p} offen offset:{1024*(s%4)}")
        if s % 4 == 3 and s < 15: k("s_add_u32 s17, s17, 4096\ns_add_u32 s18, s18, 4096\ns_add_u32 s19, s19, 4096")
    k(f"""v_and_b32 v5, 15, v0
    v_bfe_u32 v7, v0, 4, 2
    v_mul_u32_u24 v11, 160, v2
    v_lshl_add_u32 v11, v1, 4, v11
    v_add_u32 v12, 40960, v11
    v_lshrrev_b32 v13, 2, v5
    v_lshl_add_u32 v13, v7, 2, v13
    v_mul_u32_u24 v13, 160, v13
    v_and_b32 v14, 3, v0
    v_lshl_add_u32 v13, v14, 3, v13
    v_add_u32 v14, 40960, v13
    v_lshl_add_u32 v8, v4, 5, v13
    v_add_u32 v9, 40960, v8
    v_mov_b32 v180, 0x3f803f80
    v_mov_b32 v181, 0x3f803f80
    v_mov_b32 v182, 0x3f803f80
    v_mov_b32 v183, 0x3f803f80
    s_lshl_b32 s16, s12, 2
    v_add_u32 v4, s16, v4""")
    for i in range(8):
        k(f"s_waitcnt vmcnt({63-i})")
        k(f"ds_write_b128 v11, v[{16+4*i}:{19+4*i}] offset:{5120*i}")
    k(f"""s_lshl_b32 s22, s13, 11
    s_add_u32 s23, s22, {KB}
    s_add_u32 s24, s22, {VT}
    s_add_u32 s22, s22, {QB}
    v_lshlrev_b32 v15, 16, v4
    v_lshl_add_u32 v15, v5, 4, v15
    v_lshrrev_b32 v82, 1, v7
    v_and_b32 v83, 1, v7
    v_lshl_add_u32 v10, v83, 8, v15
    v_lshl_add_u32 v10, v82, 3, v10
    v_lshl_add_u32 v15, v82, 9, v15
    v_lshl_add_u32 v15, v83, 3, v15""")
    k("s_waitcnt lgkmcnt(0)\ns_barrier")
    def issue(s):
        b = 192 + 20*(s % 2)
        base, b2, so = ("v13", "v8", 5120*s) if s < 8 else ("v14", "v9", 5120*(s-8))
        for tq in range(4):
            k(f"ds_read_b64_tr_b16 v[{b+4*tq}:{b+4*tq+1}], {base} offset:{so+32*tq}")
            k(f"ds_read_b64_tr_b16 v[{b+4*tq+2}:{b+4*tq+3}], {base} offset:{so+32*tq+2560}")
        k(f"ds_read_b64_tr_b16 v[{b+16}:{b+17}], {b2} offset:{so}")
        k(f"ds_read_b64_tr_b16 v[{b+18}:{b+19}], {b2} offset:{so+2560}")
    issue(0)
    for s in range(16):
        if s == 7: k("s_waitcnt lgkmcnt(0)\ns_barrier")
        if s < 15: issue(s+1)
        k(f"s_waitcnt vmcnt({45-3*s}) lgkmcnt({10 if s < 15 else 0})")
        b = 192 + 20*(s % 2)
        if s == 3:
            for i in range(8, 16): k(f"ds_write_b128 v12, v[{16+4*i}:{19+4*i}] offset:{5120*(i-8)}")
        def C(c): return "0" if s == 0 else f"v[{c}:{c+3}]"
        k(f"v_mfma_f32_16x16x32_bf16 v[172:175], v[{b+16}:{b+19}], v[{b+16}:{b+19}], {C(172)}")
        k(f"v_mfma_f32_16x16x32_bf16 v[176:179], v[180:183], v[{b+16}:{b+19}], {C(176)}")
        for tq in range(4):
            for p in range(3):
                a = 12*s + 4*p; c = 112 + 16*p + 4*tq
                if p < 2: k(f"v_mfma_f32_16x16x32_bf16 v[{c}:{c+3}], a[{a}:{a+3}], v[{b+4*tq}:{b+4*tq+3}], {C(c)}")
                else: k(f"v_mfma_f32_16x16x32_bf16 v[{c}:{c+3}], v[{b+4*tq}:{b+4*tq+3}], a[{a}:{a+3}], {C(c)}")
        for p in range(3):
            a = 12*s + 4*p; c = 160 + 4*p
            if p < 2: k(f"v_mfma_f32_16x16x32_bf16 v[{c}:{c+3}], a[{a}:{a+3}], v[180:183], {C(c)}")
            else: k(f"v_mfma_f32_16x16x32_bf16 v[{c}:{c+3}], v[180:183], a[{a}:{a+3}], {C(c)}")
    k(f"""v_lshlrev_b32 v56, 2, v7
    v_sub_u32 v56, v5, v56
    v_cmp_eq_u32 vcc, 1, v56
    v_cmp_eq_u32 s[26:27], 2, v56
    v_cmp_eq_u32 s[28:29], 3, v56
    v_lshrrev_b32 v57, 6, v0
    v_lshl_add_u32 v57, v57, 4, v5
    v_lshlrev_b32 v57, 2, v57
    v_add_u32 v57, {STAT}, v57
    v_cndmask_b32 v172, v172, v173, vcc
    v_cndmask_b32 v172, v172, v174, s[26:27]
    v_cndmask_b32 v172, v172, v175, s[28:29]""")
    ln_finalize(k, 176, 172, 58, 59)
    k(f"""v_mul_f32 v176, v176, v172
    v_cmp_gt_u32 vcc, 4, v56
    s_and_saveexec_b64 s[20:21], vcc
    ds_write2_b32 v57, v172, v176 offset0:0 offset1:64
    s_mov_b64 exec, s[20:21]
    v_lshlrev_b32 v58, 2, v5
    v_add_u32 v58, {STAT}, v58
    v_lshlrev_b32 v59, 4, v7
    v_add_u32 v59, {STAT}, v59
    s_waitcnt lgkmcnt(0)
    s_barrier""")
    for tq in range(4):
        k(f"ds_read2_b32 v[{16+2*tq}:{17+2*tq}], v58 offset0:{16*tq} offset1:{64+16*tq}")
    for tq in range(4):
        k(f"ds_read_b128 v[{24+8*tq}:{27+8*tq}], v59 offset:{64*tq}")
        k(f"ds_read_b128 v[{28+8*tq}:{31+8*tq}], v59 offset:{256+64*tq}")
    k("s_waitcnt lgkmcnt(8)")
    for p in range(2):
        for tq in range(4):
            c = 112 + 16*p + 4*tq; R = 16 + 2*tq; cs = 160 + 4*p
            for h in range(2):
                k(f"""v_pk_mul_f32 v[60:61], v[{cs+2*h}:{cs+2*h+1}], v[{R}:{R+1}] op_sel:[0,1] op_sel_hi:[1,1]
                v_pk_fma_f32 v[{c+2*h}:{c+2*h+1}], v[{c+2*h}:{c+2*h+1}], v[{R}:{R+1}], v[60:61] op_sel:[0,0,0] op_sel_hi:[1,0,1] neg_lo:[0,0,1] neg_hi:[0,0,1]""")
            k(f"v_cvt_pk_bf16_f32 v{c}, v{c}, v{c+1}\nv_cvt_pk_bf16_f32 v{c+1}, v{c+2}, v{c+3}")
            k(f"buffer_store_dwordx2 v[{c}:{c+1}], v15, s[8:11], s{22+p} offen offset:{(tq//2)*1024+(tq%2)*256}")
    k("s_waitcnt lgkmcnt(0)")
    for tq in range(4):
        c = 144 + 4*tq; R = 24 + 8*tq
        for h in range(2):
            k(f"""v_pk_mul_f32 v[60:61], v[{R+4+2*h}:{R+5+2*h}], v[168:169] op_sel:[0,0] op_sel_hi:[1,0]
            v_pk_fma_f32 v[{c+2*h}:{c+2*h+1}], v[{c+2*h}:{c+2*h+1}], v[{R+2*h}:{R+2*h+1}], v[60:61] neg_lo:[0,0,1] neg_hi:[0,0,1]""")
        k(f"v_cvt_pk_bf16_f32 v{c}, v{c}, v{c+1}\nv_cvt_pk_bf16_f32 v{c+1}, v{c+2}, v{c+3}")
        k(f"buffer_store_dwordx2 v[{c}:{c+1}], v10, s[8:11], s24 offen offset:{512*tq}")
    footer(k)
    return k.text(), desc(name, 256+192, 256) + "\n.p2align 6\n" + desc("qkv2_kernel", 256+192, 256)
```

```python
from gen_common import *
def k4(name, zero_st):
    k = K(name); header(k, 512)
    k("""s_load_dwordx2 s[4:5], s[0:1], 112
    s_waitcnt lgkmcnt(0)""")
    srd(k, 8, 4, WS_BYTES)
    k(f"""s_lshr_b32 s12, s2, 3
    s_and_b32 s13, s2, 7
    v_lshrrev_b32 v1, 6, v0
    s_lshl_b32 s14, s13, 2
    v_add_u32 v1, s14, v1
    v_and_b32 v2, 31, v0
    v_bfe_u32 v3, v0, 5, 1
    v_and_b32 v4, 63, v0
    v_lshlrev_b32 v4, 4, v4
    v_lshl_add_u32 v4, v1, 16, v4
    s_lshl_b32 s15, s12, 10
    s_add_u32 s16, s15, {QB}
    buffer_load_dwordx4 v[8:11], v4, s[8:11], s16 offen""")
    for j in range(9):
        k(f"""s_add_i32 s17, s12, {j-8}
        s_max_i32 s17, s17, 0
        s_lshl_b32 s17, s17, 10
        s_add_u32 s17, s17, {KB}
        buffer_load_dwordx4 v[{12+4*j}:{15+4*j}], v4, s[8:11], s17 offen""")
    k("v_mov_b32 v7, 0xf149f2ca\nv_lshlrev_b32 v5, 2, v3")
    for r in range(16):
        k(f"""v_add_u32 v6, {8*(r//4)+r%4}, v5
        v_cmp_gt_u32 vcc, v6, v2
        s_nop 1
        v_cndmask_b32 v{48+r}, v7, 0, vcc
        v_cndmask_b32 v{64+r}, 0, v7, vcc""")
    for j in range(9):
        k(f"s_waitcnt vmcnt({8-j})")
        c = "v[48:63]" if j == 0 else ("v[64:79]" if j == 8 else "0")
        k(f"v_mfma_f32_32x32x16_bf16 v[{96+16*j}:{111+16*j}], v[{12+4*j}:{15+4*j}], v[8:11], {c}")
    k("""v_cmp_eq_u32 vcc, 16, v2
    v_cmp_eq_u32 s[20:21], 20, v2
    s_or_b64 vcc, vcc, s[20:21]
    v_mov_b32 v5, 0x3f803f80
    v_cndmask_b32 v5, 0, v5, vcc
    s_nop 7""")
    for r in range(72): k(f"v_mov_b32 v{12+r}, v5")
    k(f"""v_lshlrev_b32 v6, 16, v1
    v_lshl_add_u32 v6, v2, 4, v6
    v_lshl_add_u32 v6, v3, 8, v6
    v_cmp_gt_u32 vcc, 16, v2
    s_and_saveexec_b64 s[20:21], vcc""")
    for j in range(9):
        k(f"""s_add_i32 s17, s12, {j-8}
        s_max_i32 s17, s17, 0
        s_lshl_b32 s17, s17, 10
        s_add_u32 s17, s17, {VT}
        buffer_load_dwordx4 v[{12+8*j}:{15+8*j}], v6, s[8:11], s17 offen
        buffer_load_dwordx4 v[{16+8*j}:{19+8*j}], v6, s[8:11], s17 offen offset:512""")
    k("s_mov_b64 exec, s[20:21]")
    for j in range(8):
        k(f"s_cmp_ge_u32 s12, {8-j}\ns_cbranch_scc1 {name}_mk")
        for r in range(16): k(f"v_mov_b32 v{96+16*j+r}, v7")
    k.label(name + "_mk")
    k("v_max3_f32 v84, v96, v97, v98")
    r = 99
    while r + 1 < 240:
        k(f"v_max3_f32 v84, v84, v{r}, v{r+1}"); r += 2
    k("v_max_f32 v84, v84, v239")
    k("""v_mov_b32 v85, v84
    s_nop 1
    v_permlane32_swap_b32 v84, v85
    v_max_f32 v84, v84, v85
    s_mov_b32 s22, 0x3eb8aa3b
    v_mul_f32 v84, s22, v84""")
    for r in range(16): k(f"v_mov_b32 v{240+r}, 0")
    for j in range(9):
        b = 96 + 16*j
        for r in range(16):
            k(f"v_fma_f32 v{b+r}, v{b+r}, s22, -v84")
        for r in range(16):
            k(f"v_exp_f32 v{b+r}, v{b+r}")
        k("s_nop 0")
        for r in range(8):
            k(f"v_cvt_pk_bf16_f32 v{b+r}, v{b+2*r}, v{b+2*r+1}")
        k(f"s_waitcnt vmcnt({16-2*j})\ns_nop 0")
        k(f"v_mfma_f32_32x32x16_bf16 v[240:255], v[{12+8*j}:{15+8*j}], v[{b}:{b+3}], v[240:255]")
        k(f"v_mfma_f32_32x32x16_bf16 v[240:255], v[{16+8*j}:{19+8*j}], v[{b+4}:{b+7}], v[240:255]")
    k(f"""v_lshlrev_b32 v4, 4, v2
    v_lshl_add_u32 v4, v1, 10, v4
    v_lshl_add_u32 v4, v3, 3, v4
    s_lshl_b32 s15, s12, 15
    s_add_u32 s16, s15, {OB}
    s_nop 7
    v_rcp_f32 v84, v248
    s_nop 0""")
    for r in range(8): k(f"v_mul_f32 v{240+r}, v{240+r}, v84")
    k("""v_cvt_pk_bf16_f32 v240, v240, v241
    v_cvt_pk_bf16_f32 v241, v242, v243
    v_cvt_pk_bf16_f32 v242, v244, v245
    v_cvt_pk_bf16_f32 v243, v246, v247
    buffer_store_dwordx2 v[240:241], v4, s[8:11], s16 offen
    buffer_store_dwordx2 v[242:243], v4, s[8:11], s16 offen offset:512""")
    if zero_st:
        k(f"""s_cmp_ge_u32 s2, 16
        s_cbranch_scc1 {name}_nz
        v_mov_b32 v5, 0
        s_lshl_b32 s17, s2, 10
        s_add_u32 s17, s17, {ST1}
        v_lshlrev_b32 v6, 2, v0
        buffer_store_dword v5, v6, s[8:11], s17 offen""")
        k.label(name + "_nz")
    footer(k)
    return k.text(), desc(name, 256)

def k5():
    name = "oproj1_kernel"; k = K(name)
    header2(k, 256, [("oproj1_kernel", [f"s_mov_b32 s40, {XT1}", "s_mov_b32 s42, 0"]), ("oproj2_kernel", [f"s_mov_b32 s40, {XT3}", "s_mov_b32 s42, 1"])])
    k("""s_load_dwordx2 s[4:5], s[0:1], 112
    s_load_dwordx2 s[6:7], s[0:1], 96
    s_waitcnt lgkmcnt(0)""")
    srd(k, 8, 4, WS_BYTES)
    srd(k, 24, 6, 0x200000)
    k(f"""s_and_b32 s12, s2, 1
    s_lshl_b32 s12, s12, 2
    s_bfe_u32 s13, s2, 0x20003
    s_add_u32 s12, s12, s13
    s_bfe_u32 s13, s2, 0x20001
    s_lshl_b32 s13, s13, 3
    s_lshr_b32 s14, s2, 5
    s_add_u32 s13, s13, s14
    v_and_b32 v1, 31, v0
    v_bfe_u32 v2, v0, 5, 1
    v_bfe_u32 v3, v0, 6, 1
    v_lshrrev_b32 v4, 7, v0
    v_lshl_add_u32 v5, v3, 5, v1
    v_lshl_add_u32 v6, v4, 5, v1
    v_and_b32 v7, 63, v0
    v_lshlrev_b32 v7, 4, v7
    v_lshl_add_u32 v8, v4, 15, v7
    v_lshl_add_u32 v7, v3, 15, v7
    s_lshl_b32 s14, s12, 16
    s_add_u32 s14, s14, {WOT}
    s_lshl_b32 s15, s13, 16
    s_add_u32 s15, s15, {OB}""")
    k(f"""v_lshlrev_b32 v9, 5, v3
    v_lshl_add_u32 v9, v2, 2, v9
    v_lshlrev_b32 v9, 12, v9
    v_lshl_add_u32 v9, v6, 1, v9
    s_lshl_b32 s16, s12, 18
    s_lshl_b32 s17, s13, 7
    s_add_u32 s16, s16, s17
    s_add_u32 s17, s16, {XT2}
    s_add_u32 s16, s16, s40""")
    for r in range(16):
        k(f"s_add_u32 s18, s16, {(8*(r//4)+r%4)*4096}\nbuffer_load_ushort v{32+r}, v9, s[8:11], s18 offen")
    for s in range(32):
        k(f"buffer_load_dwordx4 a[{4*s}:{4*s+3}], v7, s[8:11], s14 offen offset:{1024*(s%4)}")
        k(f"buffer_load_dwordx4 v[{64+4*s}:{67+4*s}], v8, s[8:11], s15 offen offset:{1024*(s%4)}")
        if s % 4 == 3 and s < 31: k("s_add_u32 s14, s14, 4096\ns_add_u32 s15, s15, 4096")
    for r in range(16): k(f"v_mov_b32 v{16+r}, 0")
    for s in range(32):
        k(f"s_waitcnt vmcnt({62-2*s})")
        k(f"v_mfma_f32_32x32x16_bf16 v[16:31], a[{4*s}:{4*s+3}], v[{64+4*s}:{67+4*s}], v[16:31]")
    k("s_waitcnt vmcnt(0)\ns_nop 7\ns_nop 3\nv_mov_b32 v50, 0\nv_mov_b32 v51, 0")
    for r in range(0, 16, 2):
        k(f"""v_cvt_pk_bf16_f32 v48, v{16+r}, v{17+r}
        v_lshlrev_b32 v{16+r}, 16, v48
        v_and_b32 v{17+r}, 0xffff0000, v48
        v_lshlrev_b32 v{32+r}, 16, v{32+r}
        v_lshlrev_b32 v{33+r}, 16, v{33+r}
        v_add_f32 v{16+r}, v{16+r}, v{32+r}
        v_add_f32 v{17+r}, v{17+r}, v{33+r}
        v_cvt_pk_bf16_f32 v{32+r//2}, v{16+r}, v{17+r}""")
    k('s_cmp_eq_u32 s42, 0\ns_cbranch_scc1 oproj_mid')
    if True:
        k("""v_lshlrev_b32 v10, 10, v6
        v_lshl_add_u32 v10, v3, 6, v10
        v_lshl_add_u32 v10, v2, 3, v10
        s_lshl_b32 s18, s13, 16
        s_lshl_b32 s19, s12, 7
        s_add_u32 s18, s18, s19""")
        for q in range(4):
            k(f"buffer_store_dwordx2 v[{32+2*q}:{33+2*q}], v10, s[24:27], s18 offen offset:{16*q}")
        k('s_endpgm'); k.label('oproj_mid')
        for r in range(0, 16, 2):
            unpack(k, 48, 49, 32+r//2)
            k(f"""v_add_f32 v50, v50, v48
            v_fmac_f32 v51, v48, v48
            v_add_f32 v50, v50, v49
            v_fmac_f32 v51, v49, v49
            s_add_u32 s18, s17, {(8*(r//4)+r%4)*4096}
            s_add_u32 s19, s17, {(8*(r//4)+r%4+1)*4096}
            buffer_store_short v{32+r//2}, v9, s[8:11], s18 offen
            buffer_store_short_d16_hi v{32+r//2}, v9, s[8:11], s19 offen""")
        k(f"""v_mov_b32 v52, v50
        v_mov_b32 v53, v51
        s_nop 1
        v_permlane32_swap_b32 v50, v52
        v_permlane32_swap_b32 v51, v53
        v_add_f32 v50, v50, v52
        v_add_f32 v51, v51, v53
        v_cndmask_b32 v50, v50, v51, vcc""".replace("v_cndmask_b32 v50, v50, v51, vcc", "v_cmp_eq_u32 vcc, 1, v2\ns_nop 1\nv_cndmask_b32 v50, v50, v51, vcc"))
        k(f"""v_lshlrev_b32 v10, 3, v6
        v_lshl_add_u32 v10, v2, 2, v10
        s_lshl_b32 s18, s13, 9
        s_add_u32 s18, s18, {ST1}
        buffer_atomic_add_f32 v50, v10, s[8:11], s18 offen""")
    footer(k)
    return k.text(), desc(name, 192+128, 192) + "\n.p2align 6\n" + desc("oproj2_kernel", 192+128, 192)
```

```python
from gen_common import *
KC_CH = 34304; KC_CP = 4288; UB = 68608; U_CH = 7680; RED = 83968
CONV_LDS = RED + 16384
def k2():
    name = "conv1_kernel"; k = K(name)
    header2(k, 256, [("conv1_kernel", [f"s_mov_b32 s40, {XT0}", f"s_mov_b32 s41, {XT1}", f"s_mov_b32 s16, {ST0}"]), ("conv2_kernel", [f"s_mov_b32 s40, {XT2}", f"s_mov_b32 s41, {XT3}", f"s_mov_b32 s16, {ST1}"])])
    k("""s_load_dwordx2 s[4:5], s[0:1], 112
    s_load_dwordx2 s[6:7], s[0:1], 64
    s_and_b32 s3, s2, 1
    s_lshl_b32 s3, s3, 7
    s_bfe_u32 s12, s2, 0x20001
    s_add_u32 s3, s3, s12
    s_lshr_b32 s12, s2, 3
    s_lshl_b32 s12, s12, 2
    s_add_u32 s2, s3, s12
    s_waitcnt lgkmcnt(0)""")
    srd(k, 8, 4, WS_BYTES)
    k(f"""s_mul_i32 s12, s2, 16896
    s_add_u32 s12, s12, {KR}
    s_lshl_b32 s13, s2, 13
    s_add_u32 s14, s13, s41
    s_add_u32 s13, s13, s40
    s_add_u32 s15, s13, 4096
    v_lshlrev_b32 v1, 4, v0
    v_lshlrev_b32 v2, 6, v0
    buffer_load_dwordx4 v[100:103], v1, s[8:11], s13 offen
    buffer_load_dwordx4 v[104:107], v1, s[8:11], s15 offen
    buffer_load_dwordx4 v[108:111], v2, s[8:11], s16 offen
    buffer_load_dwordx4 v[112:115], v2, s[8:11], s16 offen offset:16
    buffer_load_dwordx4 v[116:119], v2, s[8:11], s16 offen offset:32
    buffer_load_dwordx4 v[120:123], v2, s[8:11], s16 offen offset:48""")
    for ch in range(2):
        for r in range(8):
            off = ch*8448 + (r % 2)*4224 + 2*(r - r % 2)
            idx = ch*8 + r
            k(f"s_add_u32 s17, s12, {off}\nbuffer_load_dwordx4 v[{4+4*idx}:{7+4*idx}], v1, s[8:11], s17 offen")
    k("""v_lshrrev_b32 v70, 7, v0
    s_lshl_b32 s17, s2, 2
    v_lshl_add_u32 v71, v70, 1, s17
    global_load_ushort v72, v71, s[6:7]""")
    k(f"""v_mov_b32 v124, 0
    v_mov_b32 v125, 0
    v_mov_b32 v126, 0
    v_mov_b32 v127, 0
    v_cmp_gt_u32 vcc, 155, v0
    s_and_saveexec_b64 s[20:21], vcc
    ds_write_b128 v1, v[124:127] offset:{UB-65536+65536 if False else 0}+0
    s_mov_b64 exec, s[20:21]""".replace("offset:0+0", "offset:0"))
    k.L.pop(); k.L.pop();
    k(f"""v_add_u32 v73, {UB}, v1
    ds_write_b128 v73, v[124:127]
    ds_write_b128 v73, v[124:127] offset:{U_CH}
    s_mov_b64 exec, s[20:21]
    v_lshrrev_b32 v73, 2, v0
    v_mul_u32_u24 v73, {KC_CP}, v73
    v_and_b32 v74, 3, v0
    v_lshl_add_u32 v73, v74, 4, v73
    v_cmp_gt_u32 vcc, 64, v0
    s_and_saveexec_b64 s[20:21], vcc
    ds_write_b128 v73, v[124:127] offset:4096
    s_mov_b64 exec, s[20:21]""")
    k("s_waitcnt vmcnt(17)")
    for j in range(8):
        ln_finalize(k, 108+2*j, 109+2*j, 124, 125)
    for ch in range(2):
        for jj in range(4):
            src = 100 + 4*ch + jj
            unpack(k, 124, 125, src)
            m0, r0, m1, r1 = 108+4*jj, 109+4*jj, 110+4*jj, 111+4*jj
            k(f"""v_sub_f32 v124, v124, v{m0}
            v_sub_f32 v125, v125, v{m1}
            v_cvt_pk_bf16_f32 v126, v124, v125
            v_lshlrev_b32 v124, 16, v126
            v_and_b32 v125, 0xffff0000, v126
            v_mul_f32 v124, v124, v{r0}
            v_mul_f32 v125, v125, v{r1}
            v_cvt_pk_bf16_f32 v{src}, v124, v125""")
    k(f"""v_lshrrev_b32 v73, 2, v0
    v_mul_u32_u24 v73, 80, v73
    v_lshl_add_u32 v73, v74, 4, v73
    v_add_u32 v73, {UB + 31*80}, v73
    ds_write_b128 v73, v[100:103]
    ds_write_b128 v73, v[104:107] offset:{U_CH}""")
    for idx in range(16):
        ch, r = idx // 8, idx % 8
        k(f"s_waitcnt vmcnt({16-idx})")
        off = ch*KC_CH + r*KC_CP
        if off < 65536: k(f"ds_write_b128 v1, v[{4+4*idx}:{7+4*idx}] offset:{off}")
        else: raise Exception
    k(f"""v_and_b32 v75, 31, v0
    v_bfe_u32 v76, v0, 5, 1
    v_bfe_u32 v77, v0, 6, 1
    v_sub_u32 v78, 7, v75
    v_and_b32 v78, 7, v78
    v_mul_u32_u24 v79, {KC_CH}, v70
    v_mul_u32_u24 v80, {KC_CP}, v78
    v_add_u32 v79, v79, v80
    v_lshlrev_b32 v80, 3, v76
    v_add_u32 v80, 2047, v80
    v_sub_u32 v80, v80, v75
    v_sub_u32 v80, v80, v78
    v_lshl_add_u32 v79, v80, 1, v79
    v_lshlrev_b32 v80, 6, v77
    v_sub_u32 v79, v79, v80
    v_subrev_u32 v79, {64*62}, v79
    v_mul_u32_u24 v80, {U_CH}, v70
    v_sub_u32 v81, v75, v77
    v_mul_i32_i24 v81, 80, v81
    v_add3_u32 v80, v80, v81, {0})""".replace(", {0})", ", 0").replace(", 0)", ", 0"))
    k(f"""v_lshl_add_u32 v80, v76, 4, v80
    v_add_u32 v80, {UB}, v80""")
    for r in range(32): k(f"v_mov_b32 v{128+r}, 0")
    k("s_waitcnt lgkmcnt(0)\ns_barrier")
    def issue(m):
        b = 160 + 24*(m % 3); n = 0
        for c in range(2):
            k(f"ds_read_b128 v[{b+4*c}:{b+4*c+3}], v79 offset:{64*(62-2*m)+32*c}"); n += 1
        for c in range(2):
            k(f"ds_read_b128 v[{b+16+4*c}:{b+16+4*c+3}], v80 offset:{(63-2*m)*80+32*c}"); n += 1
        if m <= 15:
            for c in range(2):
                k(f"ds_read_b128 v[{b+8+4*c}:{b+8+4*c+3}], v80 offset:{(31-2*m)*80+32*c}"); n += 1
        return n
    cnt = {}
    cnt[0] = issue(0); cnt[1] = issue(1)
    for m in range(32):
        if m + 2 < 32: cnt[m+2] = issue(m+2)
        pend = sum(cnt[x] for x in (m+1, m+2) if x < 32)
        k(f"s_waitcnt lgkmcnt({pend})")
        b = 160 + 24*(m % 3)
        for c in range(2):
            k(f"v_mfma_f32_32x32x16_bf16 v[144:159], v[{b+4*c}:{b+4*c+3}], v[{b+16+4*c}:{b+16+4*c+3}], v[144:159]")
            if m <= 15:
                k(f"v_mfma_f32_32x32x16_bf16 v[128:143], v[{b+4*c}:{b+4*c+3}], v[{b+8+4*c}:{b+8+4*c+3}], v[128:143]")
    k(f"""v_and_b32 v82, 63, v0
    v_lshlrev_b32 v82, 4, v82
    v_lshl_add_u32 v82, v70, 13, v82
    v_add_u32 v82, {RED}, v82
    v_lshl_add_u32 v83, v77, 12, v82
    v_xor_b32 v84, 4096, v83
    v_lshlrev_b32 v85, 5, v77
    v_add_u32 v85, v85, v75
    v_lshlrev_b32 v86, 6, v85
    v_lshl_add_u32 v86, v76, 3, v86
    v_lshl_add_u32 v86, v70, 12, v86
    v_add_u32 v87, 31, v85
    v_mul_u32_u24 v87, 80, v87
    v_lshl_add_u32 v87, v76, 3, v87
    v_mul_u32_u24 v88, {U_CH}, v70
    v_add3_u32 v87, v87, v88, {UB}""".replace(f"v_add3_u32 v87, v87, v88, {UB}", f"v_add_u32 v87, v87, v88\nv_add_u32 v87, {UB}, v87"))
    for q in range(4):
        k(f"buffer_load_dwordx2 v[{4+2*q}:{5+2*q}], v86, s[8:11], s13 offen offset:{16*q}")
        k(f"ds_read_b64 v[{12+2*q}:{13+2*q}], v87 offset:{16*q}")
    k("""v_cmp_eq_u32 vcc, 0, v77
    s_nop 7
    s_nop 3""")
    for r in range(16):
        k(f"v_cndmask_b32 v{20+r}, v{128+r}, v{144+r}, vcc\nv_cndmask_b32 v{36+r}, v{144+r}, v{128+r}, vcc")
    for q in range(4):
        k(f"ds_write_b128 v84, v[{20+4*q}:{23+4*q}] offset:{1024*q}")
    k("s_waitcnt lgkmcnt(0)\ns_barrier")
    for q in range(4):
        k(f"ds_read_b128 v[{20+4*q}:{23+4*q}], v83 offset:{1024*q}")
    k("s_waitcnt vmcnt(0) lgkmcnt(0)\nv_lshlrev_b32 v72, 16, v72")
    for q in range(4):
        for h in range(2):
            y0, y1 = 36+4*q+2*h, 37+4*q+2*h
            k(f"""v_add_f32 v{y0}, v{y0}, v{20+4*q+2*h}
            v_add_f32 v{y1}, v{y1}, v{21+4*q+2*h}
            v_cvt_pk_bf16_f32 v60, v{y0}, v{y1}""")
            unpack(k, 61, 62, 12+2*q+h)
            k("""v_mul_f32 v61, v61, v72
            v_mul_f32 v62, v62, v72
            v_cvt_pk_bf16_f32 v63, v61, v62""")
            unpack(k, 61, 62, 63); unpack(k, 64, 65, 60)
            k("""v_add_f32 v61, v61, v64
            v_add_f32 v62, v62, v65
            v_cvt_pk_bf16_f32 v63, v61, v62""")
            unpack(k, 61, 62, 63); unpack(k, 64, 65, 4+2*q+h)
            k(f"""v_add_f32 v61, v61, v64
            v_add_f32 v62, v62, v65
            v_cvt_pk_bf16_f32 v{52+2*q+h}, v61, v62""")
        k(f"buffer_store_dwordx2 v[{52+2*q}:{53+2*q}], v86, s[8:11], s14 offen offset:{16*q}")
    footer(k)
    return k.text(), desc(name, 232) + "\n.p2align 6\n" + desc("conv2_kernel", 232)
```

```python
from gen_common import *
def k4(name, zero_st):
    k = K(name); header(k, 512)
    k("""s_load_dwordx2 s[4:5], s[0:1], 112
    s_waitcnt lgkmcnt(0)""")
    srd(k, 8, 4, WS_BYTES)
    k(f"""s_and_b32 s13, s2, 1
    s_lshl_b32 s13, s13, 2
    s_bfe_u32 s12, s2, 0x20003
    s_add_u32 s13, s13, s12
    s_bfe_u32 s12, s2, 0x20001
    s_lshl_b32 s12, s12, 4
    s_lshr_b32 s14, s2, 5
    s_add_u32 s12, s12, s14
    v_lshrrev_b32 v1, 6, v0
    s_lshl_b32 s14, s13, 2
    v_add_u32 v1, s14, v1
    v_and_b32 v2, 31, v0
    v_bfe_u32 v3, v0, 5, 1
    v_and_b32 v4, 63, v0
    v_lshlrev_b32 v4, 4, v4
    v_lshl_add_u32 v4, v1, 16, v4
    s_lshl_b32 s15, s12, 10
    s_add_u32 s16, s15, {QB}
    buffer_load_dwordx4 v[8:11], v4, s[8:11], s16 offen""")
    for j in range(9):
        k(f"""s_add_i32 s17, s12, {j-8}
        s_max_i32 s17, s17, 0
        s_lshl_b32 s17, s17, 10
        s_add_u32 s17, s17, {KB}
        buffer_load_dwordx4 v[{12+4*j}:{15+4*j}], v4, s[8:11], s17 offen""")
    k("v_mov_b32 v7, 0xf149f2ca\nv_lshlrev_b32 v5, 2, v3")
    for r in range(16):
        k(f"""v_add_u32 v6, {8*(r//4)+r%4}, v5
        v_cmp_gt_u32 vcc, v6, v2
        s_nop 1
        v_cndmask_b32 v{48+r}, v7, 0, vcc
        v_cndmask_b32 v{64+r}, 0, v7, vcc""")
    for j in range(9):
        k(f"s_waitcnt vmcnt({8-j})")
        c = "v[48:63]" if j == 0 else ("v[64:79]" if j == 8 else "0")
        k(f"v_mfma_f32_32x32x16_bf16 v[{96+16*j}:{111+16*j}], v[{12+4*j}:{15+4*j}], v[8:11], {c}")
    k("""v_cmp_eq_u32 vcc, 16, v2
    v_cmp_eq_u32 s[20:21], 20, v2
    s_or_b64 vcc, vcc, s[20:21]
    v_mov_b32 v5, 0x3f803f80
    v_cndmask_b32 v5, 0, v5, vcc
    s_nop 7""")
    for r in range(72): k(f"v_mov_b32 v{12+r}, v5")
    k(f"""v_lshlrev_b32 v6, 16, v1
    v_lshl_add_u32 v6, v2, 4, v6
    v_lshl_add_u32 v6, v3, 8, v6
    v_cmp_gt_u32 vcc, 16, v2
    s_and_saveexec_b64 s[20:21], vcc""")
    for j in range(9):
        k(f"""s_add_i32 s17, s12, {j-8}
        s_max_i32 s17, s17, 0
        s_lshl_b32 s17, s17, 10
        s_add_u32 s17, s17, {VT}
        buffer_load_dwordx4 v[{12+8*j}:{15+8*j}], v6, s[8:11], s17 offen
        buffer_load_dwordx4 v[{16+8*j}:{19+8*j}], v6, s[8:11], s17 offen offset:512""")
    k("s_mov_b64 exec, s[20:21]")
    for j in range(8):
        k(f"s_cmp_ge_u32 s12, {8-j}\ns_cbranch_scc1 {name}_mk")
        for r in range(16): k(f"v_mov_b32 v{96+16*j+r}, v7")
    k.label(name + "_mk")
    k("v_max3_f32 v84, v96, v97, v98")
    r = 99
    while r + 1 < 240:
        k(f"v_max3_f32 v84, v84, v{r}, v{r+1}"); r += 2
    k("v_max_f32 v84, v84, v239")
    k("""v_mov_b32 v85, v84
    s_nop 1
    v_permlane32_swap_b32 v84, v85
    v_max_f32 v84, v84, v85
    s_mov_b32 s22, 0x3eb8aa3b
    v_mul_f32 v84, s22, v84""")
    for r in range(16): k(f"v_mov_b32 v{240+r}, 0")
    for j in range(9):
        b = 96 + 16*j
        for r in range(16):
            k(f"v_fma_f32 v{b+r}, v{b+r}, s22, -v84")
        for r in range(16):
            k(f"v_exp_f32 v{b+r}, v{b+r}")
        k("s_nop 0")
        for r in range(8):
            k(f"v_cvt_pk_bf16_f32 v{b+r}, v{b+2*r}, v{b+2*r+1}")
        k(f"s_waitcnt vmcnt({16-2*j})\ns_nop 0")
        k(f"v_mfma_f32_32x32x16_bf16 v[240:255], v[{12+8*j}:{15+8*j}], v[{b}:{b+3}], v[240:255]")
        k(f"v_mfma_f32_32x32x16_bf16 v[240:255], v[{16+8*j}:{19+8*j}], v[{b+4}:{b+7}], v[240:255]")
    k(f"""v_lshlrev_b32 v4, 4, v2
    v_lshl_add_u32 v4, v1, 10, v4
    v_lshl_add_u32 v4, v3, 3, v4
    s_lshl_b32 s15, s12, 15
    s_add_u32 s16, s15, {OB}
    s_nop 7
    v_rcp_f32 v84, v248
    s_nop 0""")
    for r in range(8): k(f"v_mul_f32 v{240+r}, v{240+r}, v84")
    k("""v_cvt_pk_bf16_f32 v240, v240, v241
    v_cvt_pk_bf16_f32 v241, v242, v243
    v_cvt_pk_bf16_f32 v242, v244, v245
    v_cvt_pk_bf16_f32 v243, v246, v247
    buffer_store_dwordx2 v[240:241], v4, s[8:11], s16 offen
    buffer_store_dwordx2 v[242:243], v4, s[8:11], s16 offen offset:512""")
    if zero_st:
        k(f"""s_cmp_ge_u32 s2, 16
        s_cbranch_scc1 {name}_nz
        v_mov_b32 v5, 0
        s_lshl_b32 s17, s2, 10
        s_add_u32 s17, s17, {ST1}
        v_lshlrev_b32 v6, 2, v0
        buffer_store_dword v5, v6, s[8:11], s17 offen""")
        k.label(name + "_nz")
    footer(k)
    return k.text(), desc(name, 256)

def k5():
    name = "oproj1_kernel"; k = K(name)
    header2(k, 256, [("oproj1_kernel", [f"s_mov_b32 s40, {XT1}", "s_mov_b32 s42, 0"]), ("oproj2_kernel", [f"s_mov_b32 s40, {XT3}", "s_mov_b32 s42, 1"])])
    k("""s_load_dwordx2 s[4:5], s[0:1], 112
    s_load_dwordx2 s[6:7], s[0:1], 96
    s_waitcnt lgkmcnt(0)""")
    srd(k, 8, 4, WS_BYTES)
    srd(k, 24, 6, 0x200000)
    k(f"""s_and_b32 s12, s2, 1
    s_lshl_b32 s12, s12, 2
    s_bfe_u32 s13, s2, 0x20003
    s_add_u32 s12, s12, s13
    s_bfe_u32 s13, s2, 0x20001
    s_lshl_b32 s13, s13, 3
    s_lshr_b32 s14, s2, 5
    s_add_u32 s13, s13, s14
    v_and_b32 v1, 31, v0
    v_bfe_u32 v2, v0, 5, 1
    v_bfe_u32 v3, v0, 6, 1
    v_lshrrev_b32 v4, 7, v0
    v_lshl_add_u32 v5, v3, 5, v1
    v_lshl_add_u32 v6, v4, 5, v1
    v_and_b32 v7, 63, v0
    v_lshlrev_b32 v7, 4, v7
    v_lshl_add_u32 v8, v4, 15, v7
    v_lshl_add_u32 v7, v3, 15, v7
    s_lshl_b32 s14, s12, 16
    s_add_u32 s14, s14, {WOT}
    s_lshl_b32 s15, s13, 16
    s_add_u32 s15, s15, {OB}""")
    k(f"""v_lshlrev_b32 v9, 5, v3
    v_lshl_add_u32 v9, v2, 2, v9
    v_lshlrev_b32 v9, 12, v9
    v_lshl_add_u32 v9, v6, 1, v9
    s_lshl_b32 s16, s12, 18
    s_lshl_b32 s17, s13, 7
    s_add_u32 s16, s16, s17
    s_add_u32 s17, s16, {XT2}
    s_add_u32 s16, s16, s40""")
    for r in range(16):
        k(f"s_add_u32 s18, s16, {(8*(r//4)+r%4)*4096}\nbuffer_load_ushort v{32+r}, v9, s[8:11], s18 offen")
    for s in range(32):
        k(f"buffer_load_dwordx4 a[{4*s}:{4*s+3}], v7, s[8:11], s14 offen offset:{1024*(s%4)}")
        k(f"buffer_load_dwordx4 v[{64+4*s}:{67+4*s}], v8, s[8:11], s15 offen offset:{1024*(s%4)}")
        if s % 4 == 3 and s < 31: k("s_add_u32 s14, s14, 4096\ns_add_u32 s15, s15, 4096")
    for r in range(16): k(f"v_mov_b32 v{16+r}, 0")
    for s in range(32):
        k(f"s_waitcnt vmcnt({62-2*s})")
        k(f"v_mfma_f32_32x32x16_bf16 v[16:31], a[{4*s}:{4*s+3}], v[{64+4*s}:{67+4*s}], v[16:31]")
    k("s_waitcnt vmcnt(0)\ns_nop 7\ns_nop 3\nv_mov_b32 v50, 0\nv_mov_b32 v51, 0")
    for r in range(0, 16, 2):
        k(f"""v_cvt_pk_bf16_f32 v48, v{16+r}, v{17+r}
        v_lshlrev_b32 v{16+r}, 16, v48
        v_and_b32 v{17+r}, 0xffff0000, v48
        v_lshlrev_b32 v{32+r}, 16, v{32+r}
        v_lshlrev_b32 v{33+r}, 16, v{33+r}
        v_add_f32 v{16+r}, v{16+r}, v{32+r}
        v_add_f32 v{17+r}, v{17+r}, v{33+r}
        v_cvt_pk_bf16_f32 v{32+r//2}, v{16+r}, v{17+r}""")
    k('s_cmp_eq_u32 s42, 0\ns_cbranch_scc1 oproj_mid')
    if True:
        k("""v_lshlrev_b32 v10, 10, v6
        v_lshl_add_u32 v10, v3, 6, v10
        v_lshl_add_u32 v10, v2, 3, v10
        s_lshl_b32 s18, s13, 16
        s_lshl_b32 s19, s12, 7
        s_add_u32 s18, s18, s19""")
        for q in range(4):
            k(f"buffer_store_dwordx2 v[{32+2*q}:{33+2*q}], v10, s[24:27], s18 offen offset:{16*q}")
        k('s_endpgm'); k.label('oproj_mid')
        for r in range(0, 16, 2):
            unpack(k, 48, 49, 32+r//2)
            k(f"""v_add_f32 v50, v50, v48
            v_fmac_f32 v51, v48, v48
            v_add_f32 v50, v50, v49
            v_fmac_f32 v51, v49, v49
            s_add_u32 s18, s17, {(8*(r//4)+r%4)*4096}
            s_add_u32 s19, s17, {(8*(r//4)+r%4+1)*4096}
            buffer_store_short v{32+r//2}, v9, s[8:11], s18 offen
            buffer_store_short_d16_hi v{32+r//2}, v9, s[8:11], s19 offen""")
        k(f"""v_mov_b32 v52, v50
        v_mov_b32 v53, v51
        s_nop 1
        v_permlane32_swap_b32 v50, v52
        v_permlane32_swap_b32 v51, v53
        v_add_f32 v50, v50, v52
        v_add_f32 v51, v51, v53
        v_cndmask_b32 v50, v50, v51, vcc""".replace("v_cndmask_b32 v50, v50, v51, vcc", "v_cmp_eq_u32 vcc, 1, v2\ns_nop 1\nv_cndmask_b32 v50, v50, v51, vcc"))
        k(f"""v_lshlrev_b32 v10, 3, v6
        v_lshl_add_u32 v10, v2, 2, v10
        s_lshl_b32 s18, s13, 9
        s_add_u32 s18, s18, {ST1}
        buffer_atomic_add_f32 v50, v10, s[8:11], s18 offen""")
    footer(k)
    return k.text(), desc(name, 192+128, 192) + "\n.p2align 6\n" + desc("oproj2_kernel", 192+128, 192)
```

```python
XT0, XT1, XT2, XT3 = 0x000000, 0x200000, 0x400000, 0x600000
KR   = 0x800000
WQT  = 0xD00000
WOT  = 0xF00000
QB, KB, VT = 0x1000000, 0x1200000, 0x1400000
OB   = 0x1600000
ST0, ST1 = 0x1800000, 0x1810000
WS_BYTES = 0x10000000

class K:
    def __init__(self, name):
        self.name = name; self.L = []
    def __call__(self, s):
        for line in s.strip("\n").split("\n"):
            self.L.append("    " + line.strip())
    def label(self, l): self.L.append(l + ":")
    def text(self): return "\n".join(self.L)

def header(k, nwg):
    n = k.name
    k.L.append(".globl %s\n.p2align 8\n.type %s,@function\n%s:" % (n, n, n))
    k("s_cmp_ge_u32 s2, %d\ns_cbranch_scc1 %s_end" % (nwg, n))

def footer(k):
    k.label(k.name + "_end"); k("s_endpgm")

def srd(k, d, b, nbytes):
    k("s_mov_b32 s%d, s%d\ns_and_b32 s%d, s%d, 0xffff\ns_mov_b32 s%d, 0x%x\ns_mov_b32 s%d, 0x00020000" % (d, b, d+1, b+1, d+2, nbytes, d+3))

def desc(name, vgpr, accum=None, sgpr=96):
    if accum is None: accum = (vgpr + 3) // 4 * 4
    return """.amdhsa_kernel %s
  .amdhsa_next_free_vgpr %d
  .amdhsa_next_free_sgpr %d
  .amdhsa_accum_offset %d
  .amdhsa_group_segment_fixed_size 0
  .amdhsa_kernarg_size 120
  .amdhsa_user_sgpr_count 2
  .amdhsa_user_sgpr_kernarg_segment_ptr 1
  .amdhsa_system_sgpr_workgroup_id_x 1
.end_amdhsa_kernel""" % (name, vgpr, sgpr, accum)

def unpack(k, lo, hi, src):
    k("v_lshlrev_b32 v%d, 16, v%d\nv_and_b32 v%d, 0xffff0000, v%d" % (lo, src, hi, src))

def ln_finalize(k, s1, s2, t0, t1):
    k(f"""v_mul_f32 v{s1}, 0x3b000000, v{s1}
    v_mul_f32 v{s2}, 0x3b000000, v{s2}
    v_fma_f32 v{s2}, -v{s1}, v{s1}, v{s2}
    v_max_f32 v{s2}, 0, v{s2}
    v_cvt_pk_bf16_f32 v{t0}, v{s1}, v{s2}
    v_lshlrev_b32 v{s1}, 16, v{t0}
    v_and_b32 v{s2}, 0xffff0000, v{t0}
    v_add_f32 v{s2}, 0x3727c5ac, v{s2}
    v_cvt_pk_bf16_f32 v{t0}, v{s2}, v{s2}
    v_lshlrev_b32 v{s2}, 16, v{t0}
    v_sqrt_f32 v{s2}, v{s2}
    s_nop 0
    v_cvt_pk_bf16_f32 v{t0}, v{s2}, v{s2}
    v_lshlrev_b32 v{s2}, 16, v{t0}
    v_rcp_f32 v{s2}, v{s2}
    s_nop 0""")

def header2(k, nwg, entries):
    n = k.name
    for i, (en, init) in enumerate(reversed(entries)):
        k.L.append(".globl %s\n.p2align 8\n.type %s,@function\n%s:" % (en, en, en))
        k("s_cmp_ge_u32 s2, %d\ns_cbranch_scc1 %s_end" % (nwg, n))
        for l in init: k(l)
        if i < len(entries) - 1: k("s_branch %s_body" % n)
    k.label(n + "_body")

import os
STAMP = os.environ.get('STAMP')
def stamp(k, i):
    if STAMP and STAMP in k.name:
        k(f"s_memtime s[{60+2*i}:{61+2*i}]\ns_waitcnt lgkmcnt(0)")
def stamp_out(k, n, wg=0):
    if STAMP and STAMP in k.name:
        k(f"s_waitcnt vmcnt(0)\ns_memtime s[{60+2*n}:{61+2*n}]\ns_load_dwordx2 s[58:59], s[0:1], 104\ns_waitcnt lgkmcnt(0)\ns_cmp_lg_u32 s2, {wg}\ns_cbranch_scc1 {k.name}_so\nv_mov_b32 v1, 0")
        for i in range(n+1):
            k(f"s_sub_u32 s57, s{60+2*i}, s60\nv_mov_b32 v2, s57\nglobal_store_dword v1, v2, s[58:59] offset:{4*i}")
        k.label(k.name + "_so")
```

```python
from gen_common import *
QKV_LDS = 81920 + 512
STAT = 81920
def k3():
    name = "qkv1_kernel"; k = K(name)
    header2(k, 256, [("qkv1_kernel", [f"s_mov_b32 s40, {XT1}"]), ("qkv2_kernel", [f"s_mov_b32 s40, {XT3}"])])
    stamp(k, 0)
    k("""s_load_dwordx2 s[4:5], s[0:1], 112
    s_waitcnt lgkmcnt(0)""")
    stamp(k, 1)
    srd(k, 8, 4, WS_BYTES)
    k(f"""s_and_b32 s12, s2, 1
    s_lshl_b32 s12, s12, 2
    s_bfe_u32 s13, s2, 0x20003
    s_add_u32 s12, s12, s13
    s_bfe_u32 s13, s2, 0x20001
    s_lshl_b32 s13, s13, 3
    s_lshr_b32 s14, s2, 5
    s_add_u32 s13, s13, s14
    s_lshl_b32 s14, s13, 7
    s_add_u32 s14, s14, s40
    v_and_b32 v1, 7, v0
    v_lshrrev_b32 v2, 3, v0
    v_lshlrev_b32 v3, 12, v2
    v_lshl_add_u32 v3, v1, 4, v3
    s_mov_b32 s15, s14""")
    for i in range(16):
        k(f"buffer_load_dwordx4 v[{16+4*i}:{19+4*i}], v3, s[8:11], s15 offen")
        if i < 15: k("s_add_u32 s15, s15, 0x20000")
    k(f"""v_lshrrev_b32 v4, 6, v0
    v_mul_u32_u24 v6, 49152, v4
    v_and_b32 v5, 63, v0
    v_lshl_add_u32 v6, v5, 4, v6
    s_mul_i32 s17, s12, 196608
    s_add_u32 s17, s17, {WQT}
    s_add_u32 s18, s17, 16384
    s_add_u32 s19, s17, 32768""")
    for s in range(16):
        for p in range(3):
            a = 12*s + 4*p
            k(f"buffer_load_dwordx4 a[{a}:{a+3}], v6, s[8:11], s{17+p} offen offset:{1024*(s%4)}")
        if s % 4 == 3 and s < 15: k("s_add_u32 s17, s17, 4096\ns_add_u32 s18, s18, 4096\ns_add_u32 s19, s19, 4096")
    k(f"""v_and_b32 v5, 15, v0
    v_bfe_u32 v7, v0, 4, 2
    v_mul_u32_u24 v11, 160, v2
    v_lshl_add_u32 v11, v1, 4, v11
    v_add_u32 v12, 40960, v11
    v_lshrrev_b32 v13, 2, v5
    v_lshl_add_u32 v13, v7, 2, v13
    v_mul_u32_u24 v13, 160, v13
    v_and_b32 v14, 3, v0
    v_lshl_add_u32 v13, v14, 3, v13
    v_add_u32 v14, 40960, v13
    v_lshl_add_u32 v8, v4, 5, v13
    v_add_u32 v9, 40960, v8
    v_mov_b32 v180, 0x3f803f80
    v_mov_b32 v181, 0x3f803f80
    v_mov_b32 v182, 0x3f803f80
    v_mov_b32 v183, 0x3f803f80
    s_lshl_b32 s16, s12, 2
    v_add_u32 v4, s16, v4""")
    for i in range(8):
        k(f"s_waitcnt vmcnt({63-i})")
        k(f"ds_write_b128 v11, v[{16+4*i}:{19+4*i}] offset:{5120*i}")
    k(f"""s_lshl_b32 s22, s13, 11
    s_add_u32 s23, s22, {KB}
    s_add_u32 s24, s22, {VT}
    s_add_u32 s22, s22, {QB}
    v_lshlrev_b32 v15, 16, v4
    v_lshl_add_u32 v15, v5, 4, v15
    v_lshrrev_b32 v82, 1, v7
    v_and_b32 v83, 1, v7
    v_lshl_add_u32 v10, v83, 8, v15
    v_lshl_add_u32 v10, v82, 3, v10
    v_lshl_add_u32 v15, v82, 9, v15
    v_lshl_add_u32 v15, v83, 3, v15""")
    k("s_waitcnt lgkmcnt(0)\ns_barrier")
    stamp(k, 2)
    def issue(s):
        b = 192 + 20*(s % 2)
        base, b2, so = ("v13", "v8", 5120*s) if s < 8 else ("v14", "v9", 5120*(s-8))
        for tq in range(4):
            k(f"ds_read_b64_tr_b16 v[{b+4*tq}:{b+4*tq+1}], {base} offset:{so+32*tq}")
            k(f"ds_read_b64_tr_b16 v[{b+4*tq+2}:{b+4*tq+3}], {base} offset:{so+32*tq+2560}")
        k(f"ds_read_b64_tr_b16 v[{b+16}:{b+17}], {b2} offset:{so}")
        k(f"ds_read_b64_tr_b16 v[{b+18}:{b+19}], {b2} offset:{so+2560}")
    issue(0)
    for s in range(16):
        if s == 7: k("s_waitcnt lgkmcnt(0)\ns_barrier"); stamp(k, 3)
        if s < 15: issue(s+1)
        k(f"s_waitcnt vmcnt({45-3*s}) lgkmcnt({10 if s < 15 else 0})")
        b = 192 + 20*(s % 2)
        if s == 3:
            for i in range(8, 16): k(f"ds_write_b128 v12, v[{16+4*i}:{19+4*i}] offset:{5120*(i-8)}")
        def C(c): return "0" if s == 0 else f"v[{c}:{c+3}]"
        k(f"v_mfma_f32_16x16x32_bf16 v[172:175], v[{b+16}:{b+19}], v[{b+16}:{b+19}], {C(172)}")
        k(f"v_mfma_f32_16x16x32_bf16 v[176:179], v[180:183], v[{b+16}:{b+19}], {C(176)}")
        for tq in range(4):
            for p in range(3):
                a = 12*s + 4*p; c = 112 + 16*p + 4*tq
                if p < 2: k(f"v_mfma_f32_16x16x32_bf16 v[{c}:{c+3}], a[{a}:{a+3}], v[{b+4*tq}:{b+4*tq+3}], {C(c)}")
                else: k(f"v_mfma_f32_16x16x32_bf16 v[{c}:{c+3}], v[{b+4*tq}:{b+4*tq+3}], a[{a}:{a+3}], {C(c)}")
        for p in range(3):
            a = 12*s + 4*p; c = 160 + 4*p
            if p < 2: k(f"v_mfma_f32_16x16x32_bf16 v[{c}:{c+3}], a[{a}:{a+3}], v[180:183], {C(c)}")
            else: k(f"v_mfma_f32_16x16x32_bf16 v[{c}:{c+3}], v[180:183], a[{a}:{a+3}], {C(c)}")
    stamp(k, 4)
    k(f"""v_lshlrev_b32 v56, 2, v7
    v_sub_u32 v56, v5, v56
    v_cmp_eq_u32 vcc, 1, v56
    v_cmp_eq_u32 s[26:27], 2, v56
    v_cmp_eq_u32 s[28:29], 3, v56
    v_lshrrev_b32 v57, 6, v0
    v_lshl_add_u32 v57, v57, 4, v5
    v_lshlrev_b32 v57, 2, v57
    v_add_u32 v57, {STAT}, v57
    v_cndmask_b32 v172, v172, v173, vcc
    v_cndmask_b32 v172, v172, v174, s[26:27]
    v_cndmask_b32 v172, v172, v175, s[28:29]""")
    ln_finalize(k, 176, 172, 58, 59)
    k(f"""v_mul_f32 v176, v176, v172
    v_cmp_gt_u32 vcc, 4, v56
    s_and_saveexec_b64 s[20:21], vcc
    ds_write2_b32 v57, v172, v176 offset0:0 offset1:64
    s_mov_b64 exec, s[20:21]
    v_lshlrev_b32 v58, 2, v5
    v_add_u32 v58, {STAT}, v58
    v_lshlrev_b32 v59, 4, v7
    v_add_u32 v59, {STAT}, v59
    s_waitcnt lgkmcnt(0)
    s_barrier""")
    stamp(k, 5)
    for tq in range(4):
        k(f"ds_read2_b32 v[{16+2*tq}:{17+2*tq}], v58 offset0:{16*tq} offset1:{64+16*tq}")
    for tq in range(4):
        k(f"ds_read_b128 v[{24+8*tq}:{27+8*tq}], v59 offset:{64*tq}")
        k(f"ds_read_b128 v[{28+8*tq}:{31+8*tq}], v59 offset:{256+64*tq}")
    k("s_waitcnt lgkmcnt(8)")
    for p in range(2):
        for tq in range(4):
            c = 112 + 16*p + 4*tq; R = 16 + 2*tq; cs = 160 + 4*p
            for h in range(2):
                k(f"""v_pk_mul_f32 v[60:61], v[{cs+2*h}:{cs+2*h+1}], v[{R}:{R+1}] op_sel:[0,1] op_sel_hi:[1,1]
                v_pk_fma_f32 v[{c+2*h}:{c+2*h+1}], v[{c+2*h}:{c+2*h+1}], v[{R}:{R+1}], v[60:61] op_sel:[0,0,0] op_sel_hi:[1,0,1] neg_lo:[0,0,1] neg_hi:[0,0,1]""")
            k(f"v_cvt_pk_bf16_f32 v{c}, v{c}, v{c+1}\nv_cvt_pk_bf16_f32 v{c+1}, v{c+2}, v{c+3}")
            k(f"buffer_store_dwordx2 v[{c}:{c+1}], v15, s[8:11], s{22+p} offen offset:{(tq//2)*1024+(tq%2)*256}")
    k("s_waitcnt lgkmcnt(0)")
    for tq in range(4):
        c = 144 + 4*tq; R = 24 + 8*tq
        for h in range(2):
            k(f"""v_pk_mul_f32 v[60:61], v[{R+4+2*h}:{R+5+2*h}], v[168:169] op_sel:[0,0] op_sel_hi:[1,0]
            v_pk_fma_f32 v[{c+2*h}:{c+2*h+1}], v[{c+2*h}:{c+2*h+1}], v[{R+2*h}:{R+2*h+1}], v[60:61] neg_lo:[0,0,1] neg_hi:[0,0,1]""")
        k(f"v_cvt_pk_bf16_f32 v{c}, v{c}, v{c+1}\nv_cvt_pk_bf16_f32 v{c+1}, v{c+2}, v{c+3}")
        k(f"buffer_store_dwordx2 v[{c}:{c+1}], v10, s[8:11], s24 offen offset:{512*tq}")
    stamp(k, 6); stamp_out(k, 7)
    footer(k)
    return k.text(), desc(name, 256+192, 256) + "\n.p2align 6\n" + desc("qkv2_kernel", 256+192, 256)
```

```python
XT0, XT1, XT2, XT3 = 0x000000, 0x200000, 0x400000, 0x600000
KR   = 0x800000
WQT  = 0xD00000
WOT  = 0xF00000
QB, KB, VT = 0x1000000, 0x1200000, 0x1400000
OB   = 0x1600000
ST0, ST1 = 0x1800000, 0x1810000
CS = 0x1820000
CONST = 0x1A00000
WS_BYTES = 0x10000000

class K:
    def __init__(self, name):
        self.name = name; self.L = []
    def __call__(self, s):
        for line in s.strip("\n").split("\n"):
            self.L.append("    " + line.strip())
    def label(self, l): self.L.append(l + ":")
    def text(self): return "\n".join(self.L)

def header(k, nwg):
    n = k.name
    k.L.append(".globl %s\n.p2align 8\n.type %s,@function\n%s:" % (n, n, n))
    k("s_cmp_ge_u32 s2, %d\ns_cbranch_scc1 %s_end" % (nwg, n))

def footer(k):
    k.label(k.name + "_end"); k("s_endpgm")

def srd(k, d, b, nbytes):
    k("s_mov_b32 s%d, s%d\ns_and_b32 s%d, s%d, 0xffff\ns_mov_b32 s%d, 0x%x\ns_mov_b32 s%d, 0x00020000" % (d, b, d+1, b+1, d+2, nbytes, d+3))

def desc(name, vgpr, accum=None, sgpr=96):
    if accum is None: accum = (vgpr + 3) // 4 * 4
    return """.amdhsa_kernel %s
  .amdhsa_next_free_vgpr %d
  .amdhsa_next_free_sgpr %d
  .amdhsa_accum_offset %d
  .amdhsa_group_segment_fixed_size 0
  .amdhsa_kernarg_size 120
  .amdhsa_user_sgpr_count 2
  .amdhsa_user_sgpr_kernarg_segment_ptr 1
  .amdhsa_system_sgpr_workgroup_id_x 1
.end_amdhsa_kernel""" % (name, vgpr, sgpr, accum)

def unpack(k, lo, hi, src):
    k("v_lshlrev_b32 v%d, 16, v%d\nv_and_b32 v%d, 0xffff0000, v%d" % (lo, src, hi, src))

def ln_finalize(k, s1, s2, t0, t1):
    k(f"""v_mul_f32 v{s1}, 0x3b000000, v{s1}
    v_mul_f32 v{s2}, 0x3b000000, v{s2}
    v_fma_f32 v{s2}, -v{s1}, v{s1}, v{s2}
    v_max_f32 v{s2}, 0, v{s2}
    v_cvt_pk_bf16_f32 v{t0}, v{s1}, v{s2}
    v_lshlrev_b32 v{s1}, 16, v{t0}
    v_and_b32 v{s2}, 0xffff0000, v{t0}
    v_add_f32 v{s2}, 0x3727c5ac, v{s2}
    v_cvt_pk_bf16_f32 v{t0}, v{s2}, v{s2}
    v_lshlrev_b32 v{s2}, 16, v{t0}
    v_sqrt_f32 v{s2}, v{s2}
    s_nop 0
    v_cvt_pk_bf16_f32 v{t0}, v{s2}, v{s2}
    v_lshlrev_b32 v{s2}, 16, v{t0}
    v_rcp_f32 v{s2}, v{s2}
    s_nop 0""")

def header2(k, nwg, entries):
    n = k.name
    for i, (en, init) in enumerate(reversed(entries)):
        k.L.append(".globl %s\n.p2align 8\n.type %s,@function\n%s:" % (en, en, en))
        k("s_cmp_ge_u32 s2, %d\ns_cbranch_scc1 %s_end" % (nwg, n))
        for l in init: k(l)
        if i < len(entries) - 1: k("s_branch %s_body" % n)
    k.label(n + "_body")

import os
STAMP = os.environ.get('STAMP')
def stamp(k, i):
    if STAMP and STAMP in k.name:
        k(f"s_memtime s[{60+2*i}:{61+2*i}]\ns_waitcnt lgkmcnt(0)")
def stamp_out(k, n, wg=0, srd="s[8:11]"):
    if STAMP and STAMP in k.name:
        k(f"s_waitcnt vmcnt(0)\ns_memtime s[{60+2*n}:{61+2*n}]\ns_waitcnt lgkmcnt(0)\ns_cmp_lg_u32 s2, {wg}\ns_cbranch_scc1 {k.name}_so\nv_mov_b32 v1, 0\ns_mov_b32 s58, 0x1900000")
        for i in range(n+1):
            k(f"s_sub_u32 s57, s{60+2*i}, s60\nv_mov_b32 v2, s57\nbuffer_store_dword v2, v1, {srd}, s58 offen offset:{4*i}")
        k.label(k.name + "_so")
```

```python
from gen_common import *
def k1():
    k = K("prep_kernel"); header(k, 640)
    k("""s_cmp_ge_u32 s2, 128
    s_cbranch_scc1 prep_kgen
    s_load_dwordx2 s[4:5], s[0:1], 0
    s_load_dwordx2 s[6:7], s[0:1], 80
    s_load_dwordx2 s[8:9], s[0:1], 88
    s_load_dwordx2 s[10:11], s[0:1], 112
    s_waitcnt lgkmcnt(0)""")
    srd(k, 16, 10, WS_BYTES)
    k("""s_cmp_ge_u32 s2, 64
    s_cbranch_scc1 prep_m1""")
    srd(k, 12, 4, 0x200000)
    k(f"""s_lshl_b32 s20, s2, 15
    s_mov_b32 s21, 1024
    s_lshl_b32 s22, s2, 6
    s_add_u32 s22, s22, {XT0}
    s_mov_b32 s23, 0x100000
    s_mov_b32 s24, 0
    v_lshlrev_b32 v50, 12, v0
    s_branch prep_go""")
    k.label("prep_m1")
    k("""s_cmp_ge_u32 s2, 112
    s_cbranch_scc1 prep_m2""")
    srd(k, 12, 6, 0x180000)
    k(f"""s_sub_u32 s3, s2, 64
    s_lshr_b32 s25, s3, 4
    s_and_b32 s26, s3, 15
    s_mul_i32 s20, s26, 98304
    s_lshl_b32 s27, s25, 10
    s_add_u32 s20, s20, s27
    s_mov_b32 s21, 3072
    s_lshl_b32 s22, s25, 14
    s_lshl_b32 s27, s26, 10
    s_add_u32 s22, s22, s27
    s_add_u32 s22, s22, {WQT}
    s_mov_b32 s23, 786432
    s_mov_b32 s24, 1
    v_lshrrev_b32 v6, 4, v0
    v_mul_u32_u24 v6, 49152, v6
    v_and_b32 v7, 15, v0
    v_lshl_add_u32 v50, v7, 4, v6
    s_branch prep_go""")
    k.label("prep_m2")
    srd(k, 12, 8, 0x80000)
    k(f"""s_sub_u32 s3, s2, 112
    s_lshl_b32 s20, s3, 15
    s_mov_b32 s21, 1024
    s_lshl_b32 s22, s3, 11
    s_add_u32 s22, s22, {WOT}
    s_mov_b32 s23, 262144
    s_mov_b32 s24, 2
    v_lshrrev_b32 v6, 5, v0
    v_lshlrev_b32 v6, 15, v6
    v_and_b32 v7, 31, v0
    v_lshl_add_u32 v50, v7, 4, v6""")
    k.label("prep_go")
    k("""v_lshrrev_b32 v1, 3, v0
    v_and_b32 v2, 7, v0
    v_mul_lo_u32 v3, v1, s21
    v_lshl_add_u32 v3, v2, 4, v3
    v_mul_u32_u24 v4, 1088, v1
    v_lshl_add_u32 v4, v2, 4, v4""")
    for i in range(8):
        k(f"buffer_load_dwordx4 v[{8+4*i}:{11+4*i}], v3, s[12:15], s20 offen offset:{128*i}")
    k("""v_and_b32 v5, 15, v0
    v_lshrrev_b32 v5, 2, v5
    v_mul_u32_u24 v5, 1088, v5
    v_and_b32 v6, 0xf0, v0
    v_and_b32 v7, 3, v0
    v_lshl_add_u32 v6, v7, 2, v6
    v_lshl_add_u32 v5, v6, 1, v5""")
    for i in range(8):
        k(f"s_waitcnt vmcnt({7-i})\nds_write_b128 v4, v[{8+4*i}:{11+4*i}] offset:{128*i}")
    k("""s_cmp_lg_u32 s24, 0
    s_cbranch_scc1 prep_nostats
    v_mov_b32 v60, 0
    v_mov_b32 v61, 0""")
    for r in range(8, 40):
        unpack(k, 62, 63, r)
        k("""v_add_f32 v60, v60, v62
        v_fmac_f32 v61, v62, v62
        v_add_f32 v60, v60, v63
        v_fmac_f32 v61, v63, v63""")
    for dpp in ("quad_perm:[1,0,3,2]", "quad_perm:[2,3,0,1]", "row_half_mirror"):
        k(f"""s_nop 1
        v_add_f32_dpp v60, v60, v60 {dpp} row_mask:0xf bank_mask:0xf
        v_add_f32_dpp v61, v61, v61 {dpp} row_mask:0xf bank_mask:0xf""")
    k(f"""s_lshl_b32 s3, s2, 8
    s_add_u32 s3, s3, {ST0}
    v_lshlrev_b32 v62, 3, v1
    v_cmp_eq_u32 vcc, 0, v2
    s_and_saveexec_b64 s[28:29], vcc
    buffer_store_dwordx2 v[60:61], v62, s[16:19], s3 offen
    s_mov_b64 exec, s[28:29]""")
    k.label("prep_nostats")
    k("""s_waitcnt lgkmcnt(0)
    s_barrier
    s_add_u32 s25, s23, s22
    s_cmp_eq_u32 s24, 1
    s_cbranch_scc1 prep_perm
    s_cmp_eq_u32 s24, 2
    s_cbranch_scc1 prep_wo""")
    for variant in (0, 1, 2):
        if variant == 1: k.label("prep_perm")
        if variant == 2: k.label("prep_wo")
        for p in range(2):
            for i in range(8):
                if variant != 1: d = 8 + 16*p + 2*i
                else: d = 8 + 16*p + (4*i if i < 4 else 4*(i-4)+2)
                k(f"ds_read_b64_tr_b16 v[{d}:{d+1}], v5 offset:{4352*i+512*p}")
        for p in range(2):
            k(f"s_waitcnt lgkmcnt({8*(1-p)})")
            for j in range(4):
                k(f"buffer_store_dwordx4 v[{8+16*p+4*j}:{11+16*p+4*j}], v50, s[16:19], s{22 if p==0 else 25} offen offset:{(16,256,512)[variant]*j}")
        k("s_endpgm")
    k.label("prep_kgen")
    k("""s_sub_u32 s3, s2, 128
    s_load_dwordx4 s[4:7], s[0:1], 8
    s_load_dwordx4 s[8:11], s[0:1], 24
    s_load_dwordx4 s[12:15], s[0:1], 40
    s_load_dwordx2 s[16:17], s[0:1], 56
    s_load_dwordx2 s[18:19], s[0:1], 112
    v_and_b32 v1, 127, v0
    s_lshl_b32 s20, s3, 8
    v_lshl_add_u32 v2, v1, 1, s20
    s_lshl_b32 s21, s3, 1
    v_mov_b32 v3, s21
    s_waitcnt lgkmcnt(0)
    global_load_ushort v4, v2, s[4:5]
    global_load_ushort v5, v2, s[6:7]
    global_load_ushort v6, v2, s[8:9]
    global_load_ushort v7, v2, s[10:11]
    global_load_ushort v8, v2, s[12:13]
    global_load_ushort v9, v2, s[14:15]
    global_load_ushort v10, v3, s[16:17]""")
    srd(k, 24, 18, WS_BYTES)
    k(f"""s_cmp_lg_u32 s3, 5
    s_cbranch_scc1 prep_noconst
    v_mov_b32 v16, 0x3f803f80
    v_mov_b32 v17, 0x3f803f80
    v_mov_b32 v18, 0x3f803f80
    v_mov_b32 v19, 0x3f803f80
    v_mov_b32 v20, 0
    v_mov_b32 v21, 0
    v_mov_b32 v22, 0
    v_mov_b32 v23, 0
    v_lshlrev_b32 v11, 4, v0
    s_mov_b32 s22, {CONST}
    s_mov_b32 s23, {CONST + 0x1000}
    s_mov_b32 s28, {CONST + 0x2000}
    buffer_store_dwordx4 v[16:19], v11, s[24:27], s22 offen
    buffer_store_dwordx4 v[16:19], v11, s[24:27], s23 offen
    buffer_store_dwordx4 v[16:19], v11, s[24:27], s28 offen
    v_add_u32 v11, 0x4000, v11
    buffer_store_dwordx4 v[20:23], v11, s[24:27], s22 offen
    buffer_store_dwordx4 v[20:23], v11, s[24:27], s23 offen
    buffer_store_dwordx4 v[20:23], v11, s[24:27], s28 offen""")
    k.label("prep_noconst")
    k("""s_waitcnt vmcnt(0)
    v_lshlrev_b32 v4, 16, v4
    v_lshlrev_b32 v5, 16, v5
    v_lshlrev_b32 v6, 16, v6
    v_lshlrev_b32 v7, 16, v7
    v_lshlrev_b32 v8, 16, v8
    v_lshlrev_b32 v9, 16, v9
    v_lshlrev_b32 v10, 16, v10
    v_mul_f32 v10, 0x3fb8aa3b, v10
    v_exp_f32 v10, v10
    s_nop 0
    v_cvt_pk_bf16_f32 v10, v10, v10
    v_lshlrev_b32 v10, 16, v10
    v_mul_f32 v12, v10, v4
    v_mul_f32 v12, 0x3fb8aa3b, v12
    v_mul_f32 v13, v10, v5
    v_mul_f32 v13, 0x3e22f983, v13
    v_mul_f32 v6, v10, v6
    v_mul_f32 v7, v10, v7
    v_mul_f32 v14, v8, v6
    v_fma_f32 v14, -v9, v7, v14
    v_mul_f32 v15, v8, v7
    v_fma_f32 v15, v9, v6, v15
    v_mul_f32 v16, 0x43800000, v12
    v_mul_f32 v17, 0x43800000, v13
    v_exp_f32 v16, v16
    v_fract_f32 v17, v17
    v_sub_f32 v21, 0, v15
    v_sin_f32 v19, v17
    v_cos_f32 v18, v17
    v_mov_b32 v20, v14
    v_sub_f32 v23, 0, v14
    v_mov_b32 v22, v21
    v_mul_f32 v15, v19, v16
    v_mul_f32 v14, v18, v16
    v_lshlrev_b32 v2, 5, v1
    ds_write_b128 v2, v[12:15] offset:13312
    ds_write_b128 v2, v[20:23] offset:13328
    v_and_b32 v2, 3, v0
    v_lshlrev_b32 v2, 2, v2
    v_mov_b32 v3, 0
    ds_write_b32 v2, v3
    v_lshrrev_b32 v16, 6, v0
    v_and_b32 v17, 15, v0
    v_bfe_u32 v18, v0, 4, 2
    v_cvt_f32_u32 v21, v17
    v_mul_f32 v20, 0x41800000, v21
    v_lshlrev_b32 v19, 10, v16
    v_lshl_add_u32 v19, v18, 5, v19
    v_lshlrev_b32 v22, 10, v18
    v_lshl_add_u32 v22, v17, 4, v22
    v_lshl_add_u32 v22, v16, 2, v22
    s_waitcnt lgkmcnt(0)
    s_barrier
    ds_read_b128 v[24:27], v19 offset:13312
    ds_read_b128 v[28:31], v19 offset:13328""")
    for s in range(8):
        P = 24 if s % 2 == 0 else 32
        Pn = 32 if s % 2 == 0 else 24
        if s < 7: k(f"ds_read_b128 v[{Pn}:{Pn+3}], v19 offset:{13312+128*(s+1)}\nds_read_b128 v[{Pn+4}:{Pn+7}], v19 offset:{13328+128*(s+1)}\ns_waitcnt lgkmcnt(2)")
        else: k("s_waitcnt lgkmcnt(0)")
        k(f"""v_pk_mul_f32 v[40:41], v[20:21], v[{P}:{P+1}] op_sel:[0,0] op_sel_hi:[1,0]
        v_pk_mul_f32 v[42:43], v[20:21], v[{P}:{P+1}] op_sel:[0,1] op_sel_hi:[1,1]
        v_exp_f32 v40, v40
        v_exp_f32 v41, v41
        v_fract_f32 v42, v42
        v_fract_f32 v43, v43
        v_sin_f32 v44, v42
        v_sin_f32 v45, v43
        v_cos_f32 v46, v42
        v_cos_f32 v47, v43
        s_nop 0
        v_pk_mul_f32 v[66:67], v[44:45], v[40:41]
        v_pk_mul_f32 v[64:65], v[46:47], v[40:41]""")
        for w in range(4):
            re, im, A = 64+4*w, 66+4*w, 56+2*w
            k(f"""v_pk_mul_f32 v[{A}:{A+1}], v[{P+4}:{P+5}], v[{re}:{re+1}] op_sel:[0,0] op_sel_hi:[1,0]
            v_pk_fma_f32 v[{A}:{A+1}], v[{P+6}:{P+7}], v[{im}:{im+1}], v[{A}:{A+1}] op_sel:[0,0,0] op_sel_hi:[1,0,1]""")
            if w < 3:
                k(f"""v_pk_mul_f32 v[52:53], v[{im}:{im+1}], v[{im}:{im+1}]
                v_pk_add_f32 v[54:55], v[{re}:{re+1}], v[{re}:{re+1}]
                v_pk_fma_f32 v[{re+4}:{re+5}], v[{re}:{re+1}], v[{re}:{re+1}], v[52:53] neg_lo:[0,0,1] neg_hi:[0,0,1]
                v_pk_mul_f32 v[{im+4}:{im+5}], v[54:55], v[{im}:{im+1}]""")
            else: k("s_nop 1")
            if w == 0:
                k(f"""v_mul_f32 v52, v{im+4}, v{P+3}
                v_mul_f32 v53, v{im+4}, v{P+2}
                v_fma_f32 v{im+4}, v{re+4}, v{P+3}, v53
                v_fma_f32 v{re+4}, v{re+4}, v{P+2}, -v52""")
            c = 80+4*w; C = "0" if s == 0 else f"v[{c}:{c+3}]"
            k(f"""v_mfma_f32_16x16x4_f32 v[{c}:{c+3}], v{A}, v{re+1}, {C}
            v_mfma_f32_16x16x4_f32 v[{c}:{c+3}], v{A+1}, v{im+1}, v[{c}:{c+3}]""")
    k("""v_lshlrev_b32 v1, 3, v0
    v_sub_u32 v1, 2047, v1
    v_cmp_gt_u32 vcc, 2, v18
    s_nop 7""")
    for w in (0, 3, 1, 2):
        if w == 1: k("s_and_saveexec_b64 s[28:29], vcc")
        for r in range(4):
            k(f"ds_write_b32 v22, v{80+4*w+r} offset:{4*(4 + 64*r + 512*w + (512 if w else 0))}")
    k("s_mov_b64 exec, s[28:29]")
    for e in range(9):
        k(f"""v_subrev_u32 v{24+e}, {e}, v1
        v_max_i32 v{34+e}, 0, v{24+e}
        v_cvt_f32_u32 v{34+e}, v{34+e}
        v_min_i32 v{24+e}, 127, v{24+e}""")
    for e in range(0, 9, 2):
        k(f"v_cvt_pk_bf16_f32 v{34+e}, v{34+e}, v{34+min(e+1,8)}")
        if e < 8: k(f"v_lshrrev_b32 v{35+e}, 16, v{34+e}")
        k(f"v_and_b32 v{34+e}, 0xffff, v{34+e}")
    for e in range(9):
        k(f"""v_subrev_u32 v{34+e}, 17024, v{34+e}
        v_max_i32 v{24+e}, v{24+e}, v{34+e}
        v_lshlrev_b32 v{24+e}, 4, v{24+e}""")
    k("s_waitcnt lgkmcnt(0)\ns_barrier")
    for e in range(9):
        k(f"ds_read_b128 v[{44+4*e}:{47+4*e}], v{24+e} offset:16")
    for e in range(9):
        k(f"s_waitcnt lgkmcnt({8-e})\nv_pk_add_f32 v[{44+4*e}:{45+4*e}], v[{44+4*e}:{45+4*e}], v[{46+4*e}:{47+4*e}]\nv_add_f32 v{24+e}, v{44+4*e}, v{45+4*e}")
    k(f"""s_mul_i32 s20, s3, 8448
    s_add_u32 s20, s20, {KR}
    v_lshlrev_b32 v1, 4, v0
    s_waitcnt lgkmcnt(0)
    v_cvt_pk_bf16_f32 v8, v24, v25
    v_cvt_pk_bf16_f32 v9, v26, v27
    v_cvt_pk_bf16_f32 v10, v28, v29
    v_cvt_pk_bf16_f32 v11, v30, v31
    v_cvt_pk_bf16_f32 v12, v25, v26
    v_cvt_pk_bf16_f32 v13, v27, v28
    v_cvt_pk_bf16_f32 v14, v29, v30
    v_cvt_pk_bf16_f32 v15, v31, v32
    s_add_u32 s21, s20, 4224
    buffer_store_dwordx4 v[8:11], v1, s[24:27], s20 offen
    buffer_store_dwordx4 v[12:15], v1, s[24:27], s21 offen
    v_lshrrev_b32 v2, 3, v0
    v_mul_u32_u24 v2, 4224, v2
    v_and_b32 v3, 7, v0
    v_lshl_add_u32 v2, v3, 4, v2
    v_mov_b32 v16, 0
    v_mov_b32 v17, 0
    v_mov_b32 v18, 0
    v_mov_b32 v19, 0
    v_cmp_gt_u32 vcc, 16, v0
    s_and_saveexec_b64 s[28:29], vcc
    s_cbranch_execz prep_kgen_done
    buffer_store_dwordx4 v[16:19], v2, s[24:27], s20 offen offset:4095
    """)
    k.label("prep_kgen_done")
    footer(k)
    t = k.text()
    t = t.replace("v_lshl_add_u32 v2, v3, 4, v2\n    v_mov_b32 v16, 0", "v_lshl_add_u32 v2, v3, 4, v2\n    v_add_u32 v2, 4096, v2\n    v_mov_b32 v16, 0")
    t = t.replace(" offen offset:4095", " offen")
    return t, desc("prep_kernel", 96)
```

```python
from gen_common import *
KC_CH = 34304; KC_CP = 4288; UB = 68608; U_CH = 7680; RED = 83968
CONV_LDS = RED + 16384
def k2():
    name = "conv1_kernel"; k = K(name)
    header2(k, 256, [("conv1_kernel", [f"s_mov_b32 s40, {XT0}", f"s_mov_b32 s41, {XT1}", f"s_mov_b32 s16, {ST0}"]), ("conv2_kernel", [f"s_mov_b32 s40, {XT2}", f"s_mov_b32 s41, {XT3}", f"s_mov_b32 s16, {ST1}"])])
    stamp(k, 0)
    k("""s_load_dwordx2 s[4:5], s[0:1], 112
    s_load_dwordx2 s[6:7], s[0:1], 64
    s_and_b32 s3, s2, 1
    s_lshl_b32 s3, s3, 7
    s_bfe_u32 s12, s2, 0x20001
    s_add_u32 s3, s3, s12
    s_lshr_b32 s12, s2, 3
    s_lshl_b32 s12, s12, 2
    s_add_u32 s2, s3, s12
    s_waitcnt lgkmcnt(0)""")
    stamp(k, 1)
    srd(k, 8, 4, WS_BYTES)
    k(f"""s_mul_i32 s12, s2, 16896
    s_add_u32 s12, s12, {KR}
    s_lshl_b32 s13, s2, 13
    s_add_u32 s14, s13, s41
    s_add_u32 s13, s13, s40
    s_add_u32 s15, s13, 4096
    v_lshlrev_b32 v1, 4, v0
    v_lshlrev_b32 v2, 6, v0
    buffer_load_dwordx4 v[100:103], v1, s[8:11], s13 offen
    buffer_load_dwordx4 v[104:107], v1, s[8:11], s15 offen
    buffer_load_dwordx4 v[108:111], v2, s[8:11], s16 offen
    buffer_load_dwordx4 v[112:115], v2, s[8:11], s16 offen offset:16
    buffer_load_dwordx4 v[116:119], v2, s[8:11], s16 offen offset:32
    buffer_load_dwordx4 v[120:123], v2, s[8:11], s16 offen offset:48""")
    for ch in range(2):
        for r in range(8):
            off = ch*8448 + (r % 2)*4224 + 2*(r - r % 2)
            idx = ch*8 + r
            k(f"s_add_u32 s17, s12, {off}\nbuffer_load_dwordx4 v[{4+4*idx}:{7+4*idx}], v1, s[8:11], s17 offen")
    k("""v_lshrrev_b32 v70, 7, v0
    s_lshl_b32 s17, s2, 2
    v_lshl_add_u32 v71, v70, 1, s17
    global_load_ushort v72, v71, s[6:7]""")
    stamp(k, 2)
    k(f"""v_mov_b32 v124, 0
    v_mov_b32 v125, 0
    v_mov_b32 v126, 0
    v_mov_b32 v127, 0
    v_cmp_gt_u32 vcc, 155, v0
    s_and_saveexec_b64 s[20:21], vcc
    ds_write_b128 v1, v[124:127] offset:{UB-65536+65536 if False else 0}+0
    s_mov_b64 exec, s[20:21]""".replace("offset:0+0", "offset:0"))
    k.L.pop(); k.L.pop();
    k(f"""v_add_u32 v73, {UB}, v1
    ds_write_b128 v73, v[124:127]
    ds_write_b128 v73, v[124:127] offset:{U_CH}
    s_mov_b64 exec, s[20:21]
    v_lshrrev_b32 v73, 2, v0
    v_mul_u32_u24 v73, {KC_CP}, v73
    v_and_b32 v74, 3, v0
    v_lshl_add_u32 v73, v74, 4, v73
    v_cmp_gt_u32 vcc, 64, v0
    s_and_saveexec_b64 s[20:21], vcc
    ds_write_b128 v73, v[124:127] offset:4096
    s_mov_b64 exec, s[20:21]""")
    k("s_waitcnt vmcnt(17)")
    for j in range(8):
        ln_finalize(k, 108+2*j, 109+2*j, 124, 125)
    for ch in range(2):
        for jj in range(4):
            src = 100 + 4*ch + jj
            unpack(k, 124, 125, src)
            m0, r0, m1, r1 = 108+4*jj, 109+4*jj, 110+4*jj, 111+4*jj
            k(f"""v_sub_f32 v124, v124, v{m0}
            v_sub_f32 v125, v125, v{m1}
            v_cvt_pk_bf16_f32 v126, v124, v125
            v_lshlrev_b32 v124, 16, v126
            v_and_b32 v125, 0xffff0000, v126
            v_mul_f32 v124, v124, v{r0}
            v_mul_f32 v125, v125, v{r1}
            v_cvt_pk_bf16_f32 v{src}, v124, v125""")
    stamp(k, 3)
    k(f"""v_lshrrev_b32 v73, 2, v0
    v_mul_u32_u24 v73, 80, v73
    v_lshl_add_u32 v73, v74, 4, v73
    v_add_u32 v73, {UB + 31*80}, v73
    ds_write_b128 v73, v[100:103]
    ds_write_b128 v73, v[104:107] offset:{U_CH}""")
    for idx in range(16):
        ch, r = idx // 8, idx % 8
        k(f"s_waitcnt vmcnt({16-idx})")
        off = ch*KC_CH + r*KC_CP
        if off < 65536: k(f"ds_write_b128 v1, v[{4+4*idx}:{7+4*idx}] offset:{off}")
        else: raise Exception
    k(f"""v_and_b32 v75, 31, v0
    v_bfe_u32 v76, v0, 5, 1
    v_bfe_u32 v77, v0, 6, 1
    v_sub_u32 v78, 7, v75
    v_and_b32 v78, 7, v78
    v_mul_u32_u24 v79, {KC_CH}, v70
    v_mul_u32_u24 v80, {KC_CP}, v78
    v_add_u32 v79, v79, v80
    v_lshlrev_b32 v80, 3, v76
    v_add_u32 v80, 2047, v80
    v_sub_u32 v80, v80, v75
    v_sub_u32 v80, v80, v78
    v_lshl_add_u32 v79, v80, 1, v79
    v_lshlrev_b32 v80, 6, v77
    v_sub_u32 v79, v79, v80
    v_subrev_u32 v79, {64*62}, v79
    v_mul_u32_u24 v80, {U_CH}, v70
    v_sub_u32 v81, v75, v77
    v_mul_i32_i24 v81, 80, v81
    v_add3_u32 v80, v80, v81, {0})""".replace(", {0})", ", 0").replace(", 0)", ", 0"))
    k(f"""v_lshl_add_u32 v80, v76, 4, v80
    v_add_u32 v80, {UB}, v80""")
    for r in range(32): k(f"v_mov_b32 v{128+r}, 0")
    k("s_waitcnt lgkmcnt(0)\ns_barrier")
    stamp(k, 4)
    def issue(m):
        b = 160 + 24*(m % 3); n = 0
        for c in range(2):
            k(f"ds_read_b128 v[{b+4*c}:{b+4*c+3}], v79 offset:{64*(62-2*m)+32*c}"); n += 1
        for c in range(2):
            k(f"ds_read_b128 v[{b+16+4*c}:{b+16+4*c+3}], v80 offset:{(63-2*m)*80+32*c}"); n += 1
        if m <= 15:
            for c in range(2):
                k(f"ds_read_b128 v[{b+8+4*c}:{b+8+4*c+3}], v80 offset:{(31-2*m)*80+32*c}"); n += 1
        return n
    cnt = {}
    cnt[0] = issue(0); cnt[1] = issue(1)
    for m in range(32):
        if m + 2 < 32: cnt[m+2] = issue(m+2)
        pend = sum(cnt[x] for x in (m+1, m+2) if x < 32)
        k(f"s_waitcnt lgkmcnt({pend})")
        b = 160 + 24*(m % 3)
        for c in range(2):
            k(f"v_mfma_f32_32x32x16_bf16 v[144:159], v[{b+4*c}:{b+4*c+3}], v[{b+16+4*c}:{b+16+4*c+3}], v[144:159]")
            if m <= 15:
                k(f"v_mfma_f32_32x32x16_bf16 v[128:143], v[{b+4*c}:{b+4*c+3}], v[{b+8+4*c}:{b+8+4*c+3}], v[128:143]")
    stamp(k, 5)
    k(f"""v_and_b32 v82, 63, v0
    v_lshlrev_b32 v82, 4, v82
    v_lshl_add_u32 v82, v70, 13, v82
    v_add_u32 v82, {RED}, v82
    v_lshl_add_u32 v83, v77, 12, v82
    v_xor_b32 v84, 4096, v83
    v_lshlrev_b32 v85, 5, v77
    v_add_u32 v85, v85, v75
    v_lshlrev_b32 v86, 6, v85
    v_lshl_add_u32 v86, v76, 3, v86
    v_lshl_add_u32 v86, v70, 12, v86
    v_add_u32 v87, 31, v85
    v_mul_u32_u24 v87, 80, v87
    v_lshl_add_u32 v87, v76, 3, v87
    v_mul_u32_u24 v88, {U_CH}, v70
    v_add3_u32 v87, v87, v88, {UB}""".replace(f"v_add3_u32 v87, v87, v88, {UB}", f"v_add_u32 v87, v87, v88\nv_add_u32 v87, {UB}, v87"))
    for q in range(4):
        k(f"buffer_load_dwordx2 v[{4+2*q}:{5+2*q}], v86, s[8:11], s13 offen offset:{16*q}")
        k(f"ds_read_b64 v[{12+2*q}:{13+2*q}], v87 offset:{16*q}")
    k("""v_cmp_eq_u32 vcc, 0, v77
    s_nop 7
    s_nop 3""")
    for r in range(16):
        k(f"v_cndmask_b32 v{20+r}, v{128+r}, v{144+r}, vcc\nv_cndmask_b32 v{36+r}, v{144+r}, v{128+r}, vcc")
    for q in range(4):
        k(f"ds_write_b128 v84, v[{20+4*q}:{23+4*q}] offset:{1024*q}")
    k("s_waitcnt lgkmcnt(0)\ns_barrier")
    stamp(k, 6)
    for q in range(4):
        k(f"ds_read_b128 v[{20+4*q}:{23+4*q}], v83 offset:{1024*q}")
    k("s_waitcnt vmcnt(0) lgkmcnt(0)\nv_lshlrev_b32 v72, 16, v72")
    for q in range(4):
        for h in range(2):
            y0, y1 = 36+4*q+2*h, 37+4*q+2*h
            k(f"""v_add_f32 v{y0}, v{y0}, v{20+4*q+2*h}
            v_add_f32 v{y1}, v{y1}, v{21+4*q+2*h}
            v_cvt_pk_bf16_f32 v60, v{y0}, v{y1}""")
            unpack(k, 61, 62, 12+2*q+h)
            k("""v_mul_f32 v61, v61, v72
            v_mul_f32 v62, v62, v72
            v_cvt_pk_bf16_f32 v63, v61, v62""")
            unpack(k, 61, 62, 63); unpack(k, 64, 65, 60)
            k("""v_add_f32 v61, v61, v64
            v_add_f32 v62, v62, v65
            v_cvt_pk_bf16_f32 v63, v61, v62""")
            unpack(k, 61, 62, 63); unpack(k, 64, 65, 4+2*q+h)
            k(f"""v_add_f32 v61, v61, v64
            v_add_f32 v62, v62, v65
            v_cvt_pk_bf16_f32 v{52+2*q+h}, v61, v62""")
        k(f"buffer_store_dwordx2 v[{52+2*q}:{53+2*q}], v86, s[8:11], s14 offen offset:{16*q}")
    stamp(k, 7); stamp_out(k, 8)
    footer(k)
    return k.text(), desc(name, 232) + "\n.p2align 6\n" + desc("conv2_kernel", 232)
```

```python
from gen_common import *
QKV_LDS = 81920 + 512
STAT = 81920
def k3():
    name = "qkv1_kernel"; k = K(name)
    header2(k, 256, [("qkv1_kernel", [f"s_mov_b32 s40, {XT1}"]), ("qkv2_kernel", [f"s_mov_b32 s40, {XT3}"])])
    stamp(k, 0)
    k("""s_load_dwordx2 s[4:5], s[0:1], 112
    s_waitcnt lgkmcnt(0)""")
    stamp(k, 1)
    srd(k, 8, 4, WS_BYTES)
    k(f"""s_and_b32 s12, s2, 1
    s_lshl_b32 s12, s12, 2
    s_bfe_u32 s13, s2, 0x20003
    s_add_u32 s12, s12, s13
    s_bfe_u32 s13, s2, 0x20001
    s_lshl_b32 s13, s13, 3
    s_lshr_b32 s14, s2, 5
    s_add_u32 s13, s13, s14
    s_lshl_b32 s14, s13, 7
    s_add_u32 s14, s14, s40
    v_and_b32 v1, 7, v0
    v_lshrrev_b32 v2, 3, v0
    v_lshlrev_b32 v3, 12, v2
    v_lshl_add_u32 v3, v1, 4, v3
    s_mov_b32 s15, s14""")
    for i in range(16):
        k(f"buffer_load_dwordx4 v[{16+4*i}:{19+4*i}], v3, s[8:11], s15 offen")
        if i < 15: k("s_add_u32 s15, s15, 0x20000")
    k(f"""v_lshrrev_b32 v4, 6, v0
    v_mul_u32_u24 v6, 49152, v4
    v_and_b32 v5, 63, v0
    v_lshl_add_u32 v6, v5, 4, v6
    s_mul_i32 s17, s12, 196608
    s_add_u32 s17, s17, {WQT}
    s_add_u32 s18, s17, 16384
    s_add_u32 s19, s17, 32768""")
    def wload(s):
        for p in range(3):
            a = 12*s + 4*p
            k(f"buffer_load_dwordx4 a[{a}:{a+3}], v6, s[8:11], s{17+p} offen offset:{1024*(s%4)}")
        if s % 4 == 3 and s < 15: k("s_add_u32 s17, s17, 4096\ns_add_u32 s18, s18, 4096\ns_add_u32 s19, s19, 4096")
    for s in range(4): wload(s)
    k(f"""v_and_b32 v5, 15, v0
    v_bfe_u32 v7, v0, 4, 2
    v_mul_u32_u24 v11, 160, v2
    v_lshl_add_u32 v11, v1, 4, v11
    v_add_u32 v12, 40960, v11
    v_lshrrev_b32 v13, 2, v5
    v_lshl_add_u32 v13, v7, 2, v13
    v_mul_u32_u24 v13, 160, v13
    v_and_b32 v14, 3, v0
    v_lshl_add_u32 v13, v14, 3, v13
    v_add_u32 v14, 40960, v13
    v_lshl_add_u32 v8, v4, 5, v13
    v_add_u32 v9, 40960, v8
    v_mov_b32 v180, 0x3f803f80
    v_mov_b32 v181, 0x3f803f80
    v_mov_b32 v182, 0x3f803f80
    v_mov_b32 v183, 0x3f803f80
    s_lshl_b32 s16, s12, 2
    v_add_u32 v4, s16, v4""")
    for i in range(8):
        k(f"s_waitcnt vmcnt({27-i})")
        k(f"ds_write_b128 v11, v[{16+4*i}:{19+4*i}] offset:{5120*i}")
    k(f"""s_lshl_b32 s22, s13, 11
    s_add_u32 s23, s22, {KB}
    s_add_u32 s24, s22, {VT}
    s_add_u32 s22, s22, {QB}
    v_lshlrev_b32 v15, 16, v4
    v_lshl_add_u32 v15, v5, 4, v15
    v_lshrrev_b32 v82, 1, v7
    v_and_b32 v83, 1, v7
    v_lshl_add_u32 v10, v83, 8, v15
    v_lshl_add_u32 v10, v82, 3, v10
    v_lshl_add_u32 v15, v82, 9, v15
    v_lshl_add_u32 v15, v83, 3, v15""")
    k("s_waitcnt lgkmcnt(0)\ns_barrier")
    stamp(k, 2)
    def issue(s):
        b = 192 + 20*(s % 2)
        base, b2, so = ("v13", "v8", 5120*s) if s < 8 else ("v14", "v9", 5120*(s-8))
        for tq in range(4):
            k(f"ds_read_b64_tr_b16 v[{b+4*tq}:{b+4*tq+1}], {base} offset:{so+32*tq}")
            k(f"ds_read_b64_tr_b16 v[{b+4*tq+2}:{b+4*tq+3}], {base} offset:{so+32*tq+2560}")
        k(f"ds_read_b64_tr_b16 v[{b+16}:{b+17}], {b2} offset:{so}")
        k(f"ds_read_b64_tr_b16 v[{b+18}:{b+19}], {b2} offset:{so+2560}")
    issue(0)
    for s in range(16):
        if s == 7: k("s_waitcnt lgkmcnt(0)\ns_barrier"); stamp(k, 3)
        if s < 15: issue(s+1)
        if s + 4 < 16: wload(s+4)
        k(f"s_waitcnt vmcnt({min(12, 45-3*s)}) lgkmcnt({10 if s < 15 else 0})")
        b = 192 + 20*(s % 2)
        if s == 3:
            for i in range(8, 16): k(f"ds_write_b128 v12, v[{16+4*i}:{19+4*i}] offset:{5120*(i-8)}")
        def C(c): return "0" if s == 0 else f"v[{c}:{c+3}]"
        k(f"v_mfma_f32_16x16x32_bf16 v[172:175], v[{b+16}:{b+19}], v[{b+16}:{b+19}], {C(172)}")
        k(f"v_mfma_f32_16x16x32_bf16 v[176:179], v[180:183], v[{b+16}:{b+19}], {C(176)}")
        for tq in range(4):
            for p in range(3):
                a = 12*s + 4*p; c = 112 + 16*p + 4*tq
                if p < 2: k(f"v_mfma_f32_16x16x32_bf16 v[{c}:{c+3}], a[{a}:{a+3}], v[{b+4*tq}:{b+4*tq+3}], {C(c)}")
                else: k(f"v_mfma_f32_16x16x32_bf16 v[{c}:{c+3}], v[{b+4*tq}:{b+4*tq+3}], a[{a}:{a+3}], {C(c)}")
        for p in range(3):
            a = 12*s + 4*p; c = 160 + 4*p
            if p < 2: k(f"v_mfma_f32_16x16x32_bf16 v[{c}:{c+3}], a[{a}:{a+3}], v[180:183], {C(c)}")
            else: k(f"v_mfma_f32_16x16x32_bf16 v[{c}:{c+3}], v[180:183], a[{a}:{a+3}], {C(c)}")
    stamp(k, 4)
    k(f"""v_lshlrev_b32 v56, 2, v7
    v_sub_u32 v56, v5, v56
    v_cmp_eq_u32 vcc, 1, v56
    v_cmp_eq_u32 s[26:27], 2, v56
    v_cmp_eq_u32 s[28:29], 3, v56
    v_lshrrev_b32 v57, 6, v0
    v_lshl_add_u32 v57, v57, 4, v5
    v_lshlrev_b32 v57, 2, v57
    v_add_u32 v57, {STAT}, v57
    v_cndmask_b32 v172, v172, v173, vcc
    v_cndmask_b32 v172, v172, v174, s[26:27]
    v_cndmask_b32 v172, v172, v175, s[28:29]""")
    ln_finalize(k, 176, 172, 58, 59)
    k(f"""v_mul_f32 v176, v176, v172
    v_cmp_gt_u32 vcc, 4, v56
    s_and_saveexec_b64 s[20:21], vcc
    ds_write2_b32 v57, v172, v176 offset0:0 offset1:64
    s_mov_b64 exec, s[20:21]
    v_lshlrev_b32 v58, 2, v5
    v_add_u32 v58, {STAT}, v58
    v_lshlrev_b32 v59, 4, v7
    v_add_u32 v59, {STAT}, v59
    s_waitcnt lgkmcnt(0)
    s_barrier""")
    stamp(k, 5)
    for tq in range(4):
        k(f"ds_read2_b32 v[{16+2*tq}:{17+2*tq}], v58 offset0:{16*tq} offset1:{64+16*tq}")
    for tq in range(4):
        k(f"ds_read_b128 v[{24+8*tq}:{27+8*tq}], v59 offset:{64*tq}")
        k(f"ds_read_b128 v[{28+8*tq}:{31+8*tq}], v59 offset:{256+64*tq}")
    k("s_waitcnt lgkmcnt(8)")
    for p in range(2):
        for tq in range(4):
            c = 112 + 16*p + 4*tq; R = 16 + 2*tq; cs = 160 + 4*p
            for h in range(2):
                k(f"""v_pk_mul_f32 v[60:61], v[{cs+2*h}:{cs+2*h+1}], v[{R}:{R+1}] op_sel:[0,1] op_sel_hi:[1,1]
                v_pk_fma_f32 v[{c+2*h}:{c+2*h+1}], v[{c+2*h}:{c+2*h+1}], v[{R}:{R+1}], v[60:61] op_sel:[0,0,0] op_sel_hi:[1,0,1] neg_lo:[0,0,1] neg_hi:[0,0,1]""")
            k(f"v_cvt_pk_bf16_f32 v{c}, v{c}, v{c+1}\nv_cvt_pk_bf16_f32 v{c+1}, v{c+2}, v{c+3}")
            k(f"buffer_store_dwordx2 v[{c}:{c+1}], v15, s[8:11], s{22+p} offen offset:{(tq//2)*1024+(tq%2)*256}")
    k("s_waitcnt lgkmcnt(0)")
    for tq in range(4):
        c = 144 + 4*tq; R = 24 + 8*tq
        for h in range(2):
            k(f"""v_pk_mul_f32 v[60:61], v[{R+4+2*h}:{R+5+2*h}], v[168:169] op_sel:[0,0] op_sel_hi:[1,0]
            v_pk_fma_f32 v[{c+2*h}:{c+2*h+1}], v[{c+2*h}:{c+2*h+1}], v[{R+2*h}:{R+2*h+1}], v[60:61] neg_lo:[0,0,1] neg_hi:[0,0,1]""")
        k(f"v_cvt_pk_bf16_f32 v{c}, v{c}, v{c+1}\nv_cvt_pk_bf16_f32 v{c+1}, v{c+2}, v{c+3}")
        k(f"buffer_store_dwordx2 v[{c}:{c+1}], v10, s[8:11], s24 offen offset:{512*tq}")
    stamp(k, 6); stamp_out(k, 7)
    footer(k)
    return k.text(), desc(name, 256+192, 256) + "\n.p2align 6\n" + desc("qkv2_kernel", 256+192, 256)
```

```python
from gen_common import *
def k4(name, zero_st):
    k = K(name); header(k, 512)
    stamp(k, 0)
    k("""s_load_dwordx2 s[4:5], s[0:1], 112
    s_waitcnt lgkmcnt(0)""")
    srd(k, 8, 4, WS_BYTES)
    stamp(k, 1)
    k(f"""s_and_b32 s13, s2, 1
    s_lshl_b32 s13, s13, 2
    s_bfe_u32 s12, s2, 0x20003
    s_add_u32 s13, s13, s12
    s_bfe_u32 s12, s2, 0x20001
    s_lshl_b32 s12, s12, 4
    s_lshr_b32 s14, s2, 5
    s_add_u32 s12, s12, s14
    v_lshrrev_b32 v1, 6, v0
    s_lshl_b32 s14, s13, 2
    v_add_u32 v1, s14, v1
    v_and_b32 v2, 31, v0
    v_bfe_u32 v3, v0, 5, 1
    v_and_b32 v4, 63, v0
    v_lshlrev_b32 v4, 4, v4
    v_lshl_add_u32 v4, v1, 16, v4
    s_lshl_b32 s15, s12, 10
    s_add_u32 s16, s15, {QB}
    buffer_load_dwordx4 v[8:11], v4, s[8:11], s16 offen""")
    k(f"s_add_u32 s17, s15, {KB - 8192}")
    for j in range(9):
        k(f"buffer_load_dwordx4 v[{12+4*j}:{15+4*j}], v4, s[8:11], s17 offen offset:{1024*(j%4)}")
        if j % 4 == 3: k("s_add_u32 s17, s17, 4096")
    stamp(k, 2)
    k("v_mov_b32 v7, 0xf149f2ca\nv_lshlrev_b32 v5, 2, v3\nv_sub_u32 v5, v2, v5")
    for r in range(0, 16, 4):
        for i in range(4): k(f"v_cmp_gt_i32 s[{30+2*i}:{31+2*i}], {8*(r//4)+i}, v5")
        for i in range(4): k(f"v_cndmask_b32 v{48+r+i}, v7, 0, s[{30+2*i}:{31+2*i}]\nv_cndmask_b32 v{64+r+i}, 0, v7, s[{30+2*i}:{31+2*i}]")
    for j in range(9):
        k(f"s_waitcnt vmcnt({8-j})")
        c = "v[48:63]" if j == 0 else ("v[64:79]" if j == 8 else "0")
        k(f"v_mfma_f32_32x32x16_bf16 v[{96+16*j}:{111+16*j}], v[{12+4*j}:{15+4*j}], v[8:11], {c}")
    stamp(k, 3)
    k(f"""s_add_u32 s17, s15, {VT - 8192}
    s_sub_u32 s18, {CONST}, s17
    s_add_u32 s19, s18, 0x4000
    v_and_b32 v5, 27, v2
    v_cmp_eq_u32 vcc, 16, v5
    v_mov_b32 v5, s19
    v_mov_b32 v6, s18
    v_cndmask_b32 v5, v5, v6, vcc
    v_lshlrev_b32 v6, 16, v1
    v_lshl_add_u32 v6, v2, 4, v6
    v_lshl_add_u32 v6, v3, 8, v6
    v_cmp_gt_u32 vcc, 16, v2
    s_nop 7
    v_cndmask_b32 v6, v5, v6, vcc""")
    for j in range(18):
        k(f"buffer_load_dwordx4 v[{12+4*j}:{15+4*j}], v6, s[8:11], s17 offen offset:{512*(j%8)}")
        if j % 8 == 7: k("s_add_u32 s17, s17, 4096")
    for j in range(8):
        k(f"s_cmp_ge_u32 s12, {8-j}\ns_cbranch_scc1 {name}_mk")
        for r in range(16): k(f"v_mov_b32 v{96+16*j+r}, v7")
    k.label(name + "_mk")
    stamp(k, 4)
    k("v_max3_f32 v84, v96, v97, v98")
    r = 99
    while r + 1 < 240:
        k(f"v_max3_f32 v84, v84, v{r}, v{r+1}"); r += 2
    k("v_max_f32 v84, v84, v239")
    k("""v_mov_b32 v85, v84
    s_nop 1
    v_permlane32_swap_b32 v84, v85
    v_max_f32 v84, v84, v85
    s_mov_b32 s22, 0x3eb8aa3b
    s_mov_b32 s23, 0x3eb8aa3b
    v_mul_f32 v84, s22, v84
    v_mov_b32 v85, v84""")
    stamp(k, 5)
    for r in range(16): k(f"v_mov_b32 v{240+r}, 0")
    for j in range(9):
        b = 96 + 16*j
        for r in range(0, 16, 2):
            k(f"v_pk_fma_f32 v[{b+r}:{b+r+1}], v[{b+r}:{b+r+1}], s[22:23], v[84:85] neg_lo:[0,0,1] neg_hi:[0,0,1]")
        for r in range(16):
            k(f"v_exp_f32 v{b+r}, v{b+r}")
        k("s_nop 0")
        for r in range(8):
            k(f"v_cvt_pk_bf16_f32 v{b+r}, v{b+2*r}, v{b+2*r+1}")
        k(f"s_waitcnt vmcnt({16-2*j})\ns_nop 0")
        k(f"v_mfma_f32_32x32x16_bf16 v[240:255], v[{12+8*j}:{15+8*j}], v[{b}:{b+3}], v[240:255]")
        k(f"v_mfma_f32_32x32x16_bf16 v[240:255], v[{16+8*j}:{19+8*j}], v[{b+4}:{b+7}], v[240:255]")
    stamp(k, 6)
    k(f"""v_lshlrev_b32 v4, 4, v2
    v_lshl_add_u32 v4, v1, 10, v4
    v_lshl_add_u32 v4, v3, 3, v4
    s_lshl_b32 s15, s12, 15
    s_add_u32 s16, s15, {OB}
    s_nop 7
    v_rcp_f32 v84, v248
    s_nop 0""")
    for r in range(8): k(f"v_mul_f32 v{240+r}, v{240+r}, v84")
    k("""v_cvt_pk_bf16_f32 v240, v240, v241
    v_cvt_pk_bf16_f32 v241, v242, v243
    v_cvt_pk_bf16_f32 v242, v244, v245
    v_cvt_pk_bf16_f32 v243, v246, v247
    buffer_store_dwordx2 v[240:241], v4, s[8:11], s16 offen
    buffer_store_dwordx2 v[242:243], v4, s[8:11], s16 offen offset:512""")
    if zero_st:
        k(f"""s_cmp_ge_u32 s2, 16
        s_cbranch_scc1 {name}_nz
        v_mov_b32 v5, 0
        s_lshl_b32 s17, s2, 10
        s_add_u32 s17, s17, {ST1}
        v_lshlrev_b32 v6, 2, v0
        buffer_store_dword v5, v6, s[8:11], s17 offen""")
        k.label(name + "_nz")
    stamp(k, 7); stamp_out(k, 8, 300)
    footer(k)
    return k.text(), desc(name, 256)

def k5():
    name = "oproj1_kernel"; k = K(name)
    header2(k, 256, [("oproj1_kernel", [f"s_mov_b32 s40, {XT1}", "s_mov_b32 s42, 0"]), ("oproj2_kernel", [f"s_mov_b32 s40, {XT3}", "s_mov_b32 s42, 1"])])
    k("""s_load_dwordx2 s[4:5], s[0:1], 112
    s_load_dwordx2 s[6:7], s[0:1], 96
    s_waitcnt lgkmcnt(0)""")
    srd(k, 8, 4, WS_BYTES)
    srd(k, 24, 6, 0x200000)
    k(f"""s_and_b32 s12, s2, 1
    s_lshl_b32 s12, s12, 2
    s_bfe_u32 s13, s2, 0x20003
    s_add_u32 s12, s12, s13
    s_bfe_u32 s13, s2, 0x20001
    s_lshl_b32 s13, s13, 3
    s_lshr_b32 s14, s2, 5
    s_add_u32 s13, s13, s14
    v_and_b32 v1, 31, v0
    v_bfe_u32 v2, v0, 5, 1
    v_bfe_u32 v3, v0, 6, 1
    v_lshrrev_b32 v4, 7, v0
    v_lshl_add_u32 v5, v3, 5, v1
    v_lshl_add_u32 v6, v4, 5, v1
    v_and_b32 v7, 63, v0
    v_lshlrev_b32 v7, 4, v7
    v_lshl_add_u32 v8, v4, 15, v7
    v_lshl_add_u32 v7, v3, 15, v7
    s_lshl_b32 s14, s12, 16
    s_add_u32 s14, s14, {WOT}
    s_lshl_b32 s15, s13, 16
    s_add_u32 s15, s15, {OB}""")
    k(f"""v_lshlrev_b32 v9, 5, v3
    v_lshl_add_u32 v9, v2, 2, v9
    v_lshlrev_b32 v9, 12, v9
    v_lshl_add_u32 v9, v6, 1, v9
    s_lshl_b32 s16, s12, 18
    s_lshl_b32 s17, s13, 7
    s_add_u32 s16, s16, s17
    s_add_u32 s17, s16, {XT2}
    s_add_u32 s16, s16, s40""")
    for r in range(16):
        k(f"s_add_u32 s18, s16, {(8*(r//4)+r%4)*4096}\nbuffer_load_ushort v{32+r}, v9, s[8:11], s18 offen")
    for s in range(32):
        k(f"buffer_load_dwordx4 a[{4*s}:{4*s+3}], v7, s[8:11], s14 offen offset:{1024*(s%4)}")
        k(f"buffer_load_dwordx4 v[{64+4*s}:{67+4*s}], v8, s[8:11], s15 offen offset:{1024*(s%4)}")
        if s % 4 == 3 and s < 31: k("s_add_u32 s14, s14, 4096\ns_add_u32 s15, s15, 4096")
    for r in range(16): k(f"v_mov_b32 v{16+r}, 0")
    for s in range(32):
        k(f"s_waitcnt vmcnt({62-2*s})")
        k(f"v_mfma_f32_32x32x16_bf16 v[16:31], a[{4*s}:{4*s+3}], v[{64+4*s}:{67+4*s}], v[16:31]")
    k("s_waitcnt vmcnt(0)\ns_nop 7\ns_nop 3\nv_mov_b32 v50, 0\nv_mov_b32 v51, 0")
    for r in range(0, 16, 2):
        k(f"""v_cvt_pk_bf16_f32 v48, v{16+r}, v{17+r}
        v_lshlrev_b32 v{16+r}, 16, v48
        v_and_b32 v{17+r}, 0xffff0000, v48
        v_lshlrev_b32 v{32+r}, 16, v{32+r}
        v_lshlrev_b32 v{33+r}, 16, v{33+r}
        v_add_f32 v{16+r}, v{16+r}, v{32+r}
        v_add_f32 v{17+r}, v{17+r}, v{33+r}
        v_cvt_pk_bf16_f32 v{32+r//2}, v{16+r}, v{17+r}""")
    k('s_cmp_eq_u32 s42, 0\ns_cbranch_scc1 oproj_mid')
    if True:
        k("""v_lshlrev_b32 v10, 10, v6
        v_lshl_add_u32 v10, v3, 6, v10
        v_lshl_add_u32 v10, v2, 3, v10
        s_lshl_b32 s18, s13, 16
        s_lshl_b32 s19, s12, 7
        s_add_u32 s18, s18, s19""")
        for q in range(4):
            k(f"buffer_store_dwordx2 v[{32+2*q}:{33+2*q}], v10, s[24:27], s18 offen offset:{16*q}")
        k('s_endpgm'); k.label('oproj_mid')
        for r in range(0, 16, 2):
            unpack(k, 48, 49, 32+r//2)
            k(f"""v_add_f32 v50, v50, v48
            v_fmac_f32 v51, v48, v48
            v_add_f32 v50, v50, v49
            v_fmac_f32 v51, v49, v49
            s_add_u32 s18, s17, {(8*(r//4)+r%4)*4096}
            s_add_u32 s19, s17, {(8*(r//4)+r%4+1)*4096}
            buffer_store_short v{32+r//2}, v9, s[8:11], s18 offen
            buffer_store_short_d16_hi v{32+r//2}, v9, s[8:11], s19 offen""")
        k(f"""v_mov_b32 v52, v50
        v_mov_b32 v53, v51
        s_nop 1
        v_permlane32_swap_b32 v50, v52
        v_permlane32_swap_b32 v51, v53
        v_add_f32 v50, v50, v52
        v_add_f32 v51, v51, v53
        v_cndmask_b32 v50, v50, v51, vcc""".replace("v_cndmask_b32 v50, v50, v51, vcc", "v_cmp_eq_u32 vcc, 1, v2\ns_nop 1\nv_cndmask_b32 v50, v50, v51, vcc"))
        k(f"""v_lshlrev_b32 v10, 3, v6
        v_lshl_add_u32 v10, v2, 2, v10
        s_lshl_b32 s18, s13, 9
        s_add_u32 s18, s18, {ST1}
        buffer_atomic_add_f32 v50, v10, s[8:11], s18 offen""")
    footer(k)
    return k.text(), desc(name, 192+128, 192) + "\n.p2align 6\n" + desc("oproj2_kernel", 192+128, 192)
```

```python
from gen_common import *
def k4(name, zero_st):
    k = K(name); header(k, 512)
    stamp(k, 0)
    k("""s_load_dwordx2 s[4:5], s[0:1], 112
    s_waitcnt lgkmcnt(0)""")
    srd(k, 8, 4, WS_BYTES)
    stamp(k, 1)
    k(f"""s_and_b32 s13, s2, 1
    s_lshl_b32 s13, s13, 2
    s_bfe_u32 s12, s2, 0x20003
    s_add_u32 s13, s13, s12
    s_bfe_u32 s12, s2, 0x20001
    s_lshl_b32 s12, s12, 4
    s_lshr_b32 s14, s2, 5
    s_add_u32 s12, s12, s14
    v_lshrrev_b32 v1, 6, v0
    s_lshl_b32 s14, s13, 2
    v_add_u32 v1, s14, v1
    v_and_b32 v2, 31, v0
    v_bfe_u32 v3, v0, 5, 1
    v_and_b32 v4, 63, v0
    v_lshlrev_b32 v4, 4, v4
    v_lshl_add_u32 v4, v1, 16, v4
    s_lshl_b32 s15, s12, 10
    s_add_u32 s16, s15, {QB}
    buffer_load_dwordx4 v[8:11], v4, s[8:11], s16 offen""")
    k(f"s_add_u32 s17, s15, {KB - 8192}")
    for j in range(9):
        k(f"buffer_load_dwordx4 v[{12+4*j}:{15+4*j}], v4, s[8:11], s17 offen offset:{1024*(j%4)}")
        if j % 4 == 3: k("s_add_u32 s17, s17, 4096")
    stamp(k, 2)
    k("v_mov_b32 v7, 0xf149f2ca\nv_lshlrev_b32 v5, 2, v3\nv_sub_u32 v5, v2, v5")
    for r in range(0, 16, 4):
        for i in range(4): k(f"v_cmp_gt_i32 s[{30+2*i}:{31+2*i}], {8*(r//4)+i}, v5")
        for i in range(4): k(f"v_cndmask_b32 v{48+r+i}, v7, 0, s[{30+2*i}:{31+2*i}]\nv_cndmask_b32 v{64+r+i}, 0, v7, s[{30+2*i}:{31+2*i}]")
    for j in range(9):
        k(f"s_waitcnt vmcnt({8-j})")
        c = "v[48:63]" if j == 0 else ("v[64:79]" if j == 8 else "0")
        k(f"v_mfma_f32_32x32x16_bf16 v[{96+16*j}:{111+16*j}], v[{12+4*j}:{15+4*j}], v[8:11], {c}")
    stamp(k, 3)
    k(f"""s_add_u32 s17, s15, {VT - 8192}
    s_sub_u32 s18, {CONST}, s17
    s_add_u32 s19, s18, 0x4000
    v_and_b32 v5, 27, v2
    v_cmp_eq_u32 vcc, 16, v5
    v_mov_b32 v5, s19
    v_mov_b32 v6, s18
    v_cndmask_b32 v5, v5, v6, vcc
    v_lshlrev_b32 v6, 16, v1
    v_lshl_add_u32 v6, v2, 4, v6
    v_lshl_add_u32 v6, v3, 8, v6
    v_cmp_gt_u32 vcc, 16, v2
    s_nop 7
    v_cndmask_b32 v6, v5, v6, vcc""")
    for j in range(18):
        k(f"buffer_load_dwordx4 v[{12+4*j}:{15+4*j}], v6, s[8:11], s17 offen offset:{512*(j%8)}")
        if j % 8 == 7: k("s_add_u32 s17, s17, 4096")
    for j in range(8):
        k(f"s_cmp_ge_u32 s12, {8-j}\ns_cbranch_scc1 {name}_mk")
        for r in range(16): k(f"v_mov_b32 v{96+16*j+r}, v7")
    k.label(name + "_mk")
    stamp(k, 4)
    k("v_max3_f32 v84, v96, v97, v98")
    r = 99
    while r + 1 < 240:
        k(f"v_max3_f32 v84, v84, v{r}, v{r+1}"); r += 2
    k("v_max_f32 v84, v84, v239")
    k("""v_mov_b32 v85, v84
    s_nop 1
    v_permlane32_swap_b32 v84, v85
    v_max_f32 v84, v84, v85
    s_mov_b32 s22, 0x3eb8aa3b
    s_mov_b32 s23, 0x3eb8aa3b
    v_mul_f32 v84, s22, v84
    v_mov_b32 v85, v84""")
    stamp(k, 5)
    for r in range(16): k(f"v_mov_b32 v{240+r}, 0")
    for j in range(9):
        b = 96 + 16*j
        for r in range(0, 16, 2):
            k(f"v_pk_fma_f32 v[{b+r}:{b+r+1}], v[{b+r}:{b+r+1}], s[22:23], v[84:85] neg_lo:[0,0,1] neg_hi:[0,0,1]")
        for r in range(16):
            k(f"v_exp_f32 v{b+r}, v{b+r}")
        k("s_nop 0")
        for r in range(8):
            k(f"v_cvt_pk_bf16_f32 v{b+r}, v{b+2*r}, v{b+2*r+1}")
        k(f"s_waitcnt vmcnt({16-2*j})\ns_nop 0")
        k(f"v_mfma_f32_32x32x16_bf16 v[240:255], v[{12+8*j}:{15+8*j}], v[{b}:{b+3}], v[240:255]")
        k(f"v_mfma_f32_32x32x16_bf16 v[240:255], v[{16+8*j}:{19+8*j}], v[{b+4}:{b+7}], v[240:255]")
    stamp(k, 6)
    k(f"""v_lshlrev_b32 v4, 4, v2
    v_lshl_add_u32 v4, v1, 10, v4
    v_lshl_add_u32 v4, v3, 3, v4
    s_lshl_b32 s15, s12, 15
    s_add_u32 s16, s15, {OB}
    s_nop 7
    v_rcp_f32 v84, v248
    s_nop 0""")
    for r in range(8): k(f"v_mul_f32 v{240+r}, v{240+r}, v84")
    k("""v_cvt_pk_bf16_f32 v240, v240, v241
    v_cvt_pk_bf16_f32 v241, v242, v243
    v_cvt_pk_bf16_f32 v242, v244, v245
    v_cvt_pk_bf16_f32 v243, v246, v247
    buffer_store_dwordx2 v[240:241], v4, s[8:11], s16 offen
    buffer_store_dwordx2 v[242:243], v4, s[8:11], s16 offen offset:512""")
    if zero_st:
        k(f"""s_cmp_ge_u32 s2, 16
        s_cbranch_scc1 {name}_nz
        v_mov_b32 v5, 0
        s_lshl_b32 s17, s2, 10
        s_add_u32 s17, s17, {ST1}
        v_lshlrev_b32 v6, 2, v0
        buffer_store_dword v5, v6, s[8:11], s17 offen""")
        k.label(name + "_nz")
    stamp(k, 7); stamp_out(k, 8, 300)
    footer(k)
    return k.text(), desc(name, 256)

def k5():
    name = "oproj1_kernel"; k = K(name)
    header2(k, 256, [("oproj1_kernel", [f"s_mov_b32 s40, {XT1}", "s_mov_b32 s42, 0"]), ("oproj2_kernel", [f"s_mov_b32 s40, {XT3}", "s_mov_b32 s42, 1"])])
    stamp(k, 0)
    k("""s_load_dwordx2 s[4:5], s[0:1], 112
    s_load_dwordx2 s[6:7], s[0:1], 96
    s_waitcnt lgkmcnt(0)""")
    stamp(k, 1)
    srd(k, 8, 4, WS_BYTES)
    srd(k, 24, 6, 0x200000)
    k(f"""s_and_b32 s12, s2, 1
    s_lshl_b32 s12, s12, 3
    s_bfe_u32 s13, s2, 0x30003
    s_add_u32 s12, s12, s13
    s_bfe_u32 s13, s2, 0x20001
    s_lshl_b32 s13, s13, 2
    s_lshr_b32 s14, s2, 6
    s_add_u32 s13, s13, s14
    v_and_b32 v1, 31, v0
    v_bfe_u32 v2, v0, 5, 1
    v_lshrrev_b32 v4, 6, v0
    v_lshl_add_u32 v6, v4, 5, v1
    v_and_b32 v5, 63, v0
    v_lshlrev_b32 v5, 4, v5
    v_lshl_add_u32 v8, v4, 15, v5
    v_lshl_add_u32 v7, v4, 13, v5
    s_lshl_b32 s14, s12, 15
    s_add_u32 s14, s14, {WOT}
    s_add_u32 s19, s14, 4096
    s_lshl_b32 s15, s13, 17
    s_add_u32 s15, s15, {OB}""")
    for s in range(8):
        k(f"buffer_load_dwordx4 v[{192+4*s}:{195+4*s}], v7, s[8:11], s{14 if s < 4 else 19} offen offset:{1024*(s%4)}")
    for s in range(32):
        k(f"buffer_load_dwordx4 v[{64+4*s}:{67+4*s}], v8, s[8:11], s15 offen offset:{1024*(s%4)}")
        if s % 4 == 3 and s < 31: k("s_add_u32 s15, s15, 4096")
    k(f"""v_lshlrev_b32 v9, 14, v2
    v_lshl_add_u32 v9, v6, 1, v9
    s_lshl_b32 s16, s12, 17
    s_lshl_b32 s17, s13, 8
    s_add_u32 s16, s16, s17
    s_add_u32 s17, s16, {XT2}
    s_add_u32 s16, s16, s40""")
    for r in range(16):
        k(f"s_add_u32 s18, s16, {(8*(r//4)+r%4)*4096}\nbuffer_load_ushort v{32+r}, v9, s[8:11], s18 offen")
    for s in range(8):
        k(f"s_waitcnt vmcnt({55-s})\nds_write_b128 v7, v[{192+4*s}:{195+4*s}] offset:{1024*s}")
    k("s_waitcnt lgkmcnt(0)\ns_barrier")
    stamp(k, 2)
    for s in range(32):
        k(f"ds_read_b128 a[{4*s}:{4*s+3}], v5 offset:{1024*s}")
    for s in range(32):
        k(f"s_waitcnt vmcnt({47-s}) lgkmcnt({min(15, 31-s)})")
        k(f"v_mfma_f32_32x32x16_bf16 v[16:31], a[{4*s}:{4*s+3}], v[{64+4*s}:{67+4*s}], {'0' if s == 0 else 'v[16:31]'}")
    stamp(k, 3)
    k("s_waitcnt vmcnt(0)\ns_nop 7\ns_nop 3\nv_mov_b32 v50, 0\nv_mov_b32 v51, 0")
    for r in range(0, 16, 2):
        k(f"""v_cvt_pk_bf16_f32 v48, v{16+r}, v{17+r}
        v_lshlrev_b32 v{16+r}, 16, v48
        v_and_b32 v{17+r}, 0xffff0000, v48
        v_lshlrev_b32 v{32+r}, 16, v{32+r}
        v_lshlrev_b32 v{33+r}, 16, v{33+r}
        v_pk_add_f32 v[{16+r}:{17+r}], v[{16+r}:{17+r}], v[{32+r}:{33+r}]
        v_cvt_pk_bf16_f32 v{32+r//2}, v{16+r}, v{17+r}""")
    k('s_cmp_eq_u32 s42, 0\ns_cbranch_scc1 oproj_mid')
    k("""v_lshlrev_b32 v10, 10, v6
    v_lshl_add_u32 v10, v2, 3, v10
    s_lshl_b32 s18, s13, 17
    s_lshl_b32 s19, s12, 6
    s_add_u32 s18, s18, s19""")
    for q in range(4):
        k(f"buffer_store_dwordx2 v[{32+2*q}:{33+2*q}], v10, s[24:27], s18 offen offset:{16*q}")
    k('s_endpgm'); k.label('oproj_mid')
    for r in range(0, 16, 2):
        unpack(k, 48, 49, 32+r//2)
        k(f"""v_add_f32 v50, v50, v48
        v_fmac_f32 v51, v48, v48
        v_add_f32 v50, v50, v49
        v_fmac_f32 v51, v49, v49
        s_add_u32 s18, s17, {(8*(r//4)+r%4)*4096}
        s_add_u32 s19, s17, {(8*(r//4)+r%4+1)*4096}
        buffer_store_short v{32+r//2}, v9, s[8:11], s18 offen
        buffer_store_short_d16_hi v{32+r//2}, v9, s[8:11], s19 offen""")
    k(f"""v_mov_b32 v52, v50
    v_mov_b32 v53, v51
    s_nop 1
    v_permlane32_swap_b32 v50, v52
    v_permlane32_swap_b32 v51, v53
    v_add_f32 v50, v50, v52
    v_add_f32 v51, v51, v53
    v_cmp_eq_u32 vcc, 1, v2
    s_nop 1
    v_cndmask_b32 v50, v50, v51, vcc
    v_lshlrev_b32 v10, 3, v6
    v_lshl_add_u32 v10, v2, 2, v10
    s_lshl_b32 s18, s13, 10
    s_add_u32 s18, s18, {ST1}
    buffer_atomic_add_f32 v50, v10, s[8:11], s18 offen""")
    stamp(k, 4); stamp_out(k, 5)
    footer(k)
    return k.text(), desc(name, 224+128, 224) + "\n.p2align 6\n" + desc("oproj2_kernel", 224+128, 224)
```

```python
from gen_common import *
def k4(name, zero_st):
    k = K(name); header(k, 512)
    stamp(k, 0)
    k("""s_load_dwordx2 s[4:5], s[0:1], 112
    s_waitcnt lgkmcnt(0)""")
    srd(k, 8, 4, WS_BYTES)
    stamp(k, 1)
    k(f"""s_and_b32 s13, s2, 1
    s_lshl_b32 s13, s13, 2
    s_bfe_u32 s12, s2, 0x20003
    s_add_u32 s13, s13, s12
    s_bfe_u32 s12, s2, 0x20001
    s_lshl_b32 s12, s12, 4
    s_lshr_b32 s14, s2, 5
    s_add_u32 s12, s12, s14
    v_lshrrev_b32 v1, 6, v0
    s_lshl_b32 s14, s13, 2
    v_add_u32 v1, s14, v1
    v_and_b32 v2, 31, v0
    v_bfe_u32 v3, v0, 5, 1
    v_and_b32 v4, 63, v0
    v_lshlrev_b32 v4, 4, v4
    v_lshl_add_u32 v4, v1, 16, v4
    s_lshl_b32 s15, s12, 10
    s_add_u32 s16, s15, {QB}
    buffer_load_dwordx4 v[8:11], v4, s[8:11], s16 offen""")
    k(f"s_add_u32 s17, s15, {KB - 8192}")
    for j in range(9):
        k(f"buffer_load_dwordx4 v[{12+4*j}:{15+4*j}], v4, s[8:11], s17 offen offset:{1024*(j%4)}")
        if j % 4 == 3: k("s_add_u32 s17, s17, 4096")
    stamp(k, 2)
    k("v_mov_b32 v7, 0xf149f2ca\nv_lshlrev_b32 v5, 2, v3\nv_sub_u32 v5, v2, v5")
    for r in range(0, 16, 4):
        for i in range(4): k(f"v_cmp_gt_i32 s[{30+2*i}:{31+2*i}], {8*(r//4)+i}, v5")
        for i in range(4): k(f"v_cndmask_b32 v{48+r+i}, v7, 0, s[{30+2*i}:{31+2*i}]\nv_cndmask_b32 v{64+r+i}, 0, v7, s[{30+2*i}:{31+2*i}]")
    for j in range(9):
        k(f"s_waitcnt vmcnt({8-j})")
        c = "v[48:63]" if j == 0 else ("v[64:79]" if j == 8 else "0")
        k(f"v_mfma_f32_32x32x16_bf16 v[{96+16*j}:{111+16*j}], v[{12+4*j}:{15+4*j}], v[8:11], {c}")
    stamp(k, 3)
    k(f"""s_add_u32 s17, s15, {VT - 8192}
    s_sub_u32 s18, {CONST}, s17
    s_add_u32 s19, s18, 0x4000
    v_and_b32 v5, 27, v2
    v_cmp_eq_u32 vcc, 16, v5
    v_mov_b32 v5, s19
    v_mov_b32 v6, s18
    v_cndmask_b32 v5, v5, v6, vcc
    v_lshlrev_b32 v6, 16, v1
    v_lshl_add_u32 v6, v2, 4, v6
    v_lshl_add_u32 v6, v3, 8, v6
    v_cmp_gt_u32 vcc, 16, v2
    s_nop 7
    v_cndmask_b32 v6, v5, v6, vcc""")
    for j in range(18):
        k(f"buffer_load_dwordx4 v[{12+4*j}:{15+4*j}], v6, s[8:11], s17 offen offset:{512*(j%8)}")
        if j % 8 == 7: k("s_add_u32 s17, s17, 4096")
    for j in range(8):
        k(f"s_cmp_ge_u32 s12, {8-j}\ns_cbranch_scc1 {name}_mk")
        for r in range(16): k(f"v_mov_b32 v{96+16*j+r}, v7")
    k.label(name + "_mk")
    stamp(k, 4)
    k("v_max3_f32 v84, v96, v97, v98")
    r = 99
    while r + 1 < 240:
        k(f"v_max3_f32 v84, v84, v{r}, v{r+1}"); r += 2
    k("v_max_f32 v84, v84, v239")
    k("""v_mov_b32 v85, v84
    s_nop 1
    v_permlane32_swap_b32 v84, v85
    v_max_f32 v84, v84, v85
    s_mov_b32 s22, 0x3eb8aa3b
    s_mov_b32 s23, 0x3eb8aa3b
    v_mul_f32 v84, s22, v84
    v_mov_b32 v85, v84""")
    stamp(k, 5)
    for r in range(16): k(f"v_mov_b32 v{240+r}, 0")
    for j in range(9):
        b = 96 + 16*j
        for r in range(0, 16, 2):
            k(f"v_pk_fma_f32 v[{b+r}:{b+r+1}], v[{b+r}:{b+r+1}], s[22:23], v[84:85] neg_lo:[0,0,1] neg_hi:[0,0,1]")
        for r in range(16):
            k(f"v_exp_f32 v{b+r}, v{b+r}")
        k("s_nop 0")
        for r in range(8):
            k(f"v_cvt_pk_bf16_f32 v{b+r}, v{b+2*r}, v{b+2*r+1}")
        k(f"s_waitcnt vmcnt({16-2*j})\ns_nop 0")
        k(f"v_mfma_f32_32x32x16_bf16 v[240:255], v[{12+8*j}:{15+8*j}], v[{b}:{b+3}], v[240:255]")
        k(f"v_mfma_f32_32x32x16_bf16 v[240:255], v[{16+8*j}:{19+8*j}], v[{b+4}:{b+7}], v[240:255]")
    stamp(k, 6)
    k(f"""v_lshlrev_b32 v4, 4, v2
    v_lshl_add_u32 v4, v1, 10, v4
    v_lshl_add_u32 v4, v3, 3, v4
    s_lshl_b32 s15, s12, 15
    s_add_u32 s16, s15, {OB}
    s_nop 7
    v_rcp_f32 v84, v248
    s_nop 0""")
    for r in range(8): k(f"v_mul_f32 v{240+r}, v{240+r}, v84")
    k("""v_cvt_pk_bf16_f32 v240, v240, v241
    v_cvt_pk_bf16_f32 v241, v242, v243
    v_cvt_pk_bf16_f32 v242, v244, v245
    v_cvt_pk_bf16_f32 v243, v246, v247
    buffer_store_dwordx2 v[240:241], v4, s[8:11], s16 offen
    buffer_store_dwordx2 v[242:243], v4, s[8:11], s16 offen offset:512""")
    if zero_st:
        k(f"""s_cmp_ge_u32 s2, 16
        s_cbranch_scc1 {name}_nz
        v_mov_b32 v5, 0
        s_lshl_b32 s17, s2, 10
        s_add_u32 s17, s17, {ST1}
        v_lshlrev_b32 v6, 2, v0
        buffer_store_dword v5, v6, s[8:11], s17 offen""")
        k.label(name + "_nz")
    stamp(k, 7); stamp_out(k, 8, 300)
    footer(k)
    return k.text(), desc(name, 256)

def k5():
    name = "oproj1_kernel"; k = K(name)
    header2(k, 256, [("oproj1_kernel", [f"s_mov_b32 s40, {XT1}", "s_mov_b32 s42, 0"]), ("oproj2_kernel", [f"s_mov_b32 s40, {XT3}", "s_mov_b32 s42, 1"])])
    stamp(k, 0)
    k("""s_load_dwordx2 s[4:5], s[0:1], 112
    s_load_dwordx2 s[6:7], s[0:1], 96
    s_waitcnt lgkmcnt(0)""")
    stamp(k, 1)
    srd(k, 8, 4, WS_BYTES)
    srd(k, 24, 6, 0x200000)
    k(f"""s_and_b32 s12, s2, 1
    s_lshl_b32 s12, s12, 3
    s_bfe_u32 s13, s2, 0x30003
    s_add_u32 s12, s12, s13
    s_bfe_u32 s13, s2, 0x20001
    s_lshl_b32 s13, s13, 2
    s_lshr_b32 s14, s2, 6
    s_add_u32 s13, s13, s14
    v_and_b32 v1, 31, v0
    v_bfe_u32 v2, v0, 5, 1
    v_lshrrev_b32 v4, 6, v0
    v_lshl_add_u32 v6, v4, 5, v1
    v_and_b32 v5, 63, v0
    v_lshlrev_b32 v5, 4, v5
    v_lshl_add_u32 v8, v4, 15, v5
    v_lshl_add_u32 v7, v4, 13, v5
    s_lshl_b32 s14, s12, 15
    s_add_u32 s14, s14, {WOT}
    s_add_u32 s19, s14, 4096
    s_lshl_b32 s15, s13, 17
    s_add_u32 s15, s15, {OB}""")
    for s in range(8):
        k(f"buffer_load_dwordx4 v[{192+4*s}:{195+4*s}], v7, s[8:11], s{14 if s < 4 else 19} offen offset:{1024*(s%4)}")
    k(f"""v_lshlrev_b32 v9, 14, v2
    v_lshl_add_u32 v9, v6, 1, v9
    s_lshl_b32 s16, s12, 17
    s_lshl_b32 s17, s13, 8
    s_add_u32 s16, s16, s17
    s_add_u32 s17, s16, {XT2}
    s_add_u32 s16, s16, s40""")
    for r in range(16):
        k(f"s_add_u32 s18, s16, {(8*(r//4)+r%4)*4096}\nbuffer_load_ushort v{32+r}, v9, s[8:11], s18 offen")
    def oload(s):
        k(f"buffer_load_dwordx4 v[{64+4*s}:{67+4*s}], v8, s[8:11], s15 offen offset:{1024*(s%4)}")
        if s % 4 == 3 and s < 31: k("s_add_u32 s15, s15, 4096")
    PF = 12
    for s in range(PF): oload(s)
    for s in range(8):
        k(f"s_waitcnt vmcnt({16+PF+7-s})\nds_write_b128 v7, v[{192+4*s}:{195+4*s}] offset:{1024*s}")
    k("s_waitcnt lgkmcnt(0)\ns_barrier")
    stamp(k, 2)
    for s in range(32):
        k(f"ds_read_b128 a[{4*s}:{4*s+3}], v5 offset:{1024*s}")
    for s in range(32):
        if s + PF < 32: oload(s+PF)
        k(f"s_waitcnt vmcnt({min(PF, 31-s)}) lgkmcnt({min(15, 31-s)})")
        k(f"v_mfma_f32_32x32x16_bf16 v[16:31], a[{4*s}:{4*s+3}], v[{64+4*s}:{67+4*s}], {'0' if s == 0 else 'v[16:31]'}")
    stamp(k, 3)
    k("s_waitcnt vmcnt(0)\ns_nop 7\ns_nop 3\nv_mov_b32 v50, 0\nv_mov_b32 v51, 0")
    for r in range(0, 16, 2):
        k(f"""v_cvt_pk_bf16_f32 v48, v{16+r}, v{17+r}
        v_lshlrev_b32 v{16+r}, 16, v48
        v_and_b32 v{17+r}, 0xffff0000, v48
        v_lshlrev_b32 v{32+r}, 16, v{32+r}
        v_lshlrev_b32 v{33+r}, 16, v{33+r}
        v_pk_add_f32 v[{16+r}:{17+r}], v[{16+r}:{17+r}], v[{32+r}:{33+r}]
        v_cvt_pk_bf16_f32 v{32+r//2}, v{16+r}, v{17+r}""")
    k('s_cmp_eq_u32 s42, 0\ns_cbranch_scc1 oproj_mid')
    k("""v_lshlrev_b32 v10, 10, v6
    v_lshl_add_u32 v10, v2, 3, v10
    s_lshl_b32 s18, s13, 17
    s_lshl_b32 s19, s12, 6
    s_add_u32 s18, s18, s19""")
    for q in range(4):
        k(f"buffer_store_dwordx2 v[{32+2*q}:{33+2*q}], v10, s[24:27], s18 offen offset:{16*q}")
    k('s_endpgm'); k.label('oproj_mid')
    for r in range(0, 16, 2):
        unpack(k, 48, 49, 32+r//2)
        k(f"""v_add_f32 v50, v50, v48
        v_fmac_f32 v51, v48, v48
        v_add_f32 v50, v50, v49
        v_fmac_f32 v51, v49, v49
        s_add_u32 s18, s17, {(8*(r//4)+r%4)*4096}
        s_add_u32 s19, s17, {(8*(r//4)+r%4+1)*4096}
        buffer_store_short v{32+r//2}, v9, s[8:11], s18 offen
        buffer_store_short_d16_hi v{32+r//2}, v9, s[8:11], s19 offen""")
    k(f"""v_mov_b32 v52, v50
    v_mov_b32 v53, v51
    s_nop 1
    v_permlane32_swap_b32 v50, v52
    v_permlane32_swap_b32 v51, v53
    v_add_f32 v50, v50, v52
    v_add_f32 v51, v51, v53
    v_cmp_eq_u32 vcc, 1, v2
    s_nop 1
    v_cndmask_b32 v50, v50, v51, vcc
    v_lshlrev_b32 v10, 3, v6
    v_lshl_add_u32 v10, v2, 2, v10
    s_lshl_b32 s18, s13, 10
    s_add_u32 s18, s18, {ST1}
    buffer_atomic_add_f32 v50, v10, s[8:11], s18 offen""")
    stamp(k, 4); stamp_out(k, 5)
    footer(k)
    return k.text(), desc(name, 224+128, 224) + "\n.p2align 6\n" + desc("oproj2_kernel", 224+128, 224)
```

```python
from gen_common import *
def k4(name, zero_st):
    k = K(name); header(k, 512)
    stamp(k, 0)
    k("""s_load_dwordx2 s[4:5], s[0:1], 112
    s_waitcnt lgkmcnt(0)""")
    srd(k, 8, 4, WS_BYTES)
    stamp(k, 1)
    k(f"""s_and_b32 s13, s2, 1
    s_lshl_b32 s13, s13, 2
    s_bfe_u32 s12, s2, 0x20003
    s_add_u32 s13, s13, s12
    s_bfe_u32 s12, s2, 0x20001
    s_lshl_b32 s12, s12, 4
    s_lshr_b32 s14, s2, 5
    s_add_u32 s12, s12, s14
    v_lshrrev_b32 v1, 6, v0
    s_lshl_b32 s14, s13, 2
    v_add_u32 v1, s14, v1
    v_and_b32 v2, 31, v0
    v_bfe_u32 v3, v0, 5, 1
    v_and_b32 v4, 63, v0
    v_lshlrev_b32 v4, 4, v4
    v_lshl_add_u32 v4, v1, 16, v4
    s_lshl_b32 s15, s12, 10
    s_add_u32 s16, s15, {QB}
    buffer_load_dwordx4 v[8:11], v4, s[8:11], s16 offen""")
    k(f"s_add_u32 s17, s15, {KB - 8192}")
    for j in range(9):
        k(f"buffer_load_dwordx4 v[{12+4*j}:{15+4*j}], v4, s[8:11], s17 offen offset:{1024*(j%4)}")
        if j % 4 == 3: k("s_add_u32 s17, s17, 4096")
    stamp(k, 2)
    k("v_mov_b32 v7, 0xf149f2ca\nv_lshlrev_b32 v5, 2, v3\nv_sub_u32 v5, v2, v5")
    k("v_mov_b32 v94, 0xffff0000")
    for r in range(16): k(f"v_cmp_gt_i32 s[{24+2*r}:{25+2*r}], {8*(r//4)+r%4}, v5")
    for p in range(8): k(f"v_cndmask_b32 v{86+p}, 0, v94, s[{26+4*p}:{27+4*p}]")
    for p in range(8): k(f"v_cndmask_b32 v{86+p}, v{86+p}, -1, s[{24+4*p}:{25+4*p}]")
    for j in range(9):
        k(f"s_waitcnt vmcnt({8-j})")
        k(f"v_mfma_f32_32x32x16_bf16 v[{96+16*j}:{111+16*j}], v[{12+4*j}:{15+4*j}], v[8:11], 0")
    stamp(k, 3)
    k(f"""s_add_u32 s17, s15, {VT - 8192}
    s_sub_u32 s18, {CONST}, s17
    s_add_u32 s19, s18, 0x4000
    v_and_b32 v5, 27, v2
    v_cmp_eq_u32 vcc, 16, v5
    v_mov_b32 v5, s19
    v_mov_b32 v6, s18
    v_cndmask_b32 v5, v5, v6, vcc
    v_lshlrev_b32 v6, 16, v1
    v_lshl_add_u32 v6, v2, 4, v6
    v_lshl_add_u32 v6, v3, 8, v6
    v_cmp_gt_u32 vcc, 16, v2
    s_nop 7
    v_cndmask_b32 v6, v5, v6, vcc""")
    for j in range(18):
        k(f"buffer_load_dwordx4 v[{12+4*j}:{15+4*j}], v6, s[8:11], s17 offen offset:{512*(j%8)}")
        if j % 8 == 7: k("s_add_u32 s17, s17, 4096")
    for j in range(8):
        k(f"s_cmp_ge_u32 s12, {8-j}\ns_cbranch_scc1 {name}_mk")
        for r in range(16): k(f"v_mov_b32 v{96+16*j+r}, v7")
    k.label(name + "_mk")
    stamp(k, 4)
    for r in range(16): k(f"v_cndmask_b32 v{96+r}, v{224+r}, v{96+r}, s[{24+2*r}:{25+2*r}]")
    k("v_max3_f32 v84, v112, v113, v114")
    r = 115
    while r + 1 < 224:
        k(f"v_max3_f32 v84, v84, v{r}, v{r+1}"); r += 2
    k("v_max_f32 v84, v84, v223")
    for r in range(0, 16, 2): k(f"v_max3_f32 v84, v84, v{96+r}, v{97+r}")
    k("""v_mov_b32 v85, v84
    s_nop 1
    v_permlane32_swap_b32 v84, v85
    v_max_f32 v84, v84, v85
    s_mov_b32 s22, 0x3eb8aa3b
    s_mov_b32 s23, 0x3eb8aa3b
    v_mul_f32 v84, s22, v84
    v_mov_b32 v85, v84""")
    stamp(k, 5)
    for r in range(16): k(f"v_mov_b32 v{240+r}, 0")
    for j in range(9):
        b = 96 + 16*j
        if j < 8:
            for r in range(0, 16, 2):
                k(f"v_pk_fma_f32 v[{b+r}:{b+r+1}], v[{b+r}:{b+r+1}], s[22:23], v[84:85] neg_lo:[0,0,1] neg_hi:[0,0,1]")
            for r in range(16):
                k(f"v_exp_f32 v{b+r}, v{b+r}")
            k("s_nop 0")
            for r in range(8):
                k(f"v_cvt_pk_bf16_f32 v{b+r}, v{b+2*r}, v{b+2*r+1}")
        if j == 0:
            for r in range(8): k(f"v_and_b32 v{104+r}, v{96+r}, v{86+r}")
            for r in range(8): k(f"v_xor_b32 v{224+r}, v{96+r}, v{104+r}")
            b = 104
        k(f"s_waitcnt vmcnt({16-2*j})\ns_nop 1")
        k(f"v_mfma_f32_32x32x16_bf16 v[240:255], v[{12+8*j}:{15+8*j}], v[{b}:{b+3}], v[240:255]")
        k(f"v_mfma_f32_32x32x16_bf16 v[240:255], v[{16+8*j}:{19+8*j}], v[{b+4}:{b+7}], v[240:255]")
    stamp(k, 6)
    k(f"""v_lshlrev_b32 v4, 4, v2
    v_lshl_add_u32 v4, v1, 10, v4
    v_lshl_add_u32 v4, v3, 3, v4
    s_lshl_b32 s15, s12, 15
    s_add_u32 s16, s15, {OB}
    s_nop 7
    v_rcp_f32 v84, v248
    s_nop 0""")
    for r in range(8): k(f"v_mul_f32 v{240+r}, v{240+r}, v84")
    k("""v_cvt_pk_bf16_f32 v240, v240, v241
    v_cvt_pk_bf16_f32 v241, v242, v243
    v_cvt_pk_bf16_f32 v242, v244, v245
    v_cvt_pk_bf16_f32 v243, v246, v247
    buffer_store_dwordx2 v[240:241], v4, s[8:11], s16 offen
    buffer_store_dwordx2 v[242:243], v4, s[8:11], s16 offen offset:512""")
    if zero_st:
        k(f"""s_cmp_ge_u32 s2, 16
        s_cbranch_scc1 {name}_nz
        v_mov_b32 v5, 0
        s_lshl_b32 s17, s2, 10
        s_add_u32 s17, s17, {ST1}
        v_lshlrev_b32 v6, 2, v0
        buffer_store_dword v5, v6, s[8:11], s17 offen""")
        k.label(name + "_nz")
    stamp(k, 7); stamp_out(k, 8, 300)
    footer(k)
    return k.text(), desc(name, 256)

def k5():
    name = "oproj1_kernel"; k = K(name)
    header2(k, 256, [("oproj1_kernel", [f"s_mov_b32 s40, {XT1}", "s_mov_b32 s42, 0"]), ("oproj2_kernel", [f"s_mov_b32 s40, {XT3}", "s_mov_b32 s42, 1"])])
    stamp(k, 0)
    k("""s_load_dwordx2 s[4:5], s[0:1], 112
    s_load_dwordx2 s[6:7], s[0:1], 96
    s_waitcnt lgkmcnt(0)""")
    stamp(k, 1)
    srd(k, 8, 4, WS_BYTES)
    srd(k, 24, 6, 0x200000)
    k(f"""s_and_b32 s12, s2, 1
    s_lshl_b32 s12, s12, 3
    s_bfe_u32 s13, s2, 0x30003
    s_add_u32 s12, s12, s13
    s_bfe_u32 s13, s2, 0x20001
    s_lshl_b32 s13, s13, 2
    s_lshr_b32 s14, s2, 6
    s_add_u32 s13, s13, s14
    v_and_b32 v1, 31, v0
    v_bfe_u32 v2, v0, 5, 1
    v_lshrrev_b32 v4, 6, v0
    v_lshl_add_u32 v6, v4, 5, v1
    v_and_b32 v5, 63, v0
    v_lshlrev_b32 v5, 4, v5
    v_lshl_add_u32 v8, v4, 15, v5
    v_lshl_add_u32 v7, v4, 13, v5
    s_lshl_b32 s14, s12, 15
    s_add_u32 s14, s14, {WOT}
    s_add_u32 s19, s14, 4096
    s_lshl_b32 s15, s13, 17
    s_add_u32 s15, s15, {OB}""")
    for s in range(8):
        k(f"buffer_load_dwordx4 v[{192+4*s}:{195+4*s}], v7, s[8:11], s{14 if s < 4 else 19} offen offset:{1024*(s%4)}")
    k(f"""v_lshlrev_b32 v9, 14, v2
    v_lshl_add_u32 v9, v6, 1, v9
    s_lshl_b32 s16, s12, 17
    s_lshl_b32 s17, s13, 8
    s_add_u32 s16, s16, s17
    s_add_u32 s17, s16, {XT2}
    s_add_u32 s16, s16, s40""")
    for r in range(16):
        k(f"s_add_u32 s18, s16, {(8*(r//4)+r%4)*4096}\nbuffer_load_ushort v{32+r}, v9, s[8:11], s18 offen")
    def oload(s):
        k(f"buffer_load_dwordx4 v[{64+4*s}:{67+4*s}], v8, s[8:11], s15 offen offset:{1024*(s%4)}")
        if s % 4 == 3 and s < 31: k("s_add_u32 s15, s15, 4096")
    PF = 12
    for s in range(PF): oload(s)
    for s in range(8):
        k(f"s_waitcnt vmcnt({16+PF+7-s})\nds_write_b128 v7, v[{192+4*s}:{195+4*s}] offset:{1024*s}")
    k("s_waitcnt lgkmcnt(0)\ns_barrier")
    stamp(k, 2)
    for s in range(32):
        k(f"ds_read_b128 a[{4*s}:{4*s+3}], v5 offset:{1024*s}")
    for s in range(32):
        if s + PF < 32: oload(s+PF)
        k(f"s_waitcnt vmcnt({min(PF, 31-s)}) lgkmcnt({min(15, 31-s)})")
        k(f"v_mfma_f32_32x32x16_bf16 v[16:31], a[{4*s}:{4*s+3}], v[{64+4*s}:{67+4*s}], {'0' if s == 0 else 'v[16:31]'}")
    stamp(k, 3)
    k("s_waitcnt vmcnt(0)\ns_nop 7\ns_nop 3\nv_mov_b32 v50, 0\nv_mov_b32 v51, 0")
    for r in range(0, 16, 2):
        k(f"""v_cvt_pk_bf16_f32 v48, v{16+r}, v{17+r}
        v_lshlrev_b32 v{16+r}, 16, v48
        v_and_b32 v{17+r}, 0xffff0000, v48
        v_lshlrev_b32 v{32+r}, 16, v{32+r}
        v_lshlrev_b32 v{33+r}, 16, v{33+r}
        v_pk_add_f32 v[{16+r}:{17+r}], v[{16+r}:{17+r}], v[{32+r}:{33+r}]
        v_cvt_pk_bf16_f32 v{32+r//2}, v{16+r}, v{17+r}""")
    k('s_cmp_eq_u32 s42, 0\ns_cbranch_scc1 oproj_mid')
    k("""v_lshlrev_b32 v10, 10, v6
    v_lshl_add_u32 v10, v2, 3, v10
    s_lshl_b32 s18, s13, 17
    s_lshl_b32 s19, s12, 6
    s_add_u32 s18, s18, s19""")
    for q in range(4):
        k(f"buffer_store_dwordx2 v[{32+2*q}:{33+2*q}], v10, s[24:27], s18 offen offset:{16*q}")
    k('s_endpgm'); k.label('oproj_mid')
    for r in range(0, 16, 2):
        unpack(k, 48, 49, 32+r//2)
        k(f"""v_add_f32 v50, v50, v48
        v_fmac_f32 v51, v48, v48
        v_add_f32 v50, v50, v49
        v_fmac_f32 v51, v49, v49
        s_add_u32 s18, s17, {(8*(r//4)+r%4)*4096}
        s_add_u32 s19, s17, {(8*(r//4)+r%4+1)*4096}
        buffer_store_short v{32+r//2}, v9, s[8:11], s18 offen
        buffer_store_short_d16_hi v{32+r//2}, v9, s[8:11], s19 offen""")
    k(f"""v_mov_b32 v52, v50
    v_mov_b32 v53, v51
    s_nop 1
    v_permlane32_swap_b32 v50, v52
    v_permlane32_swap_b32 v51, v53
    v_add_f32 v50, v50, v52
    v_add_f32 v51, v51, v53
    v_cmp_eq_u32 vcc, 1, v2
    s_nop 1
    v_cndmask_b32 v50, v50, v51, vcc
    v_lshlrev_b32 v10, 3, v6
    v_lshl_add_u32 v10, v2, 2, v10
    s_lshl_b32 s18, s13, 10
    s_add_u32 s18, s18, {ST1}
    buffer_atomic_add_f32 v50, v10, s[8:11], s18 offen""")
    stamp(k, 4); stamp_out(k, 5)
    footer(k)
    return k.text(), desc(name, 224+128, 224) + "\n.p2align 6\n" + desc("oproj2_kernel", 224+128, 224)
```

```python
from gen_common import *
def k1():
    k = K("prep_kernel"); header(k, 664)
    k("""s_cmp_ge_u32 s2, 128
    s_cbranch_scc1 prep_kgen
    s_load_dwordx2 s[4:5], s[0:1], 0
    s_load_dwordx2 s[6:7], s[0:1], 80
    s_load_dwordx2 s[8:9], s[0:1], 88
    s_load_dwordx2 s[10:11], s[0:1], 112
    s_waitcnt lgkmcnt(0)""")
    srd(k, 16, 10, WS_BYTES)
    k("""s_cmp_ge_u32 s2, 64
    s_cbranch_scc1 prep_m1""")
    srd(k, 12, 4, 0x200000)
    k(f"""s_lshl_b32 s20, s2, 15
    s_mov_b32 s21, 1024
    s_lshl_b32 s22, s2, 6
    s_add_u32 s22, s22, {XT0}
    s_mov_b32 s23, 0x100000
    s_mov_b32 s24, 0
    v_lshlrev_b32 v50, 12, v0
    s_branch prep_go""")
    k.label("prep_m1")
    k("""s_cmp_ge_u32 s2, 112
    s_cbranch_scc1 prep_m2""")
    srd(k, 12, 6, 0x180000)
    k(f"""s_sub_u32 s3, s2, 64
    s_lshr_b32 s25, s3, 4
    s_and_b32 s26, s3, 15
    s_mul_i32 s20, s26, 98304
    s_lshl_b32 s27, s25, 10
    s_add_u32 s20, s20, s27
    s_mov_b32 s21, 3072
    s_lshl_b32 s22, s25, 14
    s_lshl_b32 s27, s26, 10
    s_add_u32 s22, s22, s27
    s_add_u32 s22, s22, {WQT}
    s_mov_b32 s23, 786432
    s_mov_b32 s24, 1
    v_lshrrev_b32 v6, 4, v0
    v_mul_u32_u24 v6, 49152, v6
    v_and_b32 v7, 15, v0
    v_lshl_add_u32 v50, v7, 4, v6
    s_branch prep_go""")
    k.label("prep_m2")
    srd(k, 12, 8, 0x80000)
    k(f"""s_sub_u32 s3, s2, 112
    s_lshl_b32 s20, s3, 15
    s_mov_b32 s21, 1024
    s_lshl_b32 s22, s3, 11
    s_add_u32 s22, s22, {WOT}
    s_mov_b32 s23, 262144
    s_mov_b32 s24, 2
    v_lshrrev_b32 v6, 5, v0
    v_lshlrev_b32 v6, 15, v6
    v_and_b32 v7, 31, v0
    v_lshl_add_u32 v50, v7, 4, v6""")
    k.label("prep_go")
    k("""v_lshrrev_b32 v1, 3, v0
    v_and_b32 v2, 7, v0
    v_mul_lo_u32 v3, v1, s21
    v_lshl_add_u32 v3, v2, 4, v3
    v_mul_u32_u24 v4, 1088, v1
    v_lshl_add_u32 v4, v2, 4, v4""")
    for i in range(8):
        k(f"buffer_load_dwordx4 v[{8+4*i}:{11+4*i}], v3, s[12:15], s20 offen offset:{128*i}")
    k("""v_and_b32 v5, 15, v0
    v_lshrrev_b32 v5, 2, v5
    v_mul_u32_u24 v5, 1088, v5
    v_and_b32 v6, 0xf0, v0
    v_and_b32 v7, 3, v0
    v_lshl_add_u32 v6, v7, 2, v6
    v_lshl_add_u32 v5, v6, 1, v5""")
    for i in range(8):
        k(f"s_waitcnt vmcnt({7-i})\nds_write_b128 v4, v[{8+4*i}:{11+4*i}] offset:{128*i}")
    k("""s_cmp_lg_u32 s24, 0
    s_cbranch_scc1 prep_nostats
    v_mov_b32 v60, 0
    v_mov_b32 v61, 0""")
    for r in range(8, 40):
        unpack(k, 62, 63, r)
        k("""v_add_f32 v60, v60, v62
        v_fmac_f32 v61, v62, v62
        v_add_f32 v60, v60, v63
        v_fmac_f32 v61, v63, v63""")
    for dpp in ("quad_perm:[1,0,3,2]", "quad_perm:[2,3,0,1]", "row_half_mirror"):
        k(f"""s_nop 1
        v_add_f32_dpp v60, v60, v60 {dpp} row_mask:0xf bank_mask:0xf
        v_add_f32_dpp v61, v61, v61 {dpp} row_mask:0xf bank_mask:0xf""")
    k(f"""s_lshl_b32 s3, s2, 8
    s_add_u32 s3, s3, {ST0}
    v_lshlrev_b32 v62, 3, v1
    v_cmp_eq_u32 vcc, 0, v2
    s_and_saveexec_b64 s[28:29], vcc
    buffer_store_dwordx2 v[60:61], v62, s[16:19], s3 offen
    s_mov_b64 exec, s[28:29]""")
    k.label("prep_nostats")
    k("""s_waitcnt lgkmcnt(0)
    s_barrier
    s_add_u32 s25, s23, s22
    s_cmp_eq_u32 s24, 1
    s_cbranch_scc1 prep_perm
    s_cmp_eq_u32 s24, 2
    s_cbranch_scc1 prep_wo""")
    for variant in (0, 1, 2):
        if variant == 1: k.label("prep_perm")
        if variant == 2: k.label("prep_wo")
        for p in range(2):
            for i in range(8):
                if variant != 1: d = 8 + 16*p + 2*i
                else: d = 8 + 16*p + (4*i if i < 4 else 4*(i-4)+2)
                k(f"ds_read_b64_tr_b16 v[{d}:{d+1}], v5 offset:{4352*i+512*p}")
        for p in range(2):
            k(f"s_waitcnt lgkmcnt({8*(1-p)})")
            for j in range(4):
                k(f"buffer_store_dwordx4 v[{8+16*p+4*j}:{11+16*p+4*j}], v50, s[16:19], s{22 if p==0 else 25} offen offset:{(16,256,512)[variant]*j}")
        k("s_endpgm")
    k.label("prep_cs")
    k("""s_load_dwordx2 s[6:7], s[0:1], 80
    s_load_dwordx2 s[10:11], s[0:1], 112
    s_sub_u32 s3, s2, 640
    s_lshl_b32 s20, s3, 7
    v_lshrrev_b32 v1, 3, v0
    v_and_b32 v2, 7, v0
    v_mul_u32_u24 v3, 3072, v1
    v_lshl_add_u32 v3, v2, 4, v3
    v_lshlrev_b32 v4, 5, v0
    v_lshlrev_b32 v5, 2, v0
    s_waitcnt lgkmcnt(0)""")
    srd(k, 12, 6, 0x180000)
    srd(k, 16, 10, WS_BYTES)
    for i in range(16):
        k(f"buffer_load_dwordx4 v[{16+4*i}:{19+4*i}], v3, s[12:15], s20 offen")
        if i < 15: k("s_add_u32 s20, s20, 98304")
    for i in range(16):
        k(f"s_waitcnt vmcnt({15-i})")
        for d in range(4):
            src = 16 + 4*i + d
            if i == 0: k(f"v_lshlrev_b32 v{80+2*d}, 16, v{src}\nv_and_b32 v{81+2*d}, 0xffff0000, v{src}")
            else: k(f"v_lshlrev_b32 v{8+2*d}, 16, v{src}\nv_and_b32 v{9+2*d}, 0xffff0000, v{src}\nv_pk_add_f32 v[{80+2*d}:{81+2*d}], v[{80+2*d}:{81+2*d}], v[{8+2*d}:{9+2*d}]")
    k("""ds_write_b128 v4, v[80:83]
    ds_write_b128 v4, v[84:87] offset:16
    s_waitcnt lgkmcnt(0)
    s_barrier
    v_cmp_gt_u32 vcc, 64, v0
    s_and_saveexec_b64 s[28:29], vcc
    s_cbranch_execz prep_kernel_end""")
    for i in range(32): k(f"ds_read_b32 v{16+i}, v5 offset:{256*i}")
    k("s_waitcnt lgkmcnt(0)")
    for st in (16, 8, 4, 2):
        for i in range(0, st, 2): k(f"v_pk_add_f32 v[{16+i}:{17+i}], v[{16+i}:{17+i}], v[{16+st+i}:{17+st+i}]")
    k(f"""v_add_f32 v16, v16, v17
    s_lshl_b32 s20, s3, 8
    s_add_u32 s20, s20, {CS}
    buffer_store_dword v16, v5, s[16:19], s20 offen
    s_endpgm""")
    k.label("prep_kgen")
    k("""s_cmp_ge_u32 s2, 640
    s_cbranch_scc1 prep_cs
    s_sub_u32 s3, s2, 128
    s_load_dwordx4 s[4:7], s[0:1], 8
    s_load_dwordx4 s[8:11], s[0:1], 24
    s_load_dwordx4 s[12:15], s[0:1], 40
    s_load_dwordx2 s[16:17], s[0:1], 56
    s_load_dwordx2 s[18:19], s[0:1], 112
    v_and_b32 v1, 127, v0
    s_lshl_b32 s20, s3, 8
    v_lshl_add_u32 v2, v1, 1, s20
    s_lshl_b32 s21, s3, 1
    v_mov_b32 v3, s21
    s_waitcnt lgkmcnt(0)
    global_load_ushort v4, v2, s[4:5]
    global_load_ushort v5, v2, s[6:7]
    global_load_ushort v6, v2, s[8:9]
    global_load_ushort v7, v2, s[10:11]
    global_load_ushort v8, v2, s[12:13]
    global_load_ushort v9, v2, s[14:15]
    global_load_ushort v10, v3, s[16:17]""")
    srd(k, 24, 18, WS_BYTES)
    k(f"""s_cmp_lg_u32 s3, 5
    s_cbranch_scc1 prep_noconst
    v_mov_b32 v16, 0x3f803f80
    v_mov_b32 v17, 0x3f803f80
    v_mov_b32 v18, 0x3f803f80
    v_mov_b32 v19, 0x3f803f80
    v_mov_b32 v20, 0
    v_mov_b32 v21, 0
    v_mov_b32 v22, 0
    v_mov_b32 v23, 0
    v_lshlrev_b32 v11, 4, v0
    s_mov_b32 s22, {CONST}
    s_mov_b32 s23, {CONST + 0x1000}
    s_mov_b32 s28, {CONST + 0x2000}
    buffer_store_dwordx4 v[16:19], v11, s[24:27], s22 offen
    buffer_store_dwordx4 v[16:19], v11, s[24:27], s23 offen
    buffer_store_dwordx4 v[16:19], v11, s[24:27], s28 offen
    v_add_u32 v11, 0x4000, v11
    buffer_store_dwordx4 v[20:23], v11, s[24:27], s22 offen
    buffer_store_dwordx4 v[20:23], v11, s[24:27], s23 offen
    buffer_store_dwordx4 v[20:23], v11, s[24:27], s28 offen""")
    k.label("prep_noconst")
    k("""s_waitcnt vmcnt(0)
    v_lshlrev_b32 v4, 16, v4
    v_lshlrev_b32 v5, 16, v5
    v_lshlrev_b32 v6, 16, v6
    v_lshlrev_b32 v7, 16, v7
    v_lshlrev_b32 v8, 16, v8
    v_lshlrev_b32 v9, 16, v9
    v_lshlrev_b32 v10, 16, v10
    v_mul_f32 v10, 0x3fb8aa3b, v10
    v_exp_f32 v10, v10
    s_nop 0
    v_cvt_pk_bf16_f32 v10, v10, v10
    v_lshlrev_b32 v10, 16, v10
    v_mul_f32 v12, v10, v4
    v_mul_f32 v12, 0x3fb8aa3b, v12
    v_mul_f32 v13, v10, v5
    v_mul_f32 v13, 0x3e22f983, v13
    v_mul_f32 v6, v10, v6
    v_mul_f32 v7, v10, v7
    v_mul_f32 v14, v8, v6
    v_fma_f32 v14, -v9, v7, v14
    v_mul_f32 v15, v8, v7
    v_fma_f32 v15, v9, v6, v15
    v_mul_f32 v16, 0x43800000, v12
    v_mul_f32 v17, 0x43800000, v13
    v_exp_f32 v16, v16
    v_fract_f32 v17, v17
    v_sub_f32 v21, 0, v15
    v_sin_f32 v19, v17
    v_cos_f32 v18, v17
    v_mov_b32 v20, v14
    v_sub_f32 v23, 0, v14
    v_mov_b32 v22, v21
    v_mul_f32 v15, v19, v16
    v_mul_f32 v14, v18, v16
    v_lshlrev_b32 v2, 5, v1
    ds_write_b128 v2, v[12:15] offset:13312
    ds_write_b128 v2, v[20:23] offset:13328
    v_and_b32 v2, 3, v0
    v_lshlrev_b32 v2, 2, v2
    v_mov_b32 v3, 0
    ds_write_b32 v2, v3
    v_lshrrev_b32 v16, 6, v0
    v_and_b32 v17, 15, v0
    v_bfe_u32 v18, v0, 4, 2
    v_cvt_f32_u32 v21, v17
    v_mul_f32 v20, 0x41800000, v21
    v_lshlrev_b32 v19, 10, v16
    v_lshl_add_u32 v19, v18, 5, v19
    v_lshlrev_b32 v22, 10, v18
    v_lshl_add_u32 v22, v17, 4, v22
    v_lshl_add_u32 v22, v16, 2, v22
    s_waitcnt lgkmcnt(0)
    s_barrier
    ds_read_b128 v[24:27], v19 offset:13312
    ds_read_b128 v[28:31], v19 offset:13328""")
    for s in range(8):
        P = 24 if s % 2 == 0 else 32
        Pn = 32 if s % 2 == 0 else 24
        if s < 7: k(f"ds_read_b128 v[{Pn}:{Pn+3}], v19 offset:{13312+128*(s+1)}\nds_read_b128 v[{Pn+4}:{Pn+7}], v19 offset:{13328+128*(s+1)}\ns_waitcnt lgkmcnt(2)")
        else: k("s_waitcnt lgkmcnt(0)")
        k(f"""v_pk_mul_f32 v[40:41], v[20:21], v[{P}:{P+1}] op_sel:[0,0] op_sel_hi:[1,0]
        v_pk_mul_f32 v[42:43], v[20:21], v[{P}:{P+1}] op_sel:[0,1] op_sel_hi:[1,1]
        v_exp_f32 v40, v40
        v_exp_f32 v41, v41
        v_fract_f32 v42, v42
        v_fract_f32 v43, v43
        v_sin_f32 v44, v42
        v_sin_f32 v45, v43
        v_cos_f32 v46, v42
        v_cos_f32 v47, v43
        s_nop 0
        v_pk_mul_f32 v[66:67], v[44:45], v[40:41]
        v_pk_mul_f32 v[64:65], v[46:47], v[40:41]""")
        for w in range(4):
            re, im, A = 64+4*w, 66+4*w, 56+2*w
            k(f"""v_pk_mul_f32 v[{A}:{A+1}], v[{P+4}:{P+5}], v[{re}:{re+1}] op_sel:[0,0] op_sel_hi:[1,0]
            v_pk_fma_f32 v[{A}:{A+1}], v[{P+6}:{P+7}], v[{im}:{im+1}], v[{A}:{A+1}] op_sel:[0,0,0] op_sel_hi:[1,0,1]""")
            if w < 3:
                k(f"""v_pk_mul_f32 v[52:53], v[{im}:{im+1}], v[{im}:{im+1}]
                v_pk_add_f32 v[54:55], v[{re}:{re+1}], v[{re}:{re+1}]
                v_pk_fma_f32 v[{re+4}:{re+5}], v[{re}:{re+1}], v[{re}:{re+1}], v[52:53] neg_lo:[0,0,1] neg_hi:[0,0,1]
                v_pk_mul_f32 v[{im+4}:{im+5}], v[54:55], v[{im}:{im+1}]""")
            else: k("s_nop 1")
            if w == 0:
                k(f"""v_mul_f32 v52, v{im+4}, v{P+3}
                v_mul_f32 v53, v{im+4}, v{P+2}
                v_fma_f32 v{im+4}, v{re+4}, v{P+3}, v53
                v_fma_f32 v{re+4}, v{re+4}, v{P+2}, -v52""")
            c = 80+4*w; C = "0" if s == 0 else f"v[{c}:{c+3}]"
            k(f"""v_mfma_f32_16x16x4_f32 v[{c}:{c+3}], v{A}, v{re+1}, {C}
            v_mfma_f32_16x16x4_f32 v[{c}:{c+3}], v{A+1}, v{im+1}, v[{c}:{c+3}]""")
    k("""v_lshlrev_b32 v1, 3, v0
    v_sub_u32 v1, 2047, v1
    v_cmp_gt_u32 vcc, 2, v18
    s_nop 7""")
    for w in (0, 3, 1, 2):
        if w == 1: k("s_and_saveexec_b64 s[28:29], vcc")
        for r in range(4):
            k(f"ds_write_b32 v22, v{80+4*w+r} offset:{4*(4 + 64*r + 512*w + (512 if w else 0))}")
    k("s_mov_b64 exec, s[28:29]")
    for e in range(9):
        k(f"""v_subrev_u32 v{24+e}, {e}, v1
        v_max_i32 v{34+e}, 0, v{24+e}
        v_cvt_f32_u32 v{34+e}, v{34+e}
        v_min_i32 v{24+e}, 127, v{24+e}""")
    for e in range(0, 9, 2):
        k(f"v_cvt_pk_bf16_f32 v{34+e}, v{34+e}, v{34+min(e+1,8)}")
        if e < 8: k(f"v_lshrrev_b32 v{35+e}, 16, v{34+e}")
        k(f"v_and_b32 v{34+e}, 0xffff, v{34+e}")
    for e in range(9):
        k(f"""v_subrev_u32 v{34+e}, 17024, v{34+e}
        v_max_i32 v{24+e}, v{24+e}, v{34+e}
        v_lshlrev_b32 v{24+e}, 4, v{24+e}""")
    k("s_waitcnt lgkmcnt(0)\ns_barrier")
    for e in range(9):
        k(f"ds_read_b128 v[{44+4*e}:{47+4*e}], v{24+e} offset:16")
    for e in range(9):
        k(f"s_waitcnt lgkmcnt({8-e})\nv_pk_add_f32 v[{44+4*e}:{45+4*e}], v[{44+4*e}:{45+4*e}], v[{46+4*e}:{47+4*e}]\nv_add_f32 v{24+e}, v{44+4*e}, v{45+4*e}")
    k(f"""s_mul_i32 s20, s3, 8448
    s_add_u32 s20, s20, {KR}
    v_lshlrev_b32 v1, 4, v0
    s_waitcnt lgkmcnt(0)
    v_cvt_pk_bf16_f32 v8, v24, v25
    v_cvt_pk_bf16_f32 v9, v26, v27
    v_cvt_pk_bf16_f32 v10, v28, v29
    v_cvt_pk_bf16_f32 v11, v30, v31
    v_cvt_pk_bf16_f32 v12, v25, v26
    v_cvt_pk_bf16_f32 v13, v27, v28
    v_cvt_pk_bf16_f32 v14, v29, v30
    v_cvt_pk_bf16_f32 v15, v31, v32
    s_add_u32 s21, s20, 4224
    buffer_store_dwordx4 v[8:11], v1, s[24:27], s20 offen
    buffer_store_dwordx4 v[12:15], v1, s[24:27], s21 offen
    v_lshrrev_b32 v2, 3, v0
    v_mul_u32_u24 v2, 4224, v2
    v_and_b32 v3, 7, v0
    v_lshl_add_u32 v2, v3, 4, v2
    v_mov_b32 v16, 0
    v_mov_b32 v17, 0
    v_mov_b32 v18, 0
    v_mov_b32 v19, 0
    v_cmp_gt_u32 vcc, 16, v0
    s_and_saveexec_b64 s[28:29], vcc
    s_cbranch_execz prep_kgen_done
    buffer_store_dwordx4 v[16:19], v2, s[24:27], s20 offen offset:4095
    """)
    k.label("prep_kgen_done")
    footer(k)
    t = k.text()
    t = t.replace("v_lshl_add_u32 v2, v3, 4, v2\n    v_mov_b32 v16, 0", "v_lshl_add_u32 v2, v3, 4, v2\n    v_add_u32 v2, 4096, v2\n    v_mov_b32 v16, 0")
    t = t.replace(" offen offset:4095", " offen")
    return t, desc("prep_kernel", 96)
```

```python
from gen_common import *
QKV_LDS = 81920 + 512
STAT = 81920
def k3():
    name = "qkv1_kernel"; k = K(name)
    header2(k, 256, [("qkv1_kernel", [f"s_mov_b32 s40, {XT1}"]), ("qkv2_kernel", [f"s_mov_b32 s40, {XT3}"])])
    stamp(k, 0)
    stamp(k, 1)
    srd(k, 8, 4, WS_BYTES)
    k(f"""s_and_b32 s12, s2, 1
    s_lshl_b32 s12, s12, 2
    s_bfe_u32 s13, s2, 0x20003
    s_add_u32 s12, s12, s13
    s_bfe_u32 s13, s2, 0x20001
    s_lshl_b32 s13, s13, 3
    s_lshr_b32 s14, s2, 5
    s_add_u32 s13, s13, s14
    s_lshl_b32 s14, s13, 7
    s_add_u32 s14, s14, s40
    v_and_b32 v1, 7, v0
    v_lshrrev_b32 v2, 3, v0
    v_lshlrev_b32 v3, 12, v2
    v_lshl_add_u32 v3, v1, 4, v3
    s_mov_b32 s15, s14
    s_lshl_b32 s16, s12, 8
    s_add_u32 s16, s16, {CS}
    s_add_u32 s17, s16, 4096
    v_and_b32 v4, 0xf0, v0
    v_and_b32 v5, 15, v0
    v_lshrrev_b32 v6, 6, v0
    v_lshlrev_b32 v6, 6, v6
    v_lshl_add_u32 v6, v5, 2, v6
    buffer_load_dwordx4 v[160:163], v4, s[8:11], s16 offen
    buffer_load_dwordx4 v[164:167], v4, s[8:11], s16 offen offset:2048
    buffer_load_dword v168, v6, s[8:11], s17 offen""")
    for i in range(16):
        k(f"buffer_load_dwordx4 v[{16+4*i}:{19+4*i}], v3, s[8:11], s15 offen")
        if i < 15: k("s_add_u32 s15, s15, 0x20000")
    k(f"""v_lshrrev_b32 v4, 6, v0
    v_mul_u32_u24 v6, 49152, v4
    v_and_b32 v5, 63, v0
    v_lshl_add_u32 v6, v5, 4, v6
    s_mul_i32 s17, s12, 196608
    s_add_u32 s17, s17, {WQT}
    s_add_u32 s18, s17, 16384
    s_add_u32 s19, s17, 32768""")
    def wload(s):
        for p in range(3):
            a = 12*s + 4*p
            k(f"buffer_load_dwordx4 a[{a}:{a+3}], v6, s[8:11], s{17+p} offen offset:{1024*(s%4)}")
        if s % 4 == 3 and s < 15: k("s_add_u32 s17, s17, 4096\ns_add_u32 s18, s18, 4096\ns_add_u32 s19, s19, 4096")
    for s in range(4): wload(s)
    k(f"""v_and_b32 v5, 15, v0
    v_bfe_u32 v7, v0, 4, 2
    v_mul_u32_u24 v11, 160, v2
    v_lshl_add_u32 v11, v1, 4, v11
    v_add_u32 v12, 40960, v11
    v_lshrrev_b32 v13, 2, v5
    v_lshl_add_u32 v13, v7, 2, v13
    v_mul_u32_u24 v13, 160, v13
    v_and_b32 v14, 3, v0
    v_lshl_add_u32 v13, v14, 3, v13
    v_add_u32 v14, 40960, v13
    v_lshl_add_u32 v8, v4, 5, v13
    v_add_u32 v9, 40960, v8
    v_mov_b32 v180, 0x3f803f80
    v_mov_b32 v181, 0x3f803f80
    v_mov_b32 v182, 0x3f803f80
    v_mov_b32 v183, 0x3f803f80
    s_lshl_b32 s16, s12, 2
    v_add_u32 v4, s16, v4""")
    for i in range(8):
        k(f"s_waitcnt vmcnt({27-i})")
        k(f"ds_write_b128 v11, v[{16+4*i}:{19+4*i}] offset:{5120*i}")
    k(f"""s_lshl_b32 s22, s13, 11
    s_add_u32 s23, s22, {KB}
    s_add_u32 s24, s22, {VT}
    s_add_u32 s22, s22, {QB}
    v_lshlrev_b32 v15, 16, v4
    v_lshl_add_u32 v15, v5, 4, v15
    v_lshrrev_b32 v82, 1, v7
    v_and_b32 v83, 1, v7
    v_lshl_add_u32 v10, v83, 8, v15
    v_lshl_add_u32 v10, v82, 3, v10
    v_lshl_add_u32 v15, v82, 9, v15
    v_lshl_add_u32 v15, v83, 3, v15""")
    k("s_waitcnt lgkmcnt(0)\ns_barrier")
    stamp(k, 2)
    def issue(s):
        b = 192 + 20*(s % 2)
        base, b2, so = ("v13", "v8", 5120*s) if s < 8 else ("v14", "v9", 5120*(s-8))
        for tq in range(4):
            k(f"ds_read_b64_tr_b16 v[{b+4*tq}:{b+4*tq+1}], {base} offset:{so+32*tq}")
            k(f"ds_read_b64_tr_b16 v[{b+4*tq+2}:{b+4*tq+3}], {base} offset:{so+32*tq+2560}")
        k(f"ds_read_b64_tr_b16 v[{b+16}:{b+17}], {b2} offset:{so}")
        k(f"ds_read_b64_tr_b16 v[{b+18}:{b+19}], {b2} offset:{so+2560}")
    issue(0)
    for s in range(16):
        if s == 7: k("s_waitcnt lgkmcnt(0)\ns_barrier"); stamp(k, 3)
        if s < 15: issue(s+1)
        if s + 4 < 16: wload(s+4)
        k(f"s_waitcnt vmcnt({min(12, 45-3*s)}) lgkmcnt({10 if s < 15 else 0})")
        b = 192 + 20*(s % 2)
        if s == 3:
            for i in range(8, 16): k(f"ds_write_b128 v12, v[{16+4*i}:{19+4*i}] offset:{5120*(i-8)}")
        def C(c): return "0" if s == 0 else f"v[{c}:{c+3}]"
        k(f"v_mfma_f32_16x16x32_bf16 v[172:175], v[{b+16}:{b+19}], v[{b+16}:{b+19}], {C(172)}")
        k(f"v_mfma_f32_16x16x32_bf16 v[176:179], v[180:183], v[{b+16}:{b+19}], {C(176)}")
        for tq in range(4):
            for p in range(3):
                a = 12*s + 4*p; c = 112 + 16*p + 4*tq
                if p < 2: k(f"v_mfma_f32_16x16x32_bf16 v[{c}:{c+3}], a[{a}:{a+3}], v[{b+4*tq}:{b+4*tq+3}], {C(c)}")
                else: k(f"v_mfma_f32_16x16x32_bf16 v[{c}:{c+3}], v[{b+4*tq}:{b+4*tq+3}], a[{a}:{a+3}], {C(c)}")
    stamp(k, 4)
    k(f"""v_lshlrev_b32 v56, 2, v7
    v_sub_u32 v56, v5, v56
    v_cmp_eq_u32 vcc, 1, v56
    v_cmp_eq_u32 s[26:27], 2, v56
    v_cmp_eq_u32 s[28:29], 3, v56
    v_lshrrev_b32 v57, 6, v0
    v_lshl_add_u32 v57, v57, 4, v5
    v_lshlrev_b32 v57, 2, v57
    v_add_u32 v57, {STAT}, v57
    v_cndmask_b32 v172, v172, v173, vcc
    v_cndmask_b32 v172, v172, v174, s[26:27]
    v_cndmask_b32 v172, v172, v175, s[28:29]""")
    ln_finalize(k, 176, 172, 58, 59)
    k(f"""v_mul_f32 v176, v176, v172
    v_cmp_gt_u32 vcc, 4, v56
    s_and_saveexec_b64 s[20:21], vcc
    ds_write2_b32 v57, v172, v176 offset0:0 offset1:64
    s_mov_b64 exec, s[20:21]
    v_lshlrev_b32 v58, 2, v5
    v_add_u32 v58, {STAT}, v58
    v_lshlrev_b32 v59, 4, v7
    v_add_u32 v59, {STAT}, v59
    s_waitcnt lgkmcnt(0)
    s_barrier""")
    stamp(k, 5)
    for tq in range(4):
        k(f"ds_read2_b32 v[{16+2*tq}:{17+2*tq}], v58 offset0:{16*tq} offset1:{64+16*tq}")
    for tq in range(4):
        k(f"ds_read_b128 v[{24+8*tq}:{27+8*tq}], v59 offset:{64*tq}")
        k(f"ds_read_b128 v[{28+8*tq}:{31+8*tq}], v59 offset:{256+64*tq}")
    k("s_waitcnt lgkmcnt(8)")
    for p in range(2):
        for tq in range(4):
            c = 112 + 16*p + 4*tq; R = 16 + 2*tq; cs = 160 + 4*p
            for h in range(2):
                k(f"""v_pk_mul_f32 v[60:61], v[{cs+2*h}:{cs+2*h+1}], v[{R}:{R+1}] op_sel:[0,1] op_sel_hi:[1,1]
                v_pk_fma_f32 v[{c+2*h}:{c+2*h+1}], v[{c+2*h}:{c+2*h+1}], v[{R}:{R+1}], v[60:61] op_sel:[0,0,0] op_sel_hi:[1,0,1] neg_lo:[0,0,1] neg_hi:[0,0,1]""")
            k(f"v_cvt_pk_bf16_f32 v{c}, v{c}, v{c+1}\nv_cvt_pk_bf16_f32 v{c+1}, v{c+2}, v{c+3}")
            k(f"buffer_store_dwordx2 v[{c}:{c+1}], v15, s[8:11], s{22+p} offen offset:{(tq//2)*1024+(tq%2)*256}")
    k("s_waitcnt lgkmcnt(0)")
    for tq in range(4):
        c = 144 + 4*tq; R = 24 + 8*tq
        for h in range(2):
            k(f"""v_pk_mul_f32 v[60:61], v[{R+4+2*h}:{R+5+2*h}], v[168:169] op_sel:[0,0] op_sel_hi:[1,0]
            v_pk_fma_f32 v[{c+2*h}:{c+2*h+1}], v[{c+2*h}:{c+2*h+1}], v[{R+2*h}:{R+2*h+1}], v[60:61] neg_lo:[0,0,1] neg_hi:[0,0,1]""")
        k(f"v_cvt_pk_bf16_f32 v{c}, v{c}, v{c+1}\nv_cvt_pk_bf16_f32 v{c+1}, v{c+2}, v{c+3}")
        k(f"buffer_store_dwordx2 v[{c}:{c+1}], v10, s[8:11], s24 offen offset:{512*tq}")
    stamp(k, 6); stamp_out(k, 7)
    footer(k); sink_srd(k)
    return k.text(), desc(name, 256+192, 256, pl=True) + "\n.p2align 6\n" + desc("qkv2_kernel", 256+192, 256, pl=True)
```

```python
from gen_common import *
KC_CH = 34304; KC_CP = 4288; UB = 68608; U_CH = 7680; RED = 83968
CONV_LDS = RED + 16384
def k2():
    name = "conv1_kernel"; k = K(name)
    header2(k, 256, [("conv1_kernel", [f"s_mov_b32 s40, {XT0}", f"s_mov_b32 s41, {XT1}", f"s_mov_b32 s16, {ST0}"]), ("conv2_kernel", [f"s_mov_b32 s40, {XT2}", f"s_mov_b32 s41, {XT3}", f"s_mov_b32 s16, {ST1}"])])
    stamp(k, 0)
    k("""s_load_dwordx2 s[4:5], s[0:1], 112
    s_load_dwordx2 s[6:7], s[0:1], 64
    s_and_b32 s3, s2, 1
    s_lshl_b32 s3, s3, 7
    s_bfe_u32 s12, s2, 0x20001
    s_add_u32 s3, s3, s12
    s_lshr_b32 s12, s2, 3
    s_lshl_b32 s12, s12, 2
    s_add_u32 s2, s3, s12
    s_waitcnt lgkmcnt(0)""")
    stamp(k, 1)
    srd(k, 8, 4, WS_BYTES)
    k(f"""s_mul_i32 s12, s2, 16896
    s_add_u32 s12, s12, {KR}
    s_lshl_b32 s13, s2, 13
    s_add_u32 s14, s13, s41
    s_add_u32 s13, s13, s40
    s_add_u32 s15, s13, 4096
    v_lshlrev_b32 v1, 4, v0
    v_lshlrev_b32 v2, 6, v0
    buffer_load_dwordx4 v[100:103], v1, s[8:11], s13 offen
    buffer_load_dwordx4 v[104:107], v1, s[8:11], s15 offen
    buffer_load_dwordx4 v[108:111], v2, s[8:11], s16 offen
    buffer_load_dwordx4 v[112:115], v2, s[8:11], s16 offen offset:16
    buffer_load_dwordx4 v[116:119], v2, s[8:11], s16 offen offset:32
    buffer_load_dwordx4 v[120:123], v2, s[8:11], s16 offen offset:48""")
    for ch in range(2):
        for r in range(2):
            off = ch*8448 + r*4224
            idx = ch*2 + r
            k(f"s_add_u32 s17, s12, {off}\nbuffer_load_dwordx4 v[{4+4*idx}:{7+4*idx}], v1, s[8:11], s17 offen")
    k("""v_lshrrev_b32 v70, 7, v0
    s_lshl_b32 s17, s2, 2
    v_lshl_add_u32 v71, v70, 1, s17
    global_load_ushort v72, v71, s[6:7]""")
    stamp(k, 2)
    k(f"""v_mov_b32 v124, 0
    v_mov_b32 v125, 0
    v_mov_b32 v126, 0
    v_mov_b32 v127, 0
    v_cmp_gt_u32 vcc, 155, v0
    s_and_saveexec_b64 s[20:21], vcc
    ds_write_b128 v1, v[124:127] offset:{UB-65536+65536 if False else 0}+0
    s_mov_b64 exec, s[20:21]""".replace("offset:0+0", "offset:0"))
    k.L.pop(); k.L.pop();
    k(f"""v_add_u32 v73, {UB}, v1
    ds_write_b128 v73, v[124:127]
    ds_write_b128 v73, v[124:127] offset:{U_CH}
    s_mov_b64 exec, s[20:21]
    v_lshrrev_b32 v73, 2, v0
    v_mul_u32_u24 v73, {KC_CP}, v73
    v_and_b32 v74, 3, v0
    v_lshl_add_u32 v73, v74, 4, v73
    v_cmp_gt_u32 vcc, 64, v0
    s_and_saveexec_b64 s[20:21], vcc
    ds_write_b128 v73, v[124:127] offset:4096
    v_mul_u32_u24 v75, 20, v74
    v_sub_u32 v75, v73, v75
    v_bfe_u32 v76, v0, 3, 2
    v_cmp_le_u32 vcc, v74, v76
    s_and_b64 exec, exec, vcc
    ds_write_b32 v75, v124 offset:4096
    s_mov_b64 exec, s[20:21]""")
    k(f"""v_and_b32 v75, 31, v0
    v_bfe_u32 v76, v0, 5, 1
    v_bfe_u32 v77, v0, 6, 1
    v_sub_u32 v78, 7, v75
    v_and_b32 v78, 7, v78
    v_mul_u32_u24 v79, {KC_CH}, v70
    v_mul_u32_u24 v80, {KC_CP}, v78
    v_add_u32 v79, v79, v80
    v_lshlrev_b32 v80, 3, v76
    v_add_u32 v80, 2047, v80
    v_sub_u32 v80, v80, v75
    v_sub_u32 v80, v80, v78
    v_lshl_add_u32 v79, v80, 1, v79
    v_lshlrev_b32 v80, 6, v77
    v_sub_u32 v79, v79, v80
    v_subrev_u32 v79, {64*62}, v79
    v_mul_u32_u24 v80, {U_CH}, v70
    v_sub_u32 v81, v75, v77
    v_mul_i32_i24 v81, 80, v81
    v_add3_u32 v80, v80, v81, {0})""".replace(", {0})", ", 0").replace(", 0)", ", 0"))
    k(f"""v_lshl_add_u32 v80, v76, 4, v80
    v_add_u32 v80, {UB}, v80""")
    for r in range(32): k(f"v_mov_b32 v{128+r}, 0")
    def kwrite(idx):
        ch, r0 = idx // 2, idx % 2
        k(f"s_waitcnt vmcnt({4-idx})")
        b = 4+4*idx
        for r in range(r0, 8, 2):
            off = ch*KC_CH + r*KC_CP - 2*(r - r0)
            if r - r0 == 0: k(f"ds_write_b128 v1, v[{b}:{b+3}] offset:{off}")
            elif r - r0 == 4: k(f"ds_write_b64 v1, v[{b}:{b+1}] offset:{off}\nds_write_b64 v1, v[{b+2}:{b+3}] offset:{off+8}")
            else: k(f"v_add_u32 v{20+r}, {off}, v1\nds_write2_b32 v{20+r}, v{b}, v{b+1} offset0:0 offset1:1\nds_write2_b32 v{20+r}, v{b+2}, v{b+3} offset0:2 offset1:3")
    k("s_waitcnt vmcnt(5)")
    for j in range(8):
        ln_finalize(k, 108+2*j, 109+2*j, 124, 125)
        if j % 2 == 1: kwrite(j // 2)
    for ch in range(2):
        for jj in range(4):
            src = 100 + 4*ch + jj
            unpack(k, 124, 125, src)
            m0, r0, m1, r1 = 108+4*jj, 109+4*jj, 110+4*jj, 111+4*jj
            k(f"""v_sub_f32 v124, v124, v{m0}
            v_sub_f32 v125, v125, v{m1}
            v_cvt_pk_bf16_f32 v126, v124, v125
            v_lshlrev_b32 v124, 16, v126
            v_and_b32 v125, 0xffff0000, v126
            v_mul_f32 v124, v124, v{r0}
            v_mul_f32 v125, v125, v{r1}
            v_cvt_pk_bf16_f32 v{src}, v124, v125""")
    stamp(k, 3)
    k(f"""v_lshrrev_b32 v73, 2, v0
    v_mul_u32_u24 v73, 80, v73
    v_lshl_add_u32 v73, v74, 4, v73
    v_add_u32 v73, {UB + 31*80}, v73
    ds_write_b128 v73, v[100:103]
    ds_write_b128 v73, v[104:107] offset:{U_CH}""")
    k("s_waitcnt lgkmcnt(0)\ns_barrier")
    stamp(k, 4)
    def issue(m):
        b = 160 + 24*(m % 3); n = 0
        for c in range(2):
            k(f"ds_read_b128 v[{b+4*c}:{b+4*c+3}], v79 offset:{64*(62-2*m)+32*c}"); n += 1
        for c in range(2):
            k(f"ds_read_b128 v[{b+16+4*c}:{b+16+4*c+3}], v80 offset:{(63-2*m)*80+32*c}"); n += 1
        if m <= 15:
            for c in range(2):
                k(f"ds_read_b128 v[{b+8+4*c}:{b+8+4*c+3}], v80 offset:{(31-2*m)*80+32*c}"); n += 1
        return n
    cnt = {}
    cnt[0] = issue(0); cnt[1] = issue(1)
    for m in range(32):
        if m + 2 < 32: cnt[m+2] = issue(m+2)
        pend = sum(cnt[x] for x in (m+1, m+2) if x < 32)
        k(f"s_waitcnt lgkmcnt({pend})")
        b = 160 + 24*(m % 3)
        for c in range(2):
            k(f"v_mfma_f32_32x32x16_bf16 v[144:159], v[{b+4*c}:{b+4*c+3}], v[{b+16+4*c}:{b+16+4*c+3}], v[144:159]")
            if m <= 15:
                k(f"v_mfma_f32_32x32x16_bf16 v[128:143], v[{b+4*c}:{b+4*c+3}], v[{b+8+4*c}:{b+8+4*c+3}], v[128:143]")
    stamp(k, 5)
    k(f"""v_and_b32 v82, 63, v0
    v_lshlrev_b32 v82, 4, v82
    v_lshl_add_u32 v82, v70, 13, v82
    v_add_u32 v82, {RED}, v82
    v_lshl_add_u32 v83, v77, 12, v82
    v_xor_b32 v84, 4096, v83
    v_lshlrev_b32 v85, 5, v77
    v_add_u32 v85, v85, v75
    v_lshlrev_b32 v86, 6, v85
    v_lshl_add_u32 v86, v76, 3, v86
    v_lshl_add_u32 v86, v70, 12, v86
    v_add_u32 v87, 31, v85
    v_mul_u32_u24 v87, 80, v87
    v_lshl_add_u32 v87, v76, 3, v87
    v_mul_u32_u24 v88, {U_CH}, v70
    v_add3_u32 v87, v87, v88, {UB}""".replace(f"v_add3_u32 v87, v87, v88, {UB}", f"v_add_u32 v87, v87, v88\nv_add_u32 v87, {UB}, v87"))
    for q in range(4):
        k(f"buffer_load_dwordx2 v[{4+2*q}:{5+2*q}], v86, s[8:11], s13 offen offset:{16*q}")
        k(f"ds_read_b64 v[{12+2*q}:{13+2*q}], v87 offset:{16*q}")
    k("""v_readfirstlane_b32 s30, v77
    s_nop 7
    s_cmp_eq_u32 s30, 0
    s_cbranch_scc0 conv_par1""")
    for q in range(4):
        k(f"ds_write_b128 v84, v[{144+4*q}:{147+4*q}] offset:{1024*q}")
    k("s_branch conv_parj")
    k.label("conv_par1")
    for q in range(4):
        k(f"ds_write_b128 v84, v[{128+4*q}:{131+4*q}] offset:{1024*q}")
    k("s_waitcnt lgkmcnt(0)")
    for r in range(0, 16, 2):
        k(f"v_pk_mov_b32 v[{128+r}:{129+r}], v[{144+r}:{145+r}], v[{144+r}:{145+r}] op_sel:[0,1]")
    k.label("conv_parj")
    k("s_waitcnt lgkmcnt(0)\ns_barrier")
    stamp(k, 6)
    for q in range(4):
        k(f"ds_read_b128 v[{20+4*q}:{23+4*q}], v83 offset:{1024*q}")
    k("s_waitcnt vmcnt(0) lgkmcnt(0)\nv_lshlrev_b32 v72, 16, v72")
    for q in range(4):
        for h in range(2):
            y0, y1 = 128+4*q+2*h, 129+4*q+2*h
            k(f"""v_pk_add_f32 v[{y0}:{y1}], v[{y0}:{y1}], v[{20+4*q+2*h}:{21+4*q+2*h}]""")
            unpack(k, 62, 63, 12+2*q+h)
            k(f"""v_cvt_pk_bf16_f32 v60, v{y0}, v{y1}
            v_pk_mul_f32 v[62:63], v[62:63], v[72:73] op_sel:[0,0] op_sel_hi:[1,0]
            v_cvt_pk_bf16_f32 v61, v62, v63""")
            unpack(k, 64, 65, 60); unpack(k, 62, 63, 61)
            k("""v_pk_add_f32 v[62:63], v[62:63], v[64:65]
            v_cvt_pk_bf16_f32 v61, v62, v63""")
            unpack(k, 64, 65, 4+2*q+h); unpack(k, 62, 63, 61)
            k(f"""v_pk_add_f32 v[62:63], v[62:63], v[64:65]
            v_cvt_pk_bf16_f32 v{52+2*q+h}, v62, v63""")
        k(f"buffer_store_dwordx2 v[{52+2*q}:{53+2*q}], v86, s[8:11], s14 offen offset:{16*q}")
    stamp(k, 7); stamp_out(k, 8)
    footer(k)
    return k.text(), desc(name, 232) + "\n.p2align 6\n" + desc("conv2_kernel", 232)
```

```python
XT0, XT1, XT2, XT3 = 0x000000, 0x200000, 0x400000, 0x600000
KR   = 0x800000
WQT  = 0xD00000
WOT  = 0xF00000
QB, KB, VT = 0x1000000, 0x1200000, 0x1400000
OB   = 0x1600000
ST0, ST1 = 0x1800000, 0x1810000
CS = 0x1820000
CONST = 0x1A00000
WS_BYTES = 0x10000000

class K:
    def __init__(self, name):
        self.name = name; self.L = []
    def __call__(self, s):
        for line in s.strip("\n").split("\n"):
            self.L.append("    " + line.strip())
    def label(self, l): self.L.append(l + ":")
    def text(self): return "\n".join(self.L)

import os
PL = os.environ.get('PL', '1') == '1'
def prologue(k, en):
    if PL:
        k("s_load_dwordx2 s[2:3], s[0:1], 96\ns_load_dwordx4 s[4:7], s[0:1], 104\ns_waitcnt lgkmcnt(0)\ns_branch %s_pl" % en)
        k.L.append(".p2align 8\n%s_pl:" % en)
        k("s_mov_b64 s[4:5], s[6:7]\ns_mov_b64 s[6:7], s[2:3]\ns_mov_b32 s2, s8")
    else:
        k("s_load_dwordx2 s[4:5], s[0:1], 112\ns_load_dwordx2 s[6:7], s[0:1], 96\ns_waitcnt lgkmcnt(0)")

def header(k, nwg, pl=False):
    n = k.name
    k.L.append(".globl %s\n.p2align 8\n.type %s,@function\n%s:" % (n, n, n))
    if pl: prologue(k, n)
    k("s_cmp_ge_u32 s2, %d\ns_cbranch_scc1 %s_end" % (nwg, n))

def footer(k):
    k.label(k.name + "_end"); k("s_endpgm")

def srd(k, d, b, nbytes):
    k("s_mov_b32 s%d, s%d\ns_and_b32 s%d, s%d, 0xffff\ns_mov_b32 s%d, 0x%x\ns_mov_b32 s%d, 0x00020000" % (d, b, d+1, b+1, d+2, nbytes, d+3))

def desc(name, vgpr, accum=None, sgpr=96, pl=False):
    if accum is None: accum = (vgpr + 3) // 4 * 4
    t = _desc(name, vgpr, accum, sgpr)
    if pl and PL: t = t.replace(".amdhsa_user_sgpr_count 2", ".amdhsa_user_sgpr_count 8\n  .amdhsa_user_sgpr_kernarg_preload_length 6\n  .amdhsa_user_sgpr_kernarg_preload_offset 24")
    return t
def _desc(name, vgpr, accum, sgpr):
    return """.amdhsa_kernel %s
  .amdhsa_next_free_vgpr %d
  .amdhsa_next_free_sgpr %d
  .amdhsa_accum_offset %d
  .amdhsa_group_segment_fixed_size 0
  .amdhsa_kernarg_size 120
  .amdhsa_user_sgpr_count 2
  .amdhsa_user_sgpr_kernarg_segment_ptr 1
  .amdhsa_system_sgpr_workgroup_id_x 1
.end_amdhsa_kernel""" % (name, vgpr, sgpr, accum)

def unpack(k, lo, hi, src):
    k("v_lshlrev_b32 v%d, 16, v%d\nv_and_b32 v%d, 0xffff0000, v%d" % (lo, src, hi, src))

def ln_finalize(k, s1, s2, t0, t1):
    k(f"""v_mul_f32 v{s1}, 0x3b000000, v{s1}
    v_mul_f32 v{s2}, 0x3b000000, v{s2}
    v_fma_f32 v{s2}, -v{s1}, v{s1}, v{s2}
    v_max_f32 v{s2}, 0, v{s2}
    v_cvt_pk_bf16_f32 v{t0}, v{s1}, v{s2}
    v_lshlrev_b32 v{s1}, 16, v{t0}
    v_and_b32 v{s2}, 0xffff0000, v{t0}
    v_add_f32 v{s2}, 0x3727c5ac, v{s2}
    v_cvt_pk_bf16_f32 v{t0}, v{s2}, v{s2}
    v_lshlrev_b32 v{s2}, 16, v{t0}
    v_sqrt_f32 v{s2}, v{s2}
    s_nop 0
    v_cvt_pk_bf16_f32 v{t0}, v{s2}, v{s2}
    v_lshlrev_b32 v{s2}, 16, v{t0}
    v_rcp_f32 v{s2}, v{s2}
    s_nop 0""")

def header2(k, nwg, entries):
    n = k.name
    for i, (en, init) in enumerate(reversed(entries)):
        k.L.append(".globl %s\n.p2align 8\n.type %s,@function\n%s:" % (en, en, en))
        prologue(k, en)
        k("s_cmp_ge_u32 s2, %d\ns_cbranch_scc1 %s_end" % (nwg, n))
        for l in init: k(l)
        if i < len(entries) - 1: k("s_branch %s_body" % n)
    k.label(n + "_body")

import os
STAMP = os.environ.get('STAMP')
def stamp(k, i):
    if STAMP and STAMP in k.name:
        k(f"s_memtime s[{60+2*i}:{61+2*i}]\ns_waitcnt lgkmcnt(0)")
def stamp_out(k, n, wg=0, srd="s[8:11]"):
    if STAMP and STAMP in k.name:
        k(f"s_waitcnt vmcnt(0)\ns_memtime s[{60+2*n}:{61+2*n}]\ns_waitcnt lgkmcnt(0)\ns_cmp_lg_u32 s2, {wg}\ns_cbranch_scc1 {k.name}_so\nv_mov_b32 v1, 0\ns_mov_b32 s58, 0x1900000")
        for i in range(n+1):
            k(f"s_sub_u32 s57, s{60+2*i}, s60\nv_mov_b32 v2, s57\nbuffer_store_dword v2, v1, {srd}, s58 offen offset:{4*i}")
        k.label(k.name + "_so")
```

```python
from gen_common import *
import os
KC_CH = 34304; KC_CP = 4288; UB = 68608; U_CH = 7680; RED = 83968
CONV_LDS = RED + 16384
def k2():
    name = "conv1_kernel"; k = K(name)
    header2(k, 256, [("conv1_kernel", [f"s_mov_b32 s40, {XT0}", f"s_mov_b32 s41, {XT1}", f"s_mov_b32 s16, {ST0}"]), ("conv2_kernel", [f"s_mov_b32 s40, {XT2}", f"s_mov_b32 s41, {XT3}", f"s_mov_b32 s16, {ST1}"])])
    stamp(k, 0)
    k("""    s_and_b32 s3, s2, 1
    s_lshl_b32 s3, s3, 7
    s_bfe_u32 s12, s2, 0x20001
    s_add_u32 s3, s3, s12
    s_lshr_b32 s12, s2, 3
    s_lshl_b32 s12, s12, 2
    s_add_u32 s2, s3, s12""")
    stamp(k, 1)
    srd(k, 8, 4, WS_BYTES)
    k(f"""s_mul_i32 s12, s2, 16896
    s_add_u32 s12, s12, {KR}
    s_lshl_b32 s13, s2, 13
    s_add_u32 s14, s13, s41
    s_add_u32 s13, s13, s40
    s_add_u32 s15, s13, 4096
    v_lshlrev_b32 v1, 4, v0
    v_lshlrev_b32 v2, 6, v0
    buffer_load_dwordx4 v[100:103], v1, s[8:11], s13 offen
    buffer_load_dwordx4 v[104:107], v1, s[8:11], s15 offen
    buffer_load_dwordx4 v[108:111], v2, s[8:11], s16 offen
    buffer_load_dwordx4 v[112:115], v2, s[8:11], s16 offen offset:16
    buffer_load_dwordx4 v[116:119], v2, s[8:11], s16 offen offset:32
    buffer_load_dwordx4 v[120:123], v2, s[8:11], s16 offen offset:48""")
    for ch in range(2):
        for r in range(2):
            off = ch*8448 + r*4224
            idx = ch*2 + r
            k(f"s_add_u32 s17, s12, {off}\nbuffer_load_dwordx4 v[{4+4*idx}:{7+4*idx}], v1, s[8:11], s17 offen")
    k("""v_lshrrev_b32 v70, 7, v0
    s_lshl_b32 s17, s2, 2
    v_lshl_add_u32 v71, v70, 1, s17
    s_waitcnt lgkmcnt(0)
    global_load_ushort v72, v71, s[6:7]""")
    stamp(k, 2)
    k(f"""v_mov_b32 v124, 0
    v_mov_b32 v125, 0
    v_mov_b32 v126, 0
    v_mov_b32 v127, 0
    v_cmp_gt_u32 vcc, 155, v0
    s_and_saveexec_b64 s[20:21], vcc
    ds_write_b128 v1, v[124:127] offset:{UB-65536+65536 if False else 0}+0
    s_mov_b64 exec, s[20:21]""".replace("offset:0+0", "offset:0"))
    k.L.pop(); k.L.pop();
    k(f"""v_add_u32 v73, {UB}, v1
    ds_write_b128 v73, v[124:127]
    ds_write_b128 v73, v[124:127] offset:{U_CH}
    s_mov_b64 exec, s[20:21]
    v_lshrrev_b32 v73, 2, v0
    v_mul_u32_u24 v73, {KC_CP}, v73
    v_and_b32 v74, 3, v0
    v_lshl_add_u32 v73, v74, 4, v73
    v_cmp_gt_u32 vcc, 64, v0
    s_and_saveexec_b64 s[20:21], vcc
    ds_write_b128 v73, v[124:127] offset:4096
    v_mul_u32_u24 v75, 20, v74
    v_sub_u32 v75, v73, v75
    v_bfe_u32 v76, v0, 3, 2
    v_cmp_le_u32 vcc, v74, v76
    s_and_b64 exec, exec, vcc
    ds_write_b32 v75, v124 offset:4096
    s_mov_b64 exec, s[20:21]""")
    k(f"""v_and_b32 v75, 31, v0
    v_bfe_u32 v76, v0, 5, 1
    v_bfe_u32 v77, v0, 6, 1
    v_sub_u32 v78, 7, v75
    v_and_b32 v78, 7, v78
    v_mul_u32_u24 v79, {KC_CH}, v70
    v_mul_u32_u24 v80, {KC_CP}, v78
    v_add_u32 v79, v79, v80
    v_lshlrev_b32 v80, 3, v76
    v_add_u32 v80, 2047, v80
    v_sub_u32 v80, v80, v75
    v_sub_u32 v80, v80, v78
    v_lshl_add_u32 v79, v80, 1, v79
    v_lshlrev_b32 v80, 6, v77
    v_sub_u32 v79, v79, v80
    v_subrev_u32 v79, {64*62}, v79
    v_mul_u32_u24 v80, {U_CH}, v70
    v_sub_u32 v81, v75, v77
    v_mul_i32_i24 v81, 80, v81
    v_add3_u32 v80, v80, v81, {0})""".replace(", {0})", ", 0").replace(", 0)", ", 0"))
    k(f"""v_lshl_add_u32 v80, v76, 4, v80
    v_add_u32 v80, {UB}, v80""")
    for r in range(32): k(f"v_mov_b32 v{128+r}, 0")
    groups = []
    for idx in range(4):
        ch, r0 = idx // 2, idx % 2
        b = 4+4*idx
        for r in range(r0, 8, 2):
            off = ch*KC_CH + r*KC_CP - 2*(r - r0)
            if r - r0 == 0: g = f"s_waitcnt vmcnt({4-idx})\nds_write_b128 v1, v[{b}:{b+3}] offset:{off}"
            elif r - r0 == 4: g = f"ds_write_b64 v1, v[{b}:{b+1}] offset:{off}\nds_write_b64 v1, v[{b+2}:{b+3}] offset:{off+8}"
            else: g = f"v_add_u32 v{20+r}, {off}, v1\nds_write2_b32 v{20+r}, v{b}, v{b+1} offset0:0 offset1:1\nds_write2_b32 v{20+r}, v{b+2}, v{b+3} offset0:2 offset1:3"
            groups.append(g)
    kk = k; k = K("tmp")
    for j in range(8):
        ln_finalize(k, 108+2*j, 109+2*j, 124, 125)
    for ch in range(2):
        for jj in range(4):
            src = 100 + 4*ch + jj
            unpack(k, 124, 125, src)
            m0, r0, m1, r1 = 108+4*jj, 109+4*jj, 110+4*jj, 111+4*jj
            k(f"""v_sub_f32 v124, v124, v{m0}
            v_sub_f32 v125, v125, v{m1}
            v_cvt_pk_bf16_f32 v126, v124, v125
            v_lshlrev_b32 v124, 16, v126
            v_and_b32 v125, 0xffff0000, v126
            v_mul_f32 v124, v124, v{r0}
            v_mul_f32 v125, v125, v{r1}
            v_cvt_pk_bf16_f32 v{src}, v124, v125""")
    lines = k.L; k = kk
    k("s_waitcnt vmcnt(5)")
    STEP = int(os.environ.get('CSTEP', 12))
    for i, l in enumerate(lines):
        k.L.append(l)
        if i % STEP == 3 and groups and 's_nop' not in lines[min(i+1, len(lines)-1)]: k(groups.pop(0))
    for g in groups: k(g)
    stamp(k, 3)
    k(f"""v_lshrrev_b32 v73, 2, v0
    v_mul_u32_u24 v73, 80, v73
    v_lshl_add_u32 v73, v74, 4, v73
    v_add_u32 v73, {UB + 31*80}, v73
    ds_write_b128 v73, v[100:103]
    ds_write_b128 v73, v[104:107] offset:{U_CH}""")
    k("s_waitcnt lgkmcnt(0)\ns_barrier")
    stamp(k, 4)
    def issue(m):
        b = 160 + 24*(m % 3); n = 0
        for c in range(2):
            k(f"ds_read_b128 v[{b+4*c}:{b+4*c+3}], v79 offset:{64*(62-2*m)+32*c}"); n += 1
        for c in range(2):
            k(f"ds_read_b128 v[{b+16+4*c}:{b+16+4*c+3}], v80 offset:{(63-2*m)*80+32*c}"); n += 1
        if m <= 15:
            for c in range(2):
                k(f"ds_read_b128 v[{b+8+4*c}:{b+8+4*c+3}], v80 offset:{(31-2*m)*80+32*c}"); n += 1
        return n
    cnt = {}
    cnt[0] = issue(0); cnt[1] = issue(1)
    for m in range(32):
        if m + 2 < 32: cnt[m+2] = issue(m+2)
        pend = sum(cnt[x] for x in (m+1, m+2) if x < 32)
        k(f"s_waitcnt lgkmcnt({pend})")
        b = 160 + 24*(m % 3)
        for c in range(2):
            k(f"v_mfma_f32_32x32x16_bf16 v[144:159], v[{b+4*c}:{b+4*c+3}], v[{b+16+4*c}:{b+16+4*c+3}], v[144:159]")
            if m <= 15:
                k(f"v_mfma_f32_32x32x16_bf16 v[128:143], v[{b+4*c}:{b+4*c+3}], v[{b+8+4*c}:{b+8+4*c+3}], v[128:143]")
    stamp(k, 5)
    k(f"""v_and_b32 v82, 63, v0
    v_lshlrev_b32 v82, 4, v82
    v_lshl_add_u32 v82, v70, 13, v82
    v_add_u32 v82, {RED}, v82
    v_lshl_add_u32 v83, v77, 12, v82
    v_xor_b32 v84, 4096, v83
    v_lshlrev_b32 v85, 5, v77
    v_add_u32 v85, v85, v75
    v_lshlrev_b32 v86, 6, v85
    v_lshl_add_u32 v86, v76, 3, v86
    v_lshl_add_u32 v86, v70, 12, v86
    v_add_u32 v87, 31, v85
    v_mul_u32_u24 v87, 80, v87
    v_lshl_add_u32 v87, v76, 3, v87
    v_mul_u32_u24 v88, {U_CH}, v70
    v_add3_u32 v87, v87, v88, {UB}""".replace(f"v_add3_u32 v87, v87, v88, {UB}", f"v_add_u32 v87, v87, v88\nv_add_u32 v87, {UB}, v87"))
    for q in range(4):
        k(f"buffer_load_dwordx2 v[{4+2*q}:{5+2*q}], v86, s[8:11], s13 offen offset:{16*q}")
        k(f"ds_read_b64 v[{12+2*q}:{13+2*q}], v87 offset:{16*q}")
    k("""v_readfirstlane_b32 s30, v77
    s_nop 7
    s_cmp_eq_u32 s30, 0
    s_cbranch_scc0 conv_par1""")
    for q in range(4):
        k(f"ds_write_b128 v84, v[{144+4*q}:{147+4*q}] offset:{1024*q}")
    k("s_branch conv_parj")
    k.label("conv_par1")
    for q in range(4):
        k(f"ds_write_b128 v84, v[{128+4*q}:{131+4*q}] offset:{1024*q}")
    k("s_waitcnt lgkmcnt(0)")
    for r in range(0, 16, 2):
        k(f"v_pk_mov_b32 v[{128+r}:{129+r}], v[{144+r}:{145+r}], v[{144+r}:{145+r}] op_sel:[0,1]")
    k.label("conv_parj")
    k("s_waitcnt lgkmcnt(0)\ns_barrier")
    stamp(k, 6)
    for q in range(4):
        k(f"ds_read_b128 v[{20+4*q}:{23+4*q}], v83 offset:{1024*q}")
    k("s_waitcnt vmcnt(0) lgkmcnt(0)\nv_lshlrev_b32 v72, 16, v72")
    for q in range(4):
        for h in range(2):
            y0, y1 = 128+4*q+2*h, 129+4*q+2*h
            k(f"""v_pk_add_f32 v[{y0}:{y1}], v[{y0}:{y1}], v[{20+4*q+2*h}:{21+4*q+2*h}]""")
            unpack(k, 62, 63, 12+2*q+h)
            k(f"""v_cvt_pk_bf16_f32 v60, v{y0}, v{y1}
            v_pk_mul_f32 v[62:63], v[62:63], v[72:73] op_sel:[0,0] op_sel_hi:[1,0]
            v_cvt_pk_bf16_f32 v61, v62, v63""")
            unpack(k, 64, 65, 60); unpack(k, 62, 63, 61)
            k("""v_pk_add_f32 v[62:63], v[62:63], v[64:65]
            v_cvt_pk_bf16_f32 v61, v62, v63""")
            unpack(k, 64, 65, 4+2*q+h); unpack(k, 62, 63, 61)
            k(f"""v_pk_add_f32 v[62:63], v[62:63], v[64:65]
            v_cvt_pk_bf16_f32 v{52+2*q+h}, v62, v63""")
        k(f"buffer_store_dwordx2 v[{52+2*q}:{53+2*q}], v86, s[8:11], s14 offen offset:{16*q}")
    stamp(k, 7); stamp_out(k, 8)
    footer(k); sink_srd(k)
    return k.text(), desc(name, 232, pl=True) + "\n.p2align 6\n" + desc("conv2_kernel", 232, pl=True)
```

```python
from gen_common import *
def k4(name, zero_st):
    k = K(name); header(k, 512, True)
    stamp(k, 0)
    srd(k, 8, 4, WS_BYTES)
    stamp(k, 1)
    k(f"""s_and_b32 s13, s2, 1
    s_lshl_b32 s13, s13, 2
    s_bfe_u32 s12, s2, 0x20003
    s_add_u32 s13, s13, s12
    s_bfe_u32 s12, s2, 0x20001
    s_lshl_b32 s12, s12, 4
    s_lshr_b32 s14, s2, 5
    s_add_u32 s12, s12, s14
    v_lshrrev_b32 v1, 6, v0
    s_lshl_b32 s14, s13, 2
    v_add_u32 v1, s14, v1
    v_and_b32 v2, 31, v0
    v_bfe_u32 v3, v0, 5, 1
    v_and_b32 v4, 63, v0
    v_lshlrev_b32 v4, 4, v4
    v_lshl_add_u32 v4, v1, 16, v4
    s_lshl_b32 s15, s12, 10
    s_add_u32 s16, s15, {QB}
    buffer_load_dwordx4 v[8:11], v4, s[8:11], s16 offen""")
    k(f"s_add_u32 s17, s15, {KB - 8192}")
    for j in range(9):
        k(f"buffer_load_dwordx4 v[{12+4*j}:{15+4*j}], v4, s[8:11], s17 offen offset:{1024*(j%4)}")
        if j % 4 == 3: k("s_add_u32 s17, s17, 4096")
    stamp(k, 2)
    k("v_mov_b32 v7, 0xf149f2ca\nv_lshlrev_b32 v5, 2, v3\nv_sub_u32 v5, v2, v5")
    k("v_mov_b32 v94, 0xffff0000")
    for r in range(16): k(f"v_cmp_gt_i32 s[{24+2*r}:{25+2*r}], {8*(r//4)+r%4}, v5")
    for p in range(8): k(f"v_cndmask_b32 v{86+p}, 0, v94, s[{26+4*p}:{27+4*p}]")
    for p in range(8): k(f"v_cndmask_b32 v{86+p}, v{86+p}, -1, s[{24+4*p}:{25+4*p}]")
    for j in range(9):
        k(f"s_waitcnt vmcnt({8-j})")
        k(f"v_mfma_f32_32x32x16_bf16 v[{96+16*j}:{111+16*j}], v[{12+4*j}:{15+4*j}], v[8:11], 0")
    stamp(k, 3)
    k(f"""s_add_u32 s17, s15, {VT - 8192}
    s_sub_u32 s18, {CONST}, s17
    s_add_u32 s19, s18, 0x4000
    v_and_b32 v5, 27, v2
    v_cmp_eq_u32 vcc, 16, v5
    v_mov_b32 v5, s19
    v_mov_b32 v6, s18
    v_cndmask_b32 v5, v5, v6, vcc
    v_lshlrev_b32 v6, 16, v1
    v_lshl_add_u32 v6, v2, 4, v6
    v_lshl_add_u32 v6, v3, 8, v6
    v_cmp_gt_u32 vcc, 16, v2
    s_nop 7
    v_cndmask_b32 v6, v5, v6, vcc""")
    for j in range(18):
        k(f"buffer_load_dwordx4 v[{12+4*j}:{15+4*j}], v6, s[8:11], s17 offen offset:{512*(j%8)}")
        if j % 8 == 7: k("s_add_u32 s17, s17, 4096")
    for j in range(8):
        k(f"s_cmp_ge_u32 s12, {8-j}\ns_cbranch_scc1 {name}_mk")
        for r in range(16): k(f"v_mov_b32 v{96+16*j+r}, v7")
    k.label(name + "_mk")
    stamp(k, 4)
    for r in range(16): k(f"v_cndmask_b32 v{96+r}, v{224+r}, v{96+r}, s[{24+2*r}:{25+2*r}]")
    k("v_max3_f32 v84, v112, v113, v114")
    r = 115
    while r + 1 < 224:
        k(f"v_max3_f32 v84, v84, v{r}, v{r+1}"); r += 2
    k("v_max_f32 v84, v84, v223")
    for r in range(0, 16, 2): k(f"v_max3_f32 v84, v84, v{96+r}, v{97+r}")
    k("""v_mov_b32 v85, v84
    s_nop 1
    v_permlane32_swap_b32 v84, v85
    v_max_f32 v84, v84, v85
    s_mov_b32 s22, 0x3eb8aa3b
    s_mov_b32 s23, 0x3eb8aa3b
    v_mul_f32 v84, s22, v84
    v_mov_b32 v85, v84""")
    stamp(k, 5)
    for r in range(16): k(f"v_mov_b32 v{240+r}, 0")
    for j in range(9):
        b = 96 + 16*j
        if j < 8:
            for r in range(0, 16, 2):
                k(f"v_pk_fma_f32 v[{b+r}:{b+r+1}], v[{b+r}:{b+r+1}], s[22:23], v[84:85] neg_lo:[0,0,1] neg_hi:[0,0,1]")
            for r in range(16):
                k(f"v_exp_f32 v{b+r}, v{b+r}")
            k("s_nop 0")
            for r in range(8):
                k(f"v_cvt_pk_bf16_f32 v{b+r}, v{b+2*r}, v{b+2*r+1}")
        if j == 0:
            for r in range(8): k(f"v_and_b32 v{104+r}, v{96+r}, v{86+r}")
            for r in range(8): k(f"v_xor_b32 v{224+r}, v{96+r}, v{104+r}")
            b = 104
        k(f"s_waitcnt vmcnt({16-2*j})\ns_nop 1")
        k(f"v_mfma_f32_32x32x16_bf16 v[240:255], v[{12+8*j}:{15+8*j}], v[{b}:{b+3}], v[240:255]")
        k(f"v_mfma_f32_32x32x16_bf16 v[240:255], v[{16+8*j}:{19+8*j}], v[{b+4}:{b+7}], v[240:255]")
    stamp(k, 6)
    k(f"""v_lshlrev_b32 v4, 4, v2
    v_lshl_add_u32 v4, v1, 10, v4
    v_lshl_add_u32 v4, v3, 3, v4
    s_lshl_b32 s15, s12, 15
    s_add_u32 s16, s15, {OB}
    s_nop 7
    v_rcp_f32 v84, v248
    s_nop 0""")
    for r in range(8): k(f"v_mul_f32 v{240+r}, v{240+r}, v84")
    k("""v_cvt_pk_bf16_f32 v240, v240, v241
    v_cvt_pk_bf16_f32 v241, v242, v243
    v_cvt_pk_bf16_f32 v242, v244, v245
    v_cvt_pk_bf16_f32 v243, v246, v247
    buffer_store_dwordx2 v[240:241], v4, s[8:11], s16 offen
    buffer_store_dwordx2 v[242:243], v4, s[8:11], s16 offen offset:512""")
    if zero_st:
        k(f"""s_cmp_ge_u32 s2, 16
        s_cbranch_scc1 {name}_nz
        v_mov_b32 v5, 0
        s_lshl_b32 s17, s2, 10
        s_add_u32 s17, s17, {ST1}
        v_lshlrev_b32 v6, 2, v0
        buffer_store_dword v5, v6, s[8:11], s17 offen""")
        k.label(name + "_nz")
    stamp(k, 7); stamp_out(k, 8, 300)
    footer(k); sink_srd(k)
    return k.text(), desc(name, 256, pl=True)

def k5():
    name = "oproj1_kernel"; k = K(name)
    header2(k, 256, [("oproj1_kernel", [f"s_mov_b32 s40, {XT1}", "s_mov_b32 s42, 0"]), ("oproj2_kernel", [f"s_mov_b32 s40, {XT3}", "s_mov_b32 s42, 1"])])
    stamp(k, 0)
    stamp(k, 1)
    srd(k, 8, 4, WS_BYTES)
    srd(k, 24, 6, 0x200000)
    k(f"""s_and_b32 s12, s2, 1
    s_lshl_b32 s12, s12, 3
    s_bfe_u32 s13, s2, 0x30003
    s_add_u32 s12, s12, s13
    s_bfe_u32 s13, s2, 0x20001
    s_lshl_b32 s13, s13, 2
    s_lshr_b32 s14, s2, 6
    s_add_u32 s13, s13, s14
    v_and_b32 v1, 31, v0
    v_bfe_u32 v2, v0, 5, 1
    v_lshrrev_b32 v4, 6, v0
    v_lshl_add_u32 v6, v4, 5, v1
    v_and_b32 v5, 63, v0
    v_lshlrev_b32 v5, 4, v5
    v_lshl_add_u32 v8, v4, 15, v5
    v_lshl_add_u32 v7, v4, 13, v5
    s_lshl_b32 s14, s12, 15
    s_add_u32 s14, s14, {WOT}
    s_add_u32 s19, s14, 4096
    s_lshl_b32 s15, s13, 17
    s_add_u32 s15, s15, {OB}""")
    for s in range(8):
        k(f"buffer_load_dwordx4 v[{192+4*s}:{195+4*s}], v7, s[8:11], s{14 if s < 4 else 19} offen offset:{1024*(s%4)}")
    k(f"""v_lshlrev_b32 v9, 14, v2
    v_lshl_add_u32 v9, v6, 1, v9
    s_lshl_b32 s16, s12, 17
    s_lshl_b32 s17, s13, 8
    s_add_u32 s16, s16, s17
    s_add_u32 s17, s16, {XT2}
    s_add_u32 s16, s16, s40""")
    for r in range(16):
        k(f"s_add_u32 s18, s16, {(8*(r//4)+r%4)*4096}\nbuffer_load_ushort v{32+r}, v9, s[8:11], s18 offen")
    def oload(s):
        k(f"buffer_load_dwordx4 v[{64+4*s}:{67+4*s}], v8, s[8:11], s15 offen offset:{1024*(s%4)}")
        if s % 4 == 3 and s < 31: k("s_add_u32 s15, s15, 4096")
    PF = 12
    for s in range(PF): oload(s)
    for s in range(8):
        k(f"s_waitcnt vmcnt({16+PF+7-s})\nds_write_b128 v7, v[{192+4*s}:{195+4*s}] offset:{1024*s}")
    k("s_waitcnt lgkmcnt(0)\ns_barrier")
    stamp(k, 2)
    for s in range(32):
        k(f"ds_read_b128 a[{4*s}:{4*s+3}], v5 offset:{1024*s}")
    for s in range(32):
        if s + PF < 32: oload(s+PF)
        k(f"s_waitcnt vmcnt({min(PF, 31-s)}) lgkmcnt({min(15, 31-s)})")
        k(f"v_mfma_f32_32x32x16_bf16 v[16:31], a[{4*s}:{4*s+3}], v[{64+4*s}:{67+4*s}], {'0' if s == 0 else 'v[16:31]'}")
    stamp(k, 3)
    k("s_waitcnt vmcnt(0)\ns_nop 7\ns_nop 3\nv_mov_b32 v50, 0\nv_mov_b32 v51, 0")
    for r in range(0, 16, 2):
        k(f"""v_cvt_pk_bf16_f32 v48, v{16+r}, v{17+r}
        v_lshlrev_b32 v{16+r}, 16, v48
        v_and_b32 v{17+r}, 0xffff0000, v48
        v_lshlrev_b32 v{32+r}, 16, v{32+r}
        v_lshlrev_b32 v{33+r}, 16, v{33+r}
        v_pk_add_f32 v[{16+r}:{17+r}], v[{16+r}:{17+r}], v[{32+r}:{33+r}]
        v_cvt_pk_bf16_f32 v{32+r//2}, v{16+r}, v{17+r}""")
    k('s_cmp_eq_u32 s42, 0\ns_cbranch_scc1 oproj_mid')
    k("""v_lshlrev_b32 v10, 10, v6
    v_lshl_add_u32 v10, v2, 3, v10
    s_lshl_b32 s18, s13, 17
    s_lshl_b32 s19, s12, 6
    s_add_u32 s18, s18, s19""")
    for q in range(4):
        k(f"buffer_store_dwordx2 v[{32+2*q}:{33+2*q}], v10, s[24:27], s18 offen offset:{16*q}")
    k('s_endpgm'); k.label('oproj_mid')
    for r in range(0, 16, 2):
        unpack(k, 48, 49, 32+r//2)
        k(f"""v_add_f32 v50, v50, v48
        v_fmac_f32 v51, v48, v48
        v_add_f32 v50, v50, v49
        v_fmac_f32 v51, v49, v49
        s_add_u32 s18, s17, {(8*(r//4)+r%4)*4096}
        s_add_u32 s19, s17, {(8*(r//4)+r%4+1)*4096}
        buffer_store_short v{32+r//2}, v9, s[8:11], s18 offen
        buffer_store_short_d16_hi v{32+r//2}, v9, s[8:11], s19 offen""")
    k(f"""v_mov_b32 v52, v50
    v_mov_b32 v53, v51
    s_nop 1
    v_permlane32_swap_b32 v50, v52
    v_permlane32_swap_b32 v51, v53
    v_add_f32 v50, v50, v52
    v_add_f32 v51, v51, v53
    v_cmp_eq_u32 vcc, 1, v2
    s_nop 1
    v_cndmask_b32 v50, v50, v51, vcc
    v_lshlrev_b32 v10, 3, v6
    v_lshl_add_u32 v10, v2, 2, v10
    s_lshl_b32 s18, s13, 10
    s_add_u32 s18, s18, {ST1}
    buffer_atomic_add_f32 v50, v10, s[8:11], s18 offen""")
    stamp(k, 4); stamp_out(k, 5)
    footer(k); sink_srd(k)
    return k.text(), desc(name, 224+128, 224, pl=True) + "\n.p2align 6\n" + desc("oproj2_kernel", 224+128, 224, pl=True)
```

```python
XT0, XT1, XT2, XT3 = 0x000000, 0x200000, 0x400000, 0x600000
KR   = 0x800000
WQT  = 0xD00000
WOT  = 0xF00000
QB, KB, VT = 0x1000000, 0x1200000, 0x1400000
OB   = 0x1600000
ST0, ST1 = 0x1800000, 0x1810000
CS = 0x1820000
CONST = 0x1A00000
WS_BYTES = 0x10000000

class K:
    def __init__(self, name):
        self.name = name; self.L = []
    def __call__(self, s):
        for line in s.strip("\n").split("\n"):
            self.L.append("    " + line.strip())
    def label(self, l): self.L.append(l + ":")
    def text(self): return "\n".join(self.L)

import os
PL = False
def prologue(k, en):
    if PL:
        k("s_load_dwordx2 s[2:3], s[0:1], 96\ns_load_dwordx4 s[4:7], s[0:1], 104\ns_waitcnt lgkmcnt(0)\ns_branch %s_pl" % en)
        k.L.append(".p2align 8\n%s_pl:" % en)
        k("s_mov_b64 s[4:5], s[6:7]\ns_mov_b64 s[6:7], s[2:3]\ns_mov_b32 s2, s8")
    else:
        k("s_load_dwordx2 s[4:5], s[0:1], 112\ns_load_dwordx2 s[6:7], s[0:1], %d" % (64 if 'conv' in en else 96))

def header(k, nwg, pl=False):
    n = k.name
    k.L.append(".globl %s\n.p2align 8\n.type %s,@function\n%s:" % (n, n, n))
    if pl: prologue(k, n)
    k("s_cmp_ge_u32 s2, %d\ns_cbranch_scc1 %s_end" % (nwg, n))

def footer(k):
    k.label(k.name + "_end"); k("s_endpgm")

def srd(k, d, b, nbytes):
    k("s_mov_b32 s%d, s%d\ns_and_b32 s%d, s%d, 0xffff\ns_mov_b32 s%d, 0x%x\ns_mov_b32 s%d, 0x00020000" % (d, b, d+1, b+1, d+2, nbytes, d+3))

def desc(name, vgpr, accum=None, sgpr=96, pl=False):
    if accum is None: accum = (vgpr + 3) // 4 * 4
    t = _desc(name, vgpr, accum, sgpr)
    if pl and PL: t = t.replace(".amdhsa_user_sgpr_count 2", ".amdhsa_user_sgpr_count 8\n  .amdhsa_user_sgpr_kernarg_preload_length 6\n  .amdhsa_user_sgpr_kernarg_preload_offset 24")
    return t
def _desc(name, vgpr, accum, sgpr):
    return """.amdhsa_kernel %s
  .amdhsa_next_free_vgpr %d
  .amdhsa_next_free_sgpr %d
  .amdhsa_accum_offset %d
  .amdhsa_group_segment_fixed_size 0
  .amdhsa_kernarg_size 120
  .amdhsa_user_sgpr_count 2
  .amdhsa_user_sgpr_kernarg_segment_ptr 1
  .amdhsa_system_sgpr_workgroup_id_x 1
.end_amdhsa_kernel""" % (name, vgpr, sgpr, accum)

def unpack(k, lo, hi, src):
    k("v_lshlrev_b32 v%d, 16, v%d\nv_and_b32 v%d, 0xffff0000, v%d" % (lo, src, hi, src))

def ln_finalize(k, s1, s2, t0, t1):
    k(f"""v_mul_f32 v{s1}, 0x3b000000, v{s1}
    v_mul_f32 v{s2}, 0x3b000000, v{s2}
    v_fma_f32 v{s2}, -v{s1}, v{s1}, v{s2}
    v_max_f32 v{s2}, 0, v{s2}
    v_cvt_pk_bf16_f32 v{t0}, v{s1}, v{s2}
    v_lshlrev_b32 v{s1}, 16, v{t0}
    v_and_b32 v{s2}, 0xffff0000, v{t0}
    v_add_f32 v{s2}, 0x3727c5ac, v{s2}
    v_cvt_pk_bf16_f32 v{t0}, v{s2}, v{s2}
    v_lshlrev_b32 v{s2}, 16, v{t0}
    v_sqrt_f32 v{s2}, v{s2}
    s_nop 0
    v_cvt_pk_bf16_f32 v{t0}, v{s2}, v{s2}
    v_lshlrev_b32 v{s2}, 16, v{t0}
    v_rcp_f32 v{s2}, v{s2}
    s_nop 0""")

def header2(k, nwg, entries):
    n = k.name
    for i, (en, init) in enumerate(reversed(entries)):
        k.L.append(".globl %s\n.p2align 8\n.type %s,@function\n%s:" % (en, en, en))
        prologue(k, en)
        k("s_cmp_ge_u32 s2, %d\ns_cbranch_scc1 %s_end" % (nwg, n))
        for l in init: k(l)
        if i < len(entries) - 1: k("s_branch %s_body" % n)
    k.label(n + "_body")

import os
STAMP = os.environ.get('STAMP')
def stamp(k, i):
    if STAMP and STAMP in k.name:
        k(f"s_memtime s[{60+2*i}:{61+2*i}]\ns_waitcnt lgkmcnt(0)")
def stamp_out(k, n, wg=0, srd="s[8:11]"):
    if STAMP and STAMP in k.name:
        k(f"s_waitcnt vmcnt(0)\ns_memtime s[{60+2*n}:{61+2*n}]\ns_waitcnt lgkmcnt(0)\ns_cmp_lg_u32 s2, {wg}\ns_cbranch_scc1 {k.name}_so\nv_mov_b32 v1, 0\ns_mov_b32 s58, 0x1900000")
        for i in range(n+1):
            k(f"s_sub_u32 s57, s{60+2*i}, s60\nv_mov_b32 v2, s57\nbuffer_store_dword v2, v1, {srd}, s58 offen offset:{4*i}")
        k.label(k.name + "_so")

def sink_srd(k):
    import re
    L = k.L; srdl = []; out = []; done = False
    i = 0
    while i < len(L):
        l = L[i].strip()
        if not done and re.match(r"s_mov_b32 s(8|24), s(4|6)$", l):
            srdl += L[i:i+4]; i += 4; continue
        if not done and (l.startswith("buffer_") or l.startswith("global_")):
            pre = [x for j, x in enumerate(srdl) if j % 4 >= 2]; post = [x for j, x in enumerate(srdl) if j % 4 < 2]
            out += pre; out.append("    s_waitcnt lgkmcnt(0)"); out += post; done = True
        out.append(L[i]); i += 1
    k.L = out
```

```python
from gen_common import *
import os
def k1():
    k = K("prep_kernel"); header(k, 664)
    PW = os.environ.get('PW', 'x')
    stamp(k, 0)
    k("""s_cmp_ge_u32 s2, 128
    s_cbranch_scc1 prep_kgen
    s_load_dwordx2 s[4:5], s[0:1], 0
    s_load_dwordx2 s[6:7], s[0:1], 80
    s_load_dwordx2 s[8:9], s[0:1], 88
    s_load_dwordx2 s[10:11], s[0:1], 112
    s_waitcnt lgkmcnt(0)""")
    srd(k, 16, 10, WS_BYTES)
    k("""s_cmp_ge_u32 s2, 64
    s_cbranch_scc1 prep_m1""")
    srd(k, 12, 4, 0x200000)
    k(f"""s_lshl_b32 s20, s2, 15
    s_mov_b32 s21, 1024
    s_lshl_b32 s22, s2, 6
    s_add_u32 s22, s22, {XT0}
    s_mov_b32 s23, 0x100000
    s_mov_b32 s24, 0
    v_lshlrev_b32 v50, 12, v0
    s_branch prep_go""")
    k.label("prep_m1")
    k("""s_cmp_ge_u32 s2, 112
    s_cbranch_scc1 prep_m2""")
    srd(k, 12, 6, 0x180000)
    k(f"""s_sub_u32 s3, s2, 64
    s_lshr_b32 s25, s3, 4
    s_and_b32 s26, s3, 15
    s_mul_i32 s20, s26, 98304
    s_lshl_b32 s27, s25, 10
    s_add_u32 s20, s20, s27
    s_mov_b32 s21, 3072
    s_lshl_b32 s22, s25, 14
    s_lshl_b32 s27, s26, 10
    s_add_u32 s22, s22, s27
    s_add_u32 s22, s22, {WQT}
    s_mov_b32 s23, 786432
    s_mov_b32 s24, 1
    v_lshrrev_b32 v6, 4, v0
    v_mul_u32_u24 v6, 49152, v6
    v_and_b32 v7, 15, v0
    v_lshl_add_u32 v50, v7, 4, v6
    s_branch prep_go""")
    k.label("prep_m2")
    srd(k, 12, 8, 0x80000)
    k(f"""s_sub_u32 s3, s2, 112
    s_lshl_b32 s20, s3, 15
    s_mov_b32 s21, 1024
    s_lshl_b32 s22, s3, 11
    s_add_u32 s22, s22, {WOT}
    s_mov_b32 s23, 262144
    s_mov_b32 s24, 2
    v_lshrrev_b32 v6, 5, v0
    v_lshlrev_b32 v6, 15, v6
    v_and_b32 v7, 31, v0
    v_lshl_add_u32 v50, v7, 4, v6""")
    k.label("prep_go")
    if PW == 'x': stamp(k, 1)
    k("""v_lshrrev_b32 v1, 3, v0
    v_and_b32 v2, 7, v0
    v_mul_lo_u32 v3, v1, s21
    v_lshl_add_u32 v3, v2, 4, v3
    v_mul_u32_u24 v4, 1088, v1
    v_lshl_add_u32 v4, v2, 4, v4""")
    for i in range(8):
        k(f"buffer_load_dwordx4 v[{8+4*i}:{11+4*i}], v3, s[12:15], s20 offen offset:{128*i}")
    k("""v_and_b32 v5, 15, v0
    v_lshrrev_b32 v5, 2, v5
    v_mul_u32_u24 v5, 1088, v5
    v_and_b32 v6, 0xf0, v0
    v_and_b32 v7, 3, v0
    v_lshl_add_u32 v6, v7, 2, v6
    v_lshl_add_u32 v5, v6, 1, v5""")
    for i in range(8):
        k(f"s_waitcnt vmcnt({7-i})\nds_write_b128 v4, v[{8+4*i}:{11+4*i}] offset:{128*i}")
    if PW == 'x': stamp(k, 2)
    k("""s_cmp_lg_u32 s24, 0
    s_cbranch_scc1 prep_nostats
    v_mov_b32 v60, 0
    v_mov_b32 v61, 0""")
    for r in range(8, 40):
        unpack(k, 62, 63, r)
        k("""v_add_f32 v60, v60, v62
        v_fmac_f32 v61, v62, v62
        v_add_f32 v60, v60, v63
        v_fmac_f32 v61, v63, v63""")
    for dpp in ("quad_perm:[1,0,3,2]", "quad_perm:[2,3,0,1]", "row_half_mirror"):
        k(f"""s_nop 1
        v_add_f32_dpp v60, v60, v60 {dpp} row_mask:0xf bank_mask:0xf
        v_add_f32_dpp v61, v61, v61 {dpp} row_mask:0xf bank_mask:0xf""")
    k(f"""s_lshl_b32 s3, s2, 8
    s_add_u32 s3, s3, {ST0}
    v_lshlrev_b32 v62, 3, v1
    v_cmp_eq_u32 vcc, 0, v2
    s_and_saveexec_b64 s[28:29], vcc
    buffer_store_dwordx2 v[60:61], v62, s[16:19], s3 offen
    s_mov_b64 exec, s[28:29]""")
    k.label("prep_nostats")
    if PW == 'x': stamp(k, 3)
    k("""s_waitcnt lgkmcnt(0)
    s_barrier
    s_add_u32 s25, s23, s22
    s_cmp_eq_u32 s24, 1
    s_cbranch_scc1 prep_perm
    s_cmp_eq_u32 s24, 2
    s_cbranch_scc1 prep_wo""")
    for variant in (0, 1, 2):
        if variant == 1: k.label("prep_perm")
        if variant == 2: k.label("prep_wo")
        for p in range(2):
            for i in range(8):
                if variant != 1: d = 8 + 16*p + 2*i
                else: d = 8 + 16*p + (4*i if i < 4 else 4*(i-4)+2)
                k(f"ds_read_b64_tr_b16 v[{d}:{d+1}], v5 offset:{4352*i+512*p}")
        for p in range(2):
            k(f"s_waitcnt lgkmcnt({8*(1-p)})")
            for j in range(4):
                k(f"buffer_store_dwordx4 v[{8+16*p+4*j}:{11+16*p+4*j}], v50, s[16:19], s{22 if p==0 else 25} offen offset:{(16,256,512)[variant]*j}")
        if PW == 'x' and variant == 0: stamp(k, 4); stamp_out(k, 5, 5, "s[16:19]")
        k("s_endpgm")
    k.label("prep_cs")
    k("""s_load_dwordx2 s[6:7], s[0:1], 80
    s_load_dwordx2 s[10:11], s[0:1], 112
    s_sub_u32 s3, s2, 640
    s_lshl_b32 s20, s3, 7
    v_lshrrev_b32 v1, 3, v0
    v_and_b32 v2, 7, v0
    v_mul_u32_u24 v3, 3072, v1
    v_lshl_add_u32 v3, v2, 4, v3
    v_lshlrev_b32 v4, 5, v0
    v_lshlrev_b32 v5, 2, v0
    s_waitcnt lgkmcnt(0)""")
    srd(k, 12, 6, 0x180000)
    srd(k, 16, 10, WS_BYTES)
    for i in range(16):
        k(f"buffer_load_dwordx4 v[{16+4*i}:{19+4*i}], v3, s[12:15], s20 offen")
        if i < 15: k("s_add_u32 s20, s20, 98304")
    for i in range(16):
        k(f"s_waitcnt vmcnt({15-i})")
        for d in range(4):
            src = 16 + 4*i + d
            if i == 0: k(f"v_lshlrev_b32 v{80+2*d}, 16, v{src}\nv_and_b32 v{81+2*d}, 0xffff0000, v{src}")
            else: k(f"v_lshlrev_b32 v{8+2*d}, 16, v{src}\nv_and_b32 v{9+2*d}, 0xffff0000, v{src}\nv_pk_add_f32 v[{80+2*d}:{81+2*d}], v[{80+2*d}:{81+2*d}], v[{8+2*d}:{9+2*d}]")
    k("""ds_write_b128 v4, v[80:83]
    ds_write_b128 v4, v[84:87] offset:16
    s_waitcnt lgkmcnt(0)
    s_barrier
    v_cmp_gt_u32 vcc, 64, v0
    s_and_saveexec_b64 s[28:29], vcc
    s_cbranch_execz prep_kernel_end""")
    for i in range(32): k(f"ds_read_b32 v{16+i}, v5 offset:{256*i}")
    k("s_waitcnt lgkmcnt(0)")
    for st in (16, 8, 4, 2):
        for i in range(0, st, 2): k(f"v_pk_add_f32 v[{16+i}:{17+i}], v[{16+i}:{17+i}], v[{16+st+i}:{17+st+i}]")
    k(f"""v_add_f32 v16, v16, v17
    s_lshl_b32 s20, s3, 8
    s_add_u32 s20, s20, {CS}
    buffer_store_dword v16, v5, s[16:19], s20 offen
    s_endpgm""")
    k.label("prep_kgen")
    k("""s_cmp_ge_u32 s2, 640
    s_cbranch_scc1 prep_cs
    s_sub_u32 s3, s2, 128
    s_load_dwordx4 s[4:7], s[0:1], 8
    s_load_dwordx4 s[8:11], s[0:1], 24
    s_load_dwordx4 s[12:15], s[0:1], 40
    s_load_dwordx2 s[16:17], s[0:1], 56
    s_load_dwordx2 s[18:19], s[0:1], 112
    v_and_b32 v1, 127, v0
    s_lshl_b32 s20, s3, 8
    v_lshl_add_u32 v2, v1, 1, s20
    s_lshl_b32 s21, s3, 1
    v_mov_b32 v3, s21
    s_waitcnt lgkmcnt(0)
    global_load_ushort v4, v2, s[4:5]
    global_load_ushort v5, v2, s[6:7]
    global_load_ushort v6, v2, s[8:9]
    global_load_ushort v7, v2, s[10:11]
    global_load_ushort v8, v2, s[12:13]
    global_load_ushort v9, v2, s[14:15]
    global_load_ushort v10, v3, s[16:17]""")
    srd(k, 24, 18, WS_BYTES)
    k(f"""s_cmp_lg_u32 s3, 5
    s_cbranch_scc1 prep_noconst
    v_mov_b32 v16, 0x3f803f80
    v_mov_b32 v17, 0x3f803f80
    v_mov_b32 v18, 0x3f803f80
    v_mov_b32 v19, 0x3f803f80
    v_mov_b32 v20, 0
    v_mov_b32 v21, 0
    v_mov_b32 v22, 0
    v_mov_b32 v23, 0
    v_lshlrev_b32 v11, 4, v0
    s_mov_b32 s22, {CONST}
    s_mov_b32 s23, {CONST + 0x1000}
    s_mov_b32 s28, {CONST + 0x2000}
    buffer_store_dwordx4 v[16:19], v11, s[24:27], s22 offen
    buffer_store_dwordx4 v[16:19], v11, s[24:27], s23 offen
    buffer_store_dwordx4 v[16:19], v11, s[24:27], s28 offen
    v_add_u32 v11, 0x4000, v11
    buffer_store_dwordx4 v[20:23], v11, s[24:27], s22 offen
    buffer_store_dwordx4 v[20:23], v11, s[24:27], s23 offen
    buffer_store_dwordx4 v[20:23], v11, s[24:27], s28 offen""")
    k.label("prep_noconst")
    if PW == 'k': stamp(k, 1)
    DRY = os.environ.get('DRY', '1') == '1'
    k("s_mov_b32 s31, 0")
    if DRY: k("s_mov_b32 s31, 1\ns_mov_b64 exec, 0\ns_branch prep_dry")
    k.label("prep_real")
    k("""s_waitcnt vmcnt(0)""")
    if PW == 'k': stamp(k, 2)
    k.label("prep_dry")
    for r in range(16): k(f"v_mov_b32 v{80+r}, 0")
    k("""s_nop 0
    v_lshlrev_b32 v4, 16, v4
    v_lshlrev_b32 v5, 16, v5
    v_lshlrev_b32 v6, 16, v6
    v_lshlrev_b32 v7, 16, v7
    v_lshlrev_b32 v8, 16, v8
    v_lshlrev_b32 v9, 16, v9
    v_lshlrev_b32 v10, 16, v10
    v_mul_f32 v10, 0x3fb8aa3b, v10
    v_exp_f32 v10, v10
    s_nop 0
    v_cvt_pk_bf16_f32 v10, v10, v10
    v_lshlrev_b32 v10, 16, v10
    v_mul_f32 v12, v10, v4
    v_mul_f32 v12, 0x3fb8aa3b, v12
    v_mul_f32 v13, v10, v5
    v_mul_f32 v13, 0x3e22f983, v13
    v_mul_f32 v6, v10, v6
    v_mul_f32 v7, v10, v7
    v_mul_f32 v14, v8, v6
    v_fma_f32 v14, -v9, v7, v14
    v_mul_f32 v15, v8, v7
    v_fma_f32 v15, v9, v6, v15
    v_mul_f32 v16, 0x43800000, v12
    v_mul_f32 v17, 0x43800000, v13
    v_exp_f32 v16, v16
    v_fract_f32 v17, v17
    v_sub_f32 v21, 0, v15
    v_sin_f32 v19, v17
    v_cos_f32 v18, v17
    v_mov_b32 v20, v14
    v_sub_f32 v23, 0, v14
    v_mov_b32 v22, v21
    v_mul_f32 v15, v19, v16
    v_mul_f32 v14, v18, v16
    v_lshlrev_b32 v2, 5, v1
    ds_write_b128 v2, v[12:15] offset:13312
    ds_write_b128 v2, v[20:23] offset:13328
    v_and_b32 v2, 3, v0
    v_lshlrev_b32 v2, 2, v2
    v_mov_b32 v3, 0
    ds_write_b32 v2, v3
    v_lshrrev_b32 v16, 6, v0
    v_and_b32 v17, 15, v0
    v_bfe_u32 v18, v0, 4, 2
    v_cvt_f32_u32 v21, v17
    v_mul_f32 v20, 0x41800000, v21
    v_lshlrev_b32 v19, 10, v16
    v_lshl_add_u32 v19, v18, 5, v19
    v_lshlrev_b32 v22, 10, v18
    v_lshl_add_u32 v22, v17, 4, v22
    v_lshl_add_u32 v22, v16, 2, v22
    s_waitcnt lgkmcnt(0)
    s_barrier
    ds_read_b128 v[24:27], v19 offset:13312
    ds_read_b128 v[28:31], v19 offset:13328""")
    if PW == 'k': stamp(k, 3)
    k("s_cmp_eq_u32 s31, 1\ns_mov_b32 s31, 0\ns_mov_b64 exec, -1\ns_cbranch_scc1 prep_real\ns_mov_b32 s30, 4")
    k.label("prep_loop")
    for s in range(2):
        P = 24 if s % 2 == 0 else 32
        Pn = 32 if s % 2 == 0 else 24
        k(f"ds_read_b128 v[{Pn}:{Pn+3}], v19 offset:{13312+128*(s+1)}\nds_read_b128 v[{Pn+4}:{Pn+7}], v19 offset:{13328+128*(s+1)}\ns_waitcnt lgkmcnt(2)")
        if s == 1: k("v_add_u32 v19, 256, v19")
        k(f"""v_pk_mul_f32 v[40:41], v[20:21], v[{P}:{P+1}] op_sel:[0,0] op_sel_hi:[1,0]
        v_pk_mul_f32 v[42:43], v[20:21], v[{P}:{P+1}] op_sel:[0,1] op_sel_hi:[1,1]
        v_exp_f32 v40, v40
        v_exp_f32 v41, v41
        v_fract_f32 v42, v42
        v_fract_f32 v43, v43
        v_sin_f32 v44, v42
        v_sin_f32 v45, v43
        v_cos_f32 v46, v42
        v_cos_f32 v47, v43
        s_nop 0
        v_pk_mul_f32 v[66:67], v[44:45], v[40:41]
        v_pk_mul_f32 v[64:65], v[46:47], v[40:41]""")
        for w in range(4):
            re, im, A = 64+4*w, 66+4*w, 56+2*w
            k(f"""v_pk_mul_f32 v[{A}:{A+1}], v[{P+4}:{P+5}], v[{re}:{re+1}] op_sel:[0,0] op_sel_hi:[1,0]
            v_pk_fma_f32 v[{A}:{A+1}], v[{P+6}:{P+7}], v[{im}:{im+1}], v[{A}:{A+1}] op_sel:[0,0,0] op_sel_hi:[1,0,1]""")
            if w < 3:
                k(f"""v_pk_mul_f32 v[52:53], v[{im}:{im+1}], v[{im}:{im+1}]
                v_pk_add_f32 v[54:55], v[{re}:{re+1}], v[{re}:{re+1}]
                v_pk_fma_f32 v[{re+4}:{re+5}], v[{re}:{re+1}], v[{re}:{re+1}], v[52:53] neg_lo:[0,0,1] neg_hi:[0,0,1]
                v_pk_mul_f32 v[{im+4}:{im+5}], v[54:55], v[{im}:{im+1}]""")
            else: k("s_nop 1")
            if w == 0:
                k(f"""v_mul_f32 v52, v{im+4}, v{P+3}
                v_mul_f32 v53, v{im+4}, v{P+2}
                v_fma_f32 v{im+4}, v{re+4}, v{P+3}, v53
                v_fma_f32 v{re+4}, v{re+4}, v{P+2}, -v52""")
            c = 80+4*w; C = f"v[{c}:{c+3}]"
            k(f"""v_mfma_f32_16x16x4_f32 v[{c}:{c+3}], v{A}, v{re+1}, {C}
            v_mfma_f32_16x16x4_f32 v[{c}:{c+3}], v{A+1}, v{im+1}, v[{c}:{c+3}]""")
    k("s_sub_u32 s30, s30, 1\ns_cmp_lg_u32 s30, 0\ns_cbranch_scc1 prep_loop")
    k.label("prep_tail")
    k("s_waitcnt lgkmcnt(0)")
    if PW == 'k': stamp(k, 4)
    k("""v_lshlrev_b32 v1, 3, v0
    v_sub_u32 v1, 2047, v1
    v_cmp_gt_u32 vcc, 2, v18
    s_nop 7""")
    for w in (0, 3, 1, 2):
        if w == 1: k("s_and_saveexec_b64 s[28:29], vcc")
        for r in range(4):
            k(f"ds_write_b32 v22, v{80+4*w+r} offset:{4*(4 + 64*r + 512*w + (512 if w else 0))}")
    k("s_mov_b64 exec, s[28:29]")
    for e in range(9):
        k(f"""v_subrev_u32 v{24+e}, {e}, v1
        v_max_i32 v{34+e}, 0, v{24+e}
        v_cvt_f32_u32 v{34+e}, v{34+e}
        v_min_i32 v{24+e}, 127, v{24+e}""")
    for e in range(0, 9, 2):
        k(f"v_cvt_pk_bf16_f32 v{34+e}, v{34+e}, v{34+min(e+1,8)}")
        if e < 8: k(f"v_lshrrev_b32 v{35+e}, 16, v{34+e}")
        k(f"v_and_b32 v{34+e}, 0xffff, v{34+e}")
    for e in range(9):
        k(f"""v_subrev_u32 v{34+e}, 17024, v{34+e}
        v_max_i32 v{24+e}, v{24+e}, v{34+e}
        v_lshlrev_b32 v{24+e}, 4, v{24+e}""")
    k("s_waitcnt lgkmcnt(0)\ns_barrier")
    if PW == 'k': stamp(k, 5)
    for e in range(9):
        k(f"ds_read_b128 v[{44+4*e}:{47+4*e}], v{24+e} offset:16")
    for e in range(9):
        k(f"s_waitcnt lgkmcnt({8-e})\nv_pk_add_f32 v[{44+4*e}:{45+4*e}], v[{44+4*e}:{45+4*e}], v[{46+4*e}:{47+4*e}]\nv_add_f32 v{24+e}, v{44+4*e}, v{45+4*e}")
    k(f"""s_mul_i32 s20, s3, 8448
    s_add_u32 s20, s20, {KR}
    v_lshlrev_b32 v1, 4, v0
    s_waitcnt lgkmcnt(0)
    v_cvt_pk_bf16_f32 v8, v24, v25
    v_cvt_pk_bf16_f32 v9, v26, v27
    v_cvt_pk_bf16_f32 v10, v28, v29
    v_cvt_pk_bf16_f32 v11, v30, v31
    v_cvt_pk_bf16_f32 v12, v25, v26
    v_cvt_pk_bf16_f32 v13, v27, v28
    v_cvt_pk_bf16_f32 v14, v29, v30
    v_cvt_pk_bf16_f32 v15, v31, v32
    s_add_u32 s21, s20, 4224
    buffer_store_dwordx4 v[8:11], v1, s[24:27], s20 offen
    buffer_store_dwordx4 v[12:15], v1, s[24:27], s21 offen
    v_lshrrev_b32 v2, 3, v0
    v_mul_u32_u24 v2, 4224, v2
    v_and_b32 v3, 7, v0
    v_lshl_add_u32 v2, v3, 4, v2
    v_mov_b32 v16, 0
    v_mov_b32 v17, 0
    v_mov_b32 v18, 0
    v_mov_b32 v19, 0
    v_cmp_gt_u32 vcc, 16, v0
    s_and_saveexec_b64 s[28:29], vcc
    s_cbranch_execz prep_kgen_done
    buffer_store_dwordx4 v[16:19], v2, s[24:27], s20 offen offset:4095
    """)
    k.label("prep_kgen_done")
    if PW == 'k': k("s_mov_b64 exec, -1"); stamp(k, 6); stamp_out(k, 7, 300, "s[24:27]")
    footer(k)
    t = k.text()
    t = t.replace("v_lshl_add_u32 v2, v3, 4, v2\n    v_mov_b32 v16, 0", "v_lshl_add_u32 v2, v3, 4, v2\n    v_add_u32 v2, 4096, v2\n    v_mov_b32 v16, 0")
    t = t.replace(" offen offset:4095", " offen")
    return t, desc("prep_kernel", 96)
```

```python
from gen_common import *
import os
QKV_LDS = 81920 + 512
STAT = 81920
def k3():
    name = "qkv1_kernel"; k = K(name)
    header2(k, 256, [("qkv1_kernel", [f"s_mov_b32 s40, {XT1}"]), ("qkv2_kernel", [f"s_mov_b32 s40, {XT3}"])])
    stamp(k, 0)
    stamp(k, 1)
    srd(k, 8, 4, WS_BYTES)
    k(f"""s_and_b32 s12, s2, 1
    s_lshl_b32 s12, s12, 2
    s_bfe_u32 s13, s2, 0x20003
    s_add_u32 s12, s12, s13
    s_bfe_u32 s13, s2, 0x20001
    s_lshl_b32 s13, s13, 3
    s_lshr_b32 s14, s2, 5
    s_add_u32 s13, s13, s14
    s_lshl_b32 s14, s13, 7
    s_add_u32 s14, s14, s40
    v_and_b32 v1, 7, v0
    v_lshrrev_b32 v2, 3, v0
    v_lshlrev_b32 v3, 12, v2
    v_lshl_add_u32 v3, v1, 4, v3
    s_mov_b32 s15, s14
    s_lshl_b32 s16, s12, 8
    s_add_u32 s16, s16, {CS}
    s_add_u32 s17, s16, 4096
    v_and_b32 v4, 0xf0, v0
    v_and_b32 v5, 15, v0
    v_lshrrev_b32 v6, 6, v0
    v_lshlrev_b32 v6, 6, v6
    v_lshl_add_u32 v6, v5, 2, v6
    buffer_load_dwordx4 v[160:163], v4, s[8:11], s16 offen
    buffer_load_dwordx4 v[164:167], v4, s[8:11], s16 offen offset:2048
    buffer_load_dword v168, v6, s[8:11], s17 offen""")
    issued = []
    def xload(i):
        k(f"buffer_load_dwordx4 v[{16+4*i}:{19+4*i}], v3, s[8:11], s15 offen")
        if i < 15: k("s_add_u32 s15, s15, 0x20000")
        issued.append(('x', i))
    def after(tag):
        idx = max(j for j, t in enumerate(issued) if t == tag)
        return len(issued) - 1 - idx
    for i in range(8): xload(i)
    k(f"""v_lshrrev_b32 v4, 6, v0
    v_mul_u32_u24 v6, 49152, v4
    v_and_b32 v5, 63, v0
    v_lshl_add_u32 v6, v5, 4, v6
    s_mul_i32 s17, s12, 196608
    s_add_u32 s17, s17, {WQT}
    s_add_u32 s18, s17, 16384
    s_add_u32 s19, s17, 32768""")
    def wload1(s, p):
        a = 12*s + 4*p
        k(f"buffer_load_dwordx4 a[{a}:{a+3}], v6, s[8:11], s{17+p} offen offset:{1024*(s%4)}")
        if s % 4 == 3 and s < 15: k(f"s_add_u32 s{17+p}, s{17+p}, 4096")
        issued.append(('w', s))
    def wload(s):
        for p in range(3): wload1(s, p)
    PFQ = int(os.environ.get('PFQ', 4))
    NW0 = int(os.environ.get('NW0', 2))
    for s in range(NW0): wload(s)
    k(f"""v_and_b32 v5, 15, v0
    v_bfe_u32 v7, v0, 4, 2
    v_mul_u32_u24 v11, 160, v2
    v_lshl_add_u32 v11, v1, 4, v11
    v_add_u32 v12, 40960, v11
    v_lshrrev_b32 v13, 2, v5
    v_lshl_add_u32 v13, v7, 2, v13
    v_mul_u32_u24 v13, 160, v13
    v_and_b32 v14, 3, v0
    v_lshl_add_u32 v13, v14, 3, v13
    v_add_u32 v14, 40960, v13
    v_lshl_add_u32 v8, v4, 5, v13
    v_add_u32 v9, 40960, v8
    v_mov_b32 v180, 0x3f803f80
    v_mov_b32 v181, 0x3f803f80
    v_mov_b32 v182, 0x3f803f80
    v_mov_b32 v183, 0x3f803f80
    s_lshl_b32 s16, s12, 2
    v_add_u32 v4, s16, v4""")
    for i in range(8):
        k(f"s_waitcnt vmcnt({after(('x', i))})")
        k(f"ds_write_b128 v11, v[{16+4*i}:{19+4*i}] offset:{5120*i}")
    k(f"""s_lshl_b32 s22, s13, 11
    s_add_u32 s23, s22, {KB}
    s_add_u32 s24, s22, {VT}
    s_add_u32 s22, s22, {QB}
    v_lshlrev_b32 v15, 16, v4
    v_lshl_add_u32 v15, v5, 4, v15
    v_lshrrev_b32 v82, 1, v7
    v_and_b32 v83, 1, v7
    v_lshl_add_u32 v10, v83, 8, v15
    v_lshl_add_u32 v10, v82, 3, v10
    v_lshl_add_u32 v15, v82, 9, v15
    v_lshl_add_u32 v15, v83, 3, v15""")
    k("s_waitcnt lgkmcnt(0)\ns_barrier")
    stamp(k, 2)
    def reads(s):
        b = 192 + 20*(s % 2); R = []
        base, b2, so = ("v13", "v8", 5120*s) if s < 8 else ("v14", "v9", 5120*(s-8))
        for tq in range(4):
            R.append(f"ds_read_b64_tr_b16 v[{b+4*tq}:{b+4*tq+1}], {base} offset:{so+32*tq}")
            R.append(f"ds_read_b64_tr_b16 v[{b+4*tq+2}:{b+4*tq+3}], {base} offset:{so+32*tq+2560}")
        R.append(f"ds_read_b64_tr_b16 v[{b+16}:{b+17}], {b2} offset:{so}")
        R.append(f"ds_read_b64_tr_b16 v[{b+18}:{b+19}], {b2} offset:{so+2560}")
        return R
    for r in reads(0): k(r)
    nextw = [NW0+2]; XW = int(os.environ.get('XW', 5))
    for s in range(16):
        if s == 7: k("s_waitcnt lgkmcnt(0)\ns_barrier"); stamp(k, 3)
        R = reads(s+1) if s < 15 else []
        b = 192 + 20*(s % 2)
        def C(c): return "0" if s == 0 else f"v[{c}:{c+3}]"
        M = []
        for tq in range(4):
            for p in range(3):
                a = 12*s + 4*p; c = 112 + 16*p + 4*tq
                if p < 2: M.append(f"v_mfma_f32_16x16x32_bf16 v[{c}:{c+3}], a[{a}:{a+3}], v[{b+4*tq}:{b+4*tq+3}], {C(c)}")
                else: M.append(f"v_mfma_f32_16x16x32_bf16 v[{c}:{c+3}], v[{b+4*tq}:{b+4*tq+3}], a[{a}:{a+3}], {C(c)}")
        M.append(f"v_mfma_f32_16x16x32_bf16 v[172:175], v[{b+16}:{b+19}], v[{b+16}:{b+19}], {C(172)}")
        M.append(f"v_mfma_f32_16x16x32_bf16 v[176:179], v[180:183], v[{b+16}:{b+19}], {C(176)}")
        extra = 0; j = 0
        Q = []
        if s < 2: Q += [('w', NW0+s, p) for p in range(3)] + [('x', 8+4*s+i) for i in range(4)]
        else:
            n = 0
            while nextw[0] < 16 and nextw[0] <= s + PFQ and n < 2: Q += [('w', nextw[0], p) for p in range(3)]; nextw[0] += 1; n += 1
        for i, m in enumerate(M):
            if i % 3 == 0:
                old = 10 - 2*(i//3 + 1)
                w = f"s_waitcnt lgkmcnt({min(15, old + extra + j)})"
                if i == 0: w = f"s_waitcnt vmcnt({min(63, after(('x', 15)) if s == XW else 63, after(('w', s)))}) lgkmcnt({old})"
                k(w)
            k(m)
            if i == 0 and s == XW:
                for x in range(8, 16): k(f"ds_write_b128 v12, v[{16+4*x}:{19+4*x}] offset:{5120*(x-8)}")
                extra = 8
            if j < len(R): k(R[j]); j += 1
            if i >= 3 and Q:
                q = Q.pop(0)
                if q[0] == 'w': wload1(q[1], q[2])
                else: xload(q[1])
    k("s_nop 4")
    stamp(k, 4)
    k(f"""v_lshlrev_b32 v56, 2, v7
    v_sub_u32 v56, v5, v56
    v_cmp_eq_u32 vcc, 1, v56
    v_cmp_eq_u32 s[26:27], 2, v56
    v_cmp_eq_u32 s[28:29], 3, v56
    v_lshrrev_b32 v57, 6, v0
    v_lshl_add_u32 v57, v57, 4, v5
    v_lshlrev_b32 v57, 2, v57
    v_add_u32 v57, {STAT}, v57
    v_cndmask_b32 v172, v172, v173, vcc
    v_cndmask_b32 v172, v172, v174, s[26:27]
    v_cndmask_b32 v172, v172, v175, s[28:29]""")
    ln_finalize(k, 176, 172, 58, 59)
    k(f"""v_mul_f32 v176, v176, v172
    v_cmp_gt_u32 vcc, 4, v56
    s_and_saveexec_b64 s[20:21], vcc
    ds_write2_b32 v57, v172, v176 offset0:0 offset1:64
    s_mov_b64 exec, s[20:21]
    v_lshlrev_b32 v58, 2, v5
    v_add_u32 v58, {STAT}, v58
    v_lshlrev_b32 v59, 4, v7
    v_add_u32 v59, {STAT}, v59
    s_waitcnt lgkmcnt(0)
    s_barrier""")
    stamp(k, 5)
    for tq in range(4):
        k(f"ds_read2_b32 v[{16+2*tq}:{17+2*tq}], v58 offset0:{16*tq} offset1:{64+16*tq}")
    for tq in range(4):
        k(f"ds_read_b128 v[{24+8*tq}:{27+8*tq}], v59 offset:{64*tq}")
        k(f"ds_read_b128 v[{28+8*tq}:{31+8*tq}], v59 offset:{256+64*tq}")
    k("s_waitcnt lgkmcnt(8)")
    for p in range(2):
        for tq in range(4):
            c = 112 + 16*p + 4*tq; R = 16 + 2*tq; cs = 160 + 4*p
            for h in range(2):
                k(f"""v_pk_mul_f32 v[60:61], v[{cs+2*h}:{cs+2*h+1}], v[{R}:{R+1}] op_sel:[0,1] op_sel_hi:[1,1]
                v_pk_fma_f32 v[{c+2*h}:{c+2*h+1}], v[{c+2*h}:{c+2*h+1}], v[{R}:{R+1}], v[60:61] op_sel:[0,0,0] op_sel_hi:[1,0,1] neg_lo:[0,0,1] neg_hi:[0,0,1]""")
            k(f"v_cvt_pk_bf16_f32 v{c}, v{c}, v{c+1}\nv_cvt_pk_bf16_f32 v{c+1}, v{c+2}, v{c+3}")
            k(f"buffer_store_dwordx2 v[{c}:{c+1}], v15, s[8:11], s{22+p} offen offset:{(tq//2)*1024+(tq%2)*256}")
    k("s_waitcnt lgkmcnt(0)")
    for tq in range(4):
        c = 144 + 4*tq; R = 24 + 8*tq
        for h in range(2):
            k(f"""v_pk_mul_f32 v[60:61], v[{R+4+2*h}:{R+5+2*h}], v[168:169] op_sel:[0,0] op_sel_hi:[1,0]
            v_pk_fma_f32 v[{c+2*h}:{c+2*h+1}], v[{c+2*h}:{c+2*h+1}], v[{R+2*h}:{R+2*h+1}], v[60:61] neg_lo:[0,0,1] neg_hi:[0,0,1]""")
        k(f"v_cvt_pk_bf16_f32 v{c}, v{c}, v{c+1}\nv_cvt_pk_bf16_f32 v{c+1}, v{c+2}, v{c+3}")
        k(f"buffer_store_dwordx2 v[{c}:{c+1}], v10, s[8:11], s24 offen offset:{512*tq}")
    stamp(k, 6); stamp_out(k, 7)
    footer(k); sink_srd(k)
    return k.text(), desc(name, 256+192, 256, pl=True) + "\n.p2align 6\n" + desc("qkv2_kernel", 256+192, 256, pl=True)
```

```python
from gen_common import *
import os
KC_CH = 34304; KC_CP = 4288; UB = 68608; U_CH = 7680; RED = 83968
CONV_LDS = RED + 16384
def k2():
    name = "conv1_kernel"; k = K(name)
    header2(k, 256, [("conv1_kernel", [f"s_mov_b32 s40, {XT0}", f"s_mov_b32 s41, {XT1}", f"s_mov_b32 s16, {ST0}"]), ("conv2_kernel", [f"s_mov_b32 s40, {XT2}", f"s_mov_b32 s41, {XT3}", f"s_mov_b32 s16, {ST1}"])])
    stamp(k, 0)
    k("""    s_and_b32 s3, s2, 1
    s_lshl_b32 s3, s3, 7
    s_bfe_u32 s12, s2, 0x20001
    s_add_u32 s3, s3, s12
    s_lshr_b32 s12, s2, 3
    s_lshl_b32 s12, s12, 2
    s_add_u32 s2, s3, s12""")
    stamp(k, 1)
    srd(k, 8, 4, WS_BYTES)
    k(f"""s_mul_i32 s12, s2, 16896
    s_add_u32 s12, s12, {KR}
    s_lshl_b32 s13, s2, 13
    s_add_u32 s14, s13, s41
    s_add_u32 s13, s13, s40
    s_add_u32 s15, s13, 4096
    v_lshlrev_b32 v1, 4, v0
    v_lshlrev_b32 v2, 6, v0
    buffer_load_dwordx4 v[100:103], v1, s[8:11], s13 offen
    buffer_load_dwordx4 v[104:107], v1, s[8:11], s15 offen
    buffer_load_dwordx4 v[108:111], v2, s[8:11], s16 offen
    buffer_load_dwordx4 v[112:115], v2, s[8:11], s16 offen offset:16
    buffer_load_dwordx4 v[116:119], v2, s[8:11], s16 offen offset:32
    buffer_load_dwordx4 v[120:123], v2, s[8:11], s16 offen offset:48""")
    for ch in range(2):
        for r in range(2):
            off = ch*8448 + r*4224
            idx = ch*2 + r
            k(f"s_add_u32 s17, s12, {off}\nbuffer_load_dwordx4 v[{4+4*idx}:{7+4*idx}], v1, s[8:11], s17 offen")
    k("""v_lshrrev_b32 v70, 7, v0
    s_lshl_b32 s17, s2, 2
    v_lshl_add_u32 v71, v70, 1, s17
    s_waitcnt lgkmcnt(0)
    global_load_ushort v72, v71, s[6:7]""")
    stamp(k, 2)
    k(f"""v_mov_b32 v124, 0
    v_mov_b32 v125, 0
    v_mov_b32 v126, 0
    v_mov_b32 v127, 0
    v_cmp_gt_u32 vcc, 155, v0
    s_and_saveexec_b64 s[20:21], vcc
    ds_write_b128 v1, v[124:127] offset:{UB-65536+65536 if False else 0}+0
    s_mov_b64 exec, s[20:21]""".replace("offset:0+0", "offset:0"))
    k.L.pop(); k.L.pop();
    k(f"""v_add_u32 v73, {UB}, v1
    ds_write_b128 v73, v[124:127]
    ds_write_b128 v73, v[124:127] offset:{U_CH}
    s_mov_b64 exec, s[20:21]
    v_lshrrev_b32 v73, 2, v0
    v_mul_u32_u24 v73, {KC_CP}, v73
    v_and_b32 v74, 3, v0
    v_lshl_add_u32 v73, v74, 4, v73
    v_cmp_gt_u32 vcc, 64, v0
    s_and_saveexec_b64 s[20:21], vcc
    ds_write_b128 v73, v[124:127] offset:4096
    v_mul_u32_u24 v75, 20, v74
    v_sub_u32 v75, v73, v75
    v_bfe_u32 v76, v0, 3, 2
    v_cmp_le_u32 vcc, v74, v76
    s_and_b64 exec, exec, vcc
    ds_write_b32 v75, v124 offset:4096
    s_mov_b64 exec, s[20:21]""")
    k(f"""v_and_b32 v75, 31, v0
    v_bfe_u32 v76, v0, 5, 1
    v_bfe_u32 v77, v0, 6, 1
    v_sub_u32 v78, 7, v75
    v_and_b32 v78, 7, v78
    v_mul_u32_u24 v79, {KC_CH}, v70
    v_mul_u32_u24 v80, {KC_CP}, v78
    v_add_u32 v79, v79, v80
    v_lshlrev_b32 v80, 3, v76
    v_add_u32 v80, 2047, v80
    v_sub_u32 v80, v80, v75
    v_sub_u32 v80, v80, v78
    v_lshl_add_u32 v79, v80, 1, v79
    v_lshlrev_b32 v80, 6, v77
    v_sub_u32 v79, v79, v80
    v_subrev_u32 v79, {64*62}, v79
    v_mul_u32_u24 v80, {U_CH}, v70
    v_sub_u32 v81, v75, v77
    v_mul_i32_i24 v81, 80, v81
    v_add3_u32 v80, v80, v81, {0})""".replace(", {0})", ", 0").replace(", 0)", ", 0"))
    k(f"""v_lshl_add_u32 v80, v76, 4, v80
    v_add_u32 v80, {UB}, v80""")
    for r in range(32): k(f"v_mov_b32 v{128+r}, 0")
    k(f"""v_and_b32 v82, 63, v0
    v_lshlrev_b32 v82, 4, v82
    v_lshl_add_u32 v82, v70, 13, v82
    v_add_u32 v82, {RED}, v82
    v_lshl_add_u32 v83, v77, 12, v82
    v_xor_b32 v84, 4096, v83
    v_lshlrev_b32 v85, 5, v77
    v_add_u32 v85, v85, v75
    v_lshlrev_b32 v86, 6, v85
    v_lshl_add_u32 v86, v76, 3, v86
    v_lshl_add_u32 v86, v70, 12, v86
    v_add_u32 v87, 31, v85
    v_mul_u32_u24 v87, 80, v87
    v_lshl_add_u32 v87, v76, 3, v87
    v_mul_u32_u24 v88, {U_CH}, v70
    v_add3_u32 v87, v87, v88, {UB}""".replace(f"v_add3_u32 v87, v87, v88, {UB}", f"v_add_u32 v87, v87, v88\nv_add_u32 v87, {UB}, v87"))
    groups = []
    for idx in range(4):
        ch, r0 = idx // 2, idx % 2
        b = 4+4*idx
        for r in range(r0, 8, 2):
            off = ch*KC_CH + r*KC_CP - 2*(r - r0)
            if r - r0 == 0: g = f"s_waitcnt vmcnt({4-idx})\nds_write_b128 v1, v[{b}:{b+3}] offset:{off}"
            elif r - r0 == 4: g = f"ds_write_b64 v1, v[{b}:{b+1}] offset:{off}\nds_write_b64 v1, v[{b+2}:{b+3}] offset:{off+8}"
            else: g = f"v_add_u32 v{20+r}, {off}, v1\nds_write2_b32 v{20+r}, v{b}, v{b+1} offset0:0 offset1:1\nds_write2_b32 v{20+r}, v{b+2}, v{b+3} offset0:2 offset1:3"
            groups.append(g)
    kk = k; k = K("tmp")
    for j in range(8):
        ln_finalize(k, 108+2*j, 109+2*j, 124, 125)
    for ch in range(2):
        for jj in range(4):
            src = 100 + 4*ch + jj
            unpack(k, 124, 125, src)
            m0, r0, m1, r1 = 108+4*jj, 109+4*jj, 110+4*jj, 111+4*jj
            k(f"""v_sub_f32 v124, v124, v{m0}
            v_sub_f32 v125, v125, v{m1}
            v_cvt_pk_bf16_f32 v126, v124, v125
            v_lshlrev_b32 v124, 16, v126
            v_and_b32 v125, 0xffff0000, v126
            v_mul_f32 v124, v124, v{r0}
            v_mul_f32 v125, v125, v{r1}
            v_cvt_pk_bf16_f32 v{src}, v124, v125""")
    lines = k.L; k = kk
    k("s_waitcnt vmcnt(5)")
    STEP = int(os.environ.get('CSTEP', 12))
    for i, l in enumerate(lines):
        k.L.append(l)
        if i % STEP == 3 and groups and 's_nop' not in lines[min(i+1, len(lines)-1)]: k(groups.pop(0))
    for g in groups: k(g)
    stamp(k, 3)
    k(f"""v_lshrrev_b32 v73, 2, v0
    v_mul_u32_u24 v73, 80, v73
    v_lshl_add_u32 v73, v74, 4, v73
    v_add_u32 v73, {UB + 31*80}, v73
    ds_write_b128 v73, v[100:103]
    ds_write_b128 v73, v[104:107] offset:{U_CH}""")
    k("s_waitcnt lgkmcnt(0)\ns_barrier")
    stamp(k, 4)
    def reads(m):
        b = 160 + 24*(m % 3); R = []
        for c in range(2):
            R.append(f"ds_read_b128 v[{b+4*c}:{b+4*c+3}], v79 offset:{64*(62-2*m)+32*c}")
            R.append(f"ds_read_b128 v[{b+16+4*c}:{b+16+4*c+3}], v80 offset:{(63-2*m)*80+32*c}")
            if m <= 15: R.append(f"ds_read_b128 v[{b+8+4*c}:{b+8+4*c+3}], v80 offset:{(31-2*m)*80+32*c}")
        return R
    for q in range(4):
        k(f"buffer_load_dwordx2 v[{28+2*q}:{29+2*q}], v86, s[8:11], s13 offen offset:{16*q}")
        k(f"ds_read_b64 v[{12+2*q}:{13+2*q}], v87 offset:{16*q}")
    for m in range(2):
        for r in reads(m): k(r)
    kk = k; k = K("tmp")
    k("s_waitcnt vmcnt(0)\nv_lshlrev_b32 v72, 16, v72")
    for q in range(4):
        for h in range(2):
            d = 36+4*q+2*h
            unpack(k, d, d+1, 12+2*q+h)
            k(f"""v_pk_mul_f32 v[{d}:{d+1}], v[{d}:{d+1}], v[72:73] op_sel:[0,0] op_sel_hi:[1,0]
            v_cvt_pk_bf16_f32 v60, v{d}, v{d+1}""")
            unpack(k, d, d+1, 60)
            unpack(k, 100+4*q+2*h, 101+4*q+2*h, 28+2*q+h)
    V = k.L; k = kk
    for m in range(32):
        R = reads(m+2) if m + 2 < 32 else []
        k(f"s_waitcnt lgkmcnt({len(reads(m+1)) if m + 1 < 32 else 0})")
        b = 160 + 24*(m % 3); M = []
        for c in range(2):
            M.append(f"v_mfma_f32_32x32x16_bf16 v[144:159], v[{b+4*c}:{b+4*c+3}], v[{b+16+4*c}:{b+16+4*c+3}], v[144:159]")
            if m <= 15:
                M.append(f"v_mfma_f32_32x32x16_bf16 v[128:143], v[{b+4*c}:{b+4*c+3}], v[{b+8+4*c}:{b+8+4*c+3}], v[128:143]")
        per = -(-len(R) // len(M)) if R else 0
        for mm in M:
            k(mm)
            for _ in range(per):
                if R: k(R.pop(0))
            if m >= 6:
                for _ in range(2):
                    if V: k.L.append(V.pop(0))
    assert not V
    stamp(k, 5)
    k("""v_readfirstlane_b32 s30, v77
    s_nop 7
    s_nop 7
    s_cmp_eq_u32 s30, 0
    s_cbranch_scc0 conv_par1""")
    for q in range(4):
        k(f"ds_write_b128 v84, v[{144+4*q}:{147+4*q}] offset:{1024*q}")
    k("s_branch conv_parj")
    k.label("conv_par1")
    for q in range(4):
        k(f"ds_write_b128 v84, v[{128+4*q}:{131+4*q}] offset:{1024*q}")
    k("s_waitcnt lgkmcnt(0)")
    for r in range(0, 16, 2):
        k(f"v_pk_mov_b32 v[{128+r}:{129+r}], v[{144+r}:{145+r}], v[{144+r}:{145+r}] op_sel:[0,1]")
    k.label("conv_parj")
    k("s_waitcnt lgkmcnt(0)\ns_barrier")
    stamp(k, 6)
    for q in range(4):
        k(f"ds_read_b128 v[{20+4*q}:{23+4*q}], v83 offset:{1024*q}")
    for q in range(4):
        k(f"s_waitcnt lgkmcnt({3-q})")
        for h in range(2):
            y0, y1 = 128+4*q+2*h, 129+4*q+2*h; d = 36+4*q+2*h; t = 60+4*h
            k(f"""v_pk_add_f32 v[{y0}:{y1}], v[{y0}:{y1}], v[{20+4*q+2*h}:{21+4*q+2*h}]
            v_cvt_pk_bf16_f32 v{t}, v{y0}, v{y1}""")
            unpack(k, t+2, t+3, t)
            k(f"""v_pk_add_f32 v[{t+2}:{t+3}], v[{d}:{d+1}], v[{t+2}:{t+3}]
            v_cvt_pk_bf16_f32 v{t}, v{t+2}, v{t+3}""")
            unpack(k, t+2, t+3, t)
            k(f"""v_pk_add_f32 v[{t+2}:{t+3}], v[{t+2}:{t+3}], v[{100+4*q+2*h}:{101+4*q+2*h}]
            v_cvt_pk_bf16_f32 v{52+2*q+h}, v{t+2}, v{t+3}""")
        k(f"buffer_store_dwordx2 v[{52+2*q}:{53+2*q}], v86, s[8:11], s14 offen offset:{16*q}")
    stamp(k, 7); stamp_out(k, 8)
    footer(k); sink_srd(k)
    return k.text(), desc(name, 232, pl=True) + "\n.p2align 6\n" + desc("conv2_kernel", 232, pl=True)
```

```python
from gen_common import *
import os
def k1():
    k = K("prep_kernel"); header(k, 664)
    PW = os.environ.get('PW', 'x')
    stamp(k, 0)
    ORD = os.environ.get('ORD', '0')
    if ORD == '1':
        k("""s_add_u32 s3, s2, 128
        s_sub_u32 s4, s2, 512
        s_cmp_lt_u32 s2, 512
        s_cselect_b32 s3, s3, s4
        s_cmp_lt_u32 s2, 640
        s_cselect_b32 s2, s3, s2""")
    if ORD == '2':
        k("""s_add_u32 s3, s2, 64
        s_sub_u32 s4, s2, 512
        s_cmp_lt_u32 s2, 576
        s_cselect_b32 s3, s3, s4
        s_cmp_lt_u32 s2, 64
        s_cselect_b32 s3, s2, s3
        s_cmp_lt_u32 s2, 640
        s_cselect_b32 s2, s3, s2""")
    k("""s_cmp_ge_u32 s2, 128
    s_cbranch_scc1 prep_kgen
    s_load_dwordx2 s[4:5], s[0:1], 0
    s_load_dwordx2 s[6:7], s[0:1], 80
    s_load_dwordx2 s[8:9], s[0:1], 88
    s_load_dwordx2 s[10:11], s[0:1], 112
    s_waitcnt lgkmcnt(0)""")
    srd(k, 16, 10, WS_BYTES)
    k("""s_cmp_ge_u32 s2, 64
    s_cbranch_scc1 prep_m1""")
    srd(k, 12, 4, 0x200000)
    k(f"""s_lshl_b32 s20, s2, 15
    s_mov_b32 s21, 1024
    s_lshl_b32 s22, s2, 6
    s_add_u32 s22, s22, {XT0}
    s_mov_b32 s23, 0x100000
    s_mov_b32 s24, 0
    v_lshlrev_b32 v50, 12, v0
    s_branch prep_go""")
    k.label("prep_m1")
    k("""s_cmp_ge_u32 s2, 112
    s_cbranch_scc1 prep_m2""")
    srd(k, 12, 6, 0x180000)
    k(f"""s_sub_u32 s3, s2, 64
    s_lshr_b32 s25, s3, 4
    s_and_b32 s26, s3, 15
    s_mul_i32 s20, s26, 98304
    s_lshl_b32 s27, s25, 10
    s_add_u32 s20, s20, s27
    s_mov_b32 s21, 3072
    s_lshl_b32 s22, s25, 14
    s_lshl_b32 s27, s26, 10
    s_add_u32 s22, s22, s27
    s_add_u32 s22, s22, {WQT}
    s_mov_b32 s23, 786432
    s_mov_b32 s24, 1
    v_lshrrev_b32 v6, 4, v0
    v_mul_u32_u24 v6, 49152, v6
    v_and_b32 v7, 15, v0
    v_lshl_add_u32 v50, v7, 4, v6
    s_branch prep_go""")
    k.label("prep_m2")
    srd(k, 12, 8, 0x80000)
    k(f"""s_sub_u32 s3, s2, 112
    s_lshl_b32 s20, s3, 15
    s_mov_b32 s21, 1024
    s_lshl_b32 s22, s3, 11
    s_add_u32 s22, s22, {WOT}
    s_mov_b32 s23, 262144
    s_mov_b32 s24, 2
    v_lshrrev_b32 v6, 5, v0
    v_lshlrev_b32 v6, 15, v6
    v_and_b32 v7, 31, v0
    v_lshl_add_u32 v50, v7, 4, v6""")
    k.label("prep_go")
    if PW == 'x': stamp(k, 1)
    k("""v_lshrrev_b32 v1, 3, v0
    v_and_b32 v2, 7, v0
    v_mul_lo_u32 v3, v1, s21
    v_lshl_add_u32 v3, v2, 4, v3
    v_mul_u32_u24 v4, 1088, v1
    v_lshl_add_u32 v4, v2, 4, v4""")
    for i in range(8):
        k(f"buffer_load_dwordx4 v[{8+4*i}:{11+4*i}], v3, s[12:15], s20 offen offset:{128*i}")
    k("""v_and_b32 v5, 15, v0
    v_lshrrev_b32 v5, 2, v5
    v_mul_u32_u24 v5, 1088, v5
    v_and_b32 v6, 0xf0, v0
    v_and_b32 v7, 3, v0
    v_lshl_add_u32 v6, v7, 2, v6
    v_lshl_add_u32 v5, v6, 1, v5""")
    for i in range(8):
        k(f"s_waitcnt vmcnt({7-i})\nds_write_b128 v4, v[{8+4*i}:{11+4*i}] offset:{128*i}")
    if PW == 'x': stamp(k, 2)
    k("""s_cmp_lg_u32 s24, 0
    s_cbranch_scc1 prep_nostats
    v_mov_b32 v60, 0
    v_mov_b32 v61, 0""")
    for r in range(8, 40):
        unpack(k, 62, 63, r)
        k("""v_add_f32 v60, v60, v62
        v_fmac_f32 v61, v62, v62
        v_add_f32 v60, v60, v63
        v_fmac_f32 v61, v63, v63""")
    for dpp in ("quad_perm:[1,0,3,2]", "quad_perm:[2,3,0,1]", "row_half_mirror"):
        k(f"""s_nop 1
        v_add_f32_dpp v60, v60, v60 {dpp} row_mask:0xf bank_mask:0xf
        v_add_f32_dpp v61, v61, v61 {dpp} row_mask:0xf bank_mask:0xf""")
    k(f"""s_lshl_b32 s3, s2, 8
    s_add_u32 s3, s3, {ST0}
    v_lshlrev_b32 v62, 3, v1
    v_cmp_eq_u32 vcc, 0, v2
    s_and_saveexec_b64 s[28:29], vcc
    buffer_store_dwordx2 v[60:61], v62, s[16:19], s3 offen
    s_mov_b64 exec, s[28:29]""")
    k.label("prep_nostats")
    if PW == 'x': stamp(k, 3)
    k("""s_waitcnt lgkmcnt(0)
    s_barrier
    s_add_u32 s25, s23, s22
    s_cmp_eq_u32 s24, 1
    s_cbranch_scc1 prep_perm
    s_cmp_eq_u32 s24, 2
    s_cbranch_scc1 prep_wo""")
    for variant in (0, 1, 2):
        if variant == 1: k.label("prep_perm")
        if variant == 2: k.label("prep_wo")
        for p in range(2):
            for i in range(8):
                if variant != 1: d = 8 + 16*p + 2*i
                else: d = 8 + 16*p + (4*i if i < 4 else 4*(i-4)+2)
                k(f"ds_read_b64_tr_b16 v[{d}:{d+1}], v5 offset:{4352*i+512*p}")
        for p in range(2):
            k(f"s_waitcnt lgkmcnt({8*(1-p)})")
            for j in range(4):
                k(f"buffer_store_dwordx4 v[{8+16*p+4*j}:{11+16*p+4*j}], v50, s[16:19], s{22 if p==0 else 25} offen offset:{(16,256,512)[variant]*j}")
        if PW == 'x' and variant == 0: stamp(k, 4); stamp_out(k, 5, 5, "s[16:19]")
        k("s_endpgm")
    k.label("prep_cs")
    k("""s_load_dwordx2 s[6:7], s[0:1], 80
    s_load_dwordx2 s[10:11], s[0:1], 112
    s_sub_u32 s3, s2, 640
    s_lshl_b32 s20, s3, 7
    v_lshrrev_b32 v1, 3, v0
    v_and_b32 v2, 7, v0
    v_mul_u32_u24 v3, 3072, v1
    v_lshl_add_u32 v3, v2, 4, v3
    v_lshlrev_b32 v4, 5, v0
    v_lshlrev_b32 v5, 2, v0
    s_waitcnt lgkmcnt(0)""")
    srd(k, 12, 6, 0x180000)
    srd(k, 16, 10, WS_BYTES)
    for i in range(16):
        k(f"buffer_load_dwordx4 v[{16+4*i}:{19+4*i}], v3, s[12:15], s20 offen")
        if i < 15: k("s_add_u32 s20, s20, 98304")
    for i in range(16):
        k(f"s_waitcnt vmcnt({15-i})")
        for d in range(4):
            src = 16 + 4*i + d
            if i == 0: k(f"v_lshlrev_b32 v{80+2*d}, 16, v{src}\nv_and_b32 v{81+2*d}, 0xffff0000, v{src}")
            else: k(f"v_lshlrev_b32 v{8+2*d}, 16, v{src}\nv_and_b32 v{9+2*d}, 0xffff0000, v{src}\nv_pk_add_f32 v[{80+2*d}:{81+2*d}], v[{80+2*d}:{81+2*d}], v[{8+2*d}:{9+2*d}]")
    k("""ds_write_b128 v4, v[80:83]
    ds_write_b128 v4, v[84:87] offset:16
    s_waitcnt lgkmcnt(0)
    s_barrier
    v_cmp_gt_u32 vcc, 64, v0
    s_and_saveexec_b64 s[28:29], vcc
    s_cbranch_execz prep_kernel_end""")
    for i in range(32): k(f"ds_read_b32 v{16+i}, v5 offset:{256*i}")
    k("s_waitcnt lgkmcnt(0)")
    for st in (16, 8, 4, 2):
        for i in range(0, st, 2): k(f"v_pk_add_f32 v[{16+i}:{17+i}], v[{16+i}:{17+i}], v[{16+st+i}:{17+st+i}]")
    k(f"""v_add_f32 v16, v16, v17
    s_lshl_b32 s20, s3, 8
    s_add_u32 s20, s20, {CS}
    buffer_store_dword v16, v5, s[16:19], s20 offen
    s_endpgm""")
    k.label("prep_kgen")
    k("""s_cmp_ge_u32 s2, 640
    s_cbranch_scc1 prep_cs
    s_sub_u32 s3, s2, 128
    s_load_dwordx4 s[4:7], s[0:1], 8
    s_load_dwordx4 s[8:11], s[0:1], 24
    s_load_dwordx4 s[12:15], s[0:1], 40
    s_load_dwordx2 s[16:17], s[0:1], 56
    s_load_dwordx2 s[18:19], s[0:1], 112
    v_and_b32 v1, 127, v0
    s_lshl_b32 s20, s3, 8
    v_lshl_add_u32 v2, v1, 1, s20
    s_lshl_b32 s21, s3, 1
    v_mov_b32 v3, s21
    s_waitcnt lgkmcnt(0)
    global_load_ushort v4, v2, s[4:5]
    global_load_ushort v5, v2, s[6:7]
    global_load_ushort v6, v2, s[8:9]
    global_load_ushort v7, v2, s[10:11]
    global_load_ushort v8, v2, s[12:13]
    global_load_ushort v9, v2, s[14:15]
    global_load_ushort v10, v3, s[16:17]""")
    srd(k, 24, 18, WS_BYTES)
    k(f"""s_cmp_lg_u32 s3, 5
    s_cbranch_scc1 prep_noconst
    v_mov_b32 v16, 0x3f803f80
    v_mov_b32 v17, 0x3f803f80
    v_mov_b32 v18, 0x3f803f80
    v_mov_b32 v19, 0x3f803f80
    v_mov_b32 v20, 0
    v_mov_b32 v21, 0
    v_mov_b32 v22, 0
    v_mov_b32 v23, 0
    v_lshlrev_b32 v11, 4, v0
    s_mov_b32 s22, {CONST}
    s_mov_b32 s23, {CONST + 0x1000}
    s_mov_b32 s28, {CONST + 0x2000}
    buffer_store_dwordx4 v[16:19], v11, s[24:27], s22 offen
    buffer_store_dwordx4 v[16:19], v11, s[24:27], s23 offen
    buffer_store_dwordx4 v[16:19], v11, s[24:27], s28 offen
    v_add_u32 v11, 0x4000, v11
    buffer_store_dwordx4 v[20:23], v11, s[24:27], s22 offen
    buffer_store_dwordx4 v[20:23], v11, s[24:27], s23 offen
    buffer_store_dwordx4 v[20:23], v11, s[24:27], s28 offen""")
    k.label("prep_noconst")
    if PW == 'k': stamp(k, 1)
    DRY = os.environ.get('DRY', '1') == '1'
    k("s_mov_b32 s31, 0")
    if DRY: k("s_mov_b32 s31, 1\ns_mov_b64 exec, 0\ns_branch prep_dry")
    k.label("prep_real")
    k("""s_waitcnt vmcnt(0)""")
    if PW == 'k': stamp(k, 2)
    k.label("prep_dry")
    for r in range(16): k(f"v_mov_b32 v{80+r}, 0")
    k("""s_nop 0
    v_lshlrev_b32 v4, 16, v4
    v_lshlrev_b32 v5, 16, v5
    v_lshlrev_b32 v6, 16, v6
    v_lshlrev_b32 v7, 16, v7
    v_lshlrev_b32 v8, 16, v8
    v_lshlrev_b32 v9, 16, v9
    v_lshlrev_b32 v10, 16, v10
    v_mul_f32 v10, 0x3fb8aa3b, v10
    v_exp_f32 v10, v10
    s_nop 0
    v_cvt_pk_bf16_f32 v10, v10, v10
    v_lshlrev_b32 v10, 16, v10
    v_mul_f32 v12, v10, v4
    v_mul_f32 v12, 0x3fb8aa3b, v12
    v_mul_f32 v13, v10, v5
    v_mul_f32 v13, 0x3e22f983, v13
    v_mul_f32 v6, v10, v6
    v_mul_f32 v7, v10, v7
    v_mul_f32 v14, v8, v6
    v_fma_f32 v14, -v9, v7, v14
    v_mul_f32 v15, v8, v7
    v_fma_f32 v15, v9, v6, v15
    v_mul_f32 v16, 0x43800000, v12
    v_mul_f32 v17, 0x43800000, v13
    v_exp_f32 v16, v16
    v_fract_f32 v17, v17
    v_sub_f32 v21, 0, v15
    v_sin_f32 v19, v17
    v_cos_f32 v18, v17
    v_mov_b32 v20, v14
    v_sub_f32 v23, 0, v14
    v_mov_b32 v22, v21
    v_mul_f32 v15, v19, v16
    v_mul_f32 v14, v18, v16
    v_lshlrev_b32 v2, 5, v1
    ds_write_b128 v2, v[12:15] offset:13312
    ds_write_b128 v2, v[20:23] offset:13328
    v_and_b32 v2, 3, v0
    v_lshlrev_b32 v2, 2, v2
    v_mov_b32 v3, 0
    ds_write_b32 v2, v3
    v_lshrrev_b32 v16, 6, v0
    v_and_b32 v17, 15, v0
    v_bfe_u32 v18, v0, 4, 2
    v_cvt_f32_u32 v21, v17
    v_mul_f32 v20, 0x41800000, v21
    v_lshlrev_b32 v19, 10, v16
    v_lshl_add_u32 v19, v18, 5, v19
    v_lshlrev_b32 v22, 10, v18
    v_lshl_add_u32 v22, v17, 4, v22
    v_lshl_add_u32 v22, v16, 2, v22
    s_waitcnt lgkmcnt(0)
    s_barrier
    ds_read_b128 v[24:27], v19 offset:13312
    ds_read_b128 v[28:31], v19 offset:13328""")
    if PW == 'k': stamp(k, 3)
    k("s_cmp_eq_u32 s31, 1\ns_mov_b32 s31, 0\ns_mov_b64 exec, -1\ns_cbranch_scc1 prep_real\ns_mov_b32 s30, 4")
    k.label("prep_loop")
    for s in range(2):
        P = 24 if s % 2 == 0 else 32
        Pn = 32 if s % 2 == 0 else 24
        k(f"ds_read_b128 v[{Pn}:{Pn+3}], v19 offset:{13312+128*(s+1)}\nds_read_b128 v[{Pn+4}:{Pn+7}], v19 offset:{13328+128*(s+1)}\ns_waitcnt lgkmcnt(2)")
        if s == 1: k("v_add_u32 v19, 256, v19")
        k(f"""v_pk_mul_f32 v[40:41], v[20:21], v[{P}:{P+1}] op_sel:[0,0] op_sel_hi:[1,0]
        v_pk_mul_f32 v[42:43], v[20:21], v[{P}:{P+1}] op_sel:[0,1] op_sel_hi:[1,1]
        v_exp_f32 v40, v40
        v_exp_f32 v41, v41
        v_fract_f32 v42, v42
        v_fract_f32 v43, v43
        v_sin_f32 v44, v42
        v_sin_f32 v45, v43
        v_cos_f32 v46, v42
        v_cos_f32 v47, v43
        s_nop 0
        v_pk_mul_f32 v[66:67], v[44:45], v[40:41]
        v_pk_mul_f32 v[64:65], v[46:47], v[40:41]""")
        for w in range(4):
            re, im, A = 64+4*w, 66+4*w, 56+2*w
            k(f"""v_pk_mul_f32 v[{A}:{A+1}], v[{P+4}:{P+5}], v[{re}:{re+1}] op_sel:[0,0] op_sel_hi:[1,0]
            v_pk_fma_f32 v[{A}:{A+1}], v[{P+6}:{P+7}], v[{im}:{im+1}], v[{A}:{A+1}] op_sel:[0,0,0] op_sel_hi:[1,0,1]""")
            if w < 3:
                k(f"""v_pk_mul_f32 v[52:53], v[{im}:{im+1}], v[{im}:{im+1}]
                v_pk_add_f32 v[54:55], v[{re}:{re+1}], v[{re}:{re+1}]
                v_pk_fma_f32 v[{re+4}:{re+5}], v[{re}:{re+1}], v[{re}:{re+1}], v[52:53] neg_lo:[0,0,1] neg_hi:[0,0,1]
                v_pk_mul_f32 v[{im+4}:{im+5}], v[54:55], v[{im}:{im+1}]""")
            else: k("s_nop 1")
            if w == 0:
                k(f"""v_mul_f32 v52, v{im+4}, v{P+3}
                v_mul_f32 v53, v{im+4}, v{P+2}
                v_fma_f32 v{im+4}, v{re+4}, v{P+3}, v53
                v_fma_f32 v{re+4}, v{re+4}, v{P+2}, -v52""")
            c = 80+4*w; C = f"v[{c}:{c+3}]"
            k(f"""v_mfma_f32_16x16x4_f32 v[{c}:{c+3}], v{A}, v{re+1}, {C}
            v_mfma_f32_16x16x4_f32 v[{c}:{c+3}], v{A+1}, v{im+1}, v[{c}:{c+3}]""")
    k("s_sub_u32 s30, s30, 1\ns_cmp_lg_u32 s30, 0\ns_cbranch_scc1 prep_loop")
    k.label("prep_tail")
    k("s_waitcnt lgkmcnt(0)")
    if PW == 'k': stamp(k, 4)
    k("""v_lshlrev_b32 v1, 3, v0
    v_sub_u32 v1, 2047, v1
    v_cmp_gt_u32 vcc, 2, v18
    s_nop 7""")
    for w in (0, 3, 1, 2):
        if w == 1: k("s_and_saveexec_b64 s[28:29], vcc")
        for r in range(4):
            k(f"ds_write_b32 v22, v{80+4*w+r} offset:{4*(4 + 64*r + 512*w + (512 if w else 0))}")
    k("s_mov_b64 exec, s[28:29]")
    for e in range(9):
        k(f"""v_subrev_u32 v{24+e}, {e}, v1
        v_max_i32 v{34+e}, 0, v{24+e}
        v_cvt_f32_u32 v{34+e}, v{34+e}
        v_min_i32 v{24+e}, 127, v{24+e}""")
    for e in range(0, 9, 2):
        k(f"v_cvt_pk_bf16_f32 v{34+e}, v{34+e}, v{34+min(e+1,8)}")
        if e < 8: k(f"v_lshrrev_b32 v{35+e}, 16, v{34+e}")
        k(f"v_and_b32 v{34+e}, 0xffff, v{34+e}")
    for e in range(9):
        k(f"""v_subrev_u32 v{34+e}, 17024, v{34+e}
        v_max_i32 v{24+e}, v{24+e}, v{34+e}
        v_lshlrev_b32 v{24+e}, 4, v{24+e}""")
    k("s_waitcnt lgkmcnt(0)\ns_barrier")
    if PW == 'k': stamp(k, 5)
    for e in range(9):
        k(f"ds_read_b128 v[{44+4*e}:{47+4*e}], v{24+e} offset:16")
    for e in range(9):
        k(f"s_waitcnt lgkmcnt({8-e})\nv_pk_add_f32 v[{44+4*e}:{45+4*e}], v[{44+4*e}:{45+4*e}], v[{46+4*e}:{47+4*e}]\nv_add_f32 v{24+e}, v{44+4*e}, v{45+4*e}")
    k(f"""s_mul_i32 s20, s3, 8448
    s_add_u32 s20, s20, {KR}
    v_lshlrev_b32 v1, 4, v0
    s_waitcnt lgkmcnt(0)
    v_cvt_pk_bf16_f32 v8, v24, v25
    v_cvt_pk_bf16_f32 v9, v26, v27
    v_cvt_pk_bf16_f32 v10, v28, v29
    v_cvt_pk_bf16_f32 v11, v30, v31
    v_cvt_pk_bf16_f32 v12, v25, v26
    v_cvt_pk_bf16_f32 v13, v27, v28
    v_cvt_pk_bf16_f32 v14, v29, v30
    v_cvt_pk_bf16_f32 v15, v31, v32
    s_add_u32 s21, s20, 4224
    buffer_store_dwordx4 v[8:11], v1, s[24:27], s20 offen
    buffer_store_dwordx4 v[12:15], v1, s[24:27], s21 offen
    v_lshrrev_b32 v2, 3, v0
    v_mul_u32_u24 v2, 4224, v2
    v_and_b32 v3, 7, v0
    v_lshl_add_u32 v2, v3, 4, v2
    v_mov_b32 v16, 0
    v_mov_b32 v17, 0
    v_mov_b32 v18, 0
    v_mov_b32 v19, 0
    v_cmp_gt_u32 vcc, 16, v0
    s_and_saveexec_b64 s[28:29], vcc
    s_cbranch_execz prep_kgen_done
    buffer_store_dwordx4 v[16:19], v2, s[24:27], s20 offen offset:4095
    """)
    k.label("prep_kgen_done")
    if PW == 'k': k("s_mov_b64 exec, -1"); stamp(k, 6); stamp_out(k, 7, 300, "s[24:27]")
    footer(k)
    t = k.text()
    t = t.replace("v_lshl_add_u32 v2, v3, 4, v2\n    v_mov_b32 v16, 0", "v_lshl_add_u32 v2, v3, 4, v2\n    v_add_u32 v2, 4096, v2\n    v_mov_b32 v16, 0")
    t = t.replace(" offen offset:4095", " offen")
    return t, desc("prep_kernel", 96)
```

```python
from gen_common import *
import os
def k1():
    k = K("prep_kernel"); header(k, 664)
    PW = os.environ.get('PW', 'x')
    stamp(k, 0)
    ORD = os.environ.get('ORD', '2')
    if ORD == '1':
        k("""s_add_u32 s3, s2, 128
        s_sub_u32 s4, s2, 512
        s_cmp_lt_u32 s2, 512
        s_cselect_b32 s3, s3, s4
        s_cmp_lt_u32 s2, 640
        s_cselect_b32 s2, s3, s2""")
    if ORD == '2':
        k("""s_add_u32 s3, s2, 64
        s_sub_u32 s4, s2, 512
        s_cmp_lt_u32 s2, 576
        s_cselect_b32 s3, s3, s4
        s_cmp_lt_u32 s2, 64
        s_cselect_b32 s3, s2, s3
        s_cmp_lt_u32 s2, 640
        s_cselect_b32 s2, s3, s2""")
    if ORD == '3':
        k("""s_add_u32 s3, s2, 40
        s_sub_u32 s4, s2, 536
        s_cmp_lt_u32 s2, 600
        s_cselect_b32 s3, s3, s4
        s_add_u32 s4, s2, 576
        s_cmp_lt_u32 s2, 88
        s_cselect_b32 s3, s4, s3
        s_cmp_lt_u32 s2, 64
        s_cselect_b32 s2, s2, s3""")
    PRIO = os.environ.get('PRIO', '0')
    if PRIO == '2': k("s_setprio 3")
    k("""s_cmp_ge_u32 s2, 128
    s_cbranch_scc1 prep_kgen""")
    if PRIO == '1': k("s_setprio 3")
    if PRIO == '2': k("s_setprio 0")
    k("""s_load_dwordx2 s[4:5], s[0:1], 0
    s_load_dwordx2 s[6:7], s[0:1], 80
    s_load_dwordx2 s[8:9], s[0:1], 88
    s_load_dwordx2 s[10:11], s[0:1], 112
    s_waitcnt lgkmcnt(0)""")
    srd(k, 16, 10, WS_BYTES)
    k("""s_cmp_ge_u32 s2, 64
    s_cbranch_scc1 prep_m1""")
    srd(k, 12, 4, 0x200000)
    k(f"""s_lshl_b32 s20, s2, 15
    s_mov_b32 s21, 1024
    s_lshl_b32 s22, s2, 6
    s_add_u32 s22, s22, {XT0}
    s_mov_b32 s23, 0x100000
    s_mov_b32 s24, 0
    v_lshlrev_b32 v50, 12, v0
    s_branch prep_go""")
    k.label("prep_m1")
    k("""s_cmp_ge_u32 s2, 112
    s_cbranch_scc1 prep_m2""")
    srd(k, 12, 6, 0x180000)
    k(f"""s_sub_u32 s3, s2, 64
    s_lshr_b32 s25, s3, 4
    s_and_b32 s26, s3, 15
    s_mul_i32 s20, s26, 98304
    s_lshl_b32 s27, s25, 10
    s_add_u32 s20, s20, s27
    s_mov_b32 s21, 3072
    s_lshl_b32 s22, s25, 14
    s_lshl_b32 s27, s26, 10
    s_add_u32 s22, s22, s27
    s_add_u32 s22, s22, {WQT}
    s_mov_b32 s23, 786432
    s_mov_b32 s24, 1
    v_lshrrev_b32 v6, 4, v0
    v_mul_u32_u24 v6, 49152, v6
    v_and_b32 v7, 15, v0
    v_lshl_add_u32 v50, v7, 4, v6
    s_branch prep_go""")
    k.label("prep_m2")
    srd(k, 12, 8, 0x80000)
    k(f"""s_sub_u32 s3, s2, 112
    s_lshl_b32 s20, s3, 15
    s_mov_b32 s21, 1024
    s_lshl_b32 s22, s3, 11
    s_add_u32 s22, s22, {WOT}
    s_mov_b32 s23, 262144
    s_mov_b32 s24, 2
    v_lshrrev_b32 v6, 5, v0
    v_lshlrev_b32 v6, 15, v6
    v_and_b32 v7, 31, v0
    v_lshl_add_u32 v50, v7, 4, v6""")
    k.label("prep_go")
    if PW == 'x': stamp(k, 1)
    k("""v_lshrrev_b32 v1, 3, v0
    v_and_b32 v2, 7, v0
    v_mul_lo_u32 v3, v1, s21
    v_lshl_add_u32 v3, v2, 4, v3
    v_mul_u32_u24 v4, 1088, v1
    v_lshl_add_u32 v4, v2, 4, v4""")
    for i in range(8):
        k(f"buffer_load_dwordx4 v[{8+4*i}:{11+4*i}], v3, s[12:15], s20 offen offset:{128*i}")
    k("""v_and_b32 v5, 15, v0
    v_lshrrev_b32 v5, 2, v5
    v_mul_u32_u24 v5, 1088, v5
    v_and_b32 v6, 0xf0, v0
    v_and_b32 v7, 3, v0
    v_lshl_add_u32 v6, v7, 2, v6
    v_lshl_add_u32 v5, v6, 1, v5""")
    for i in range(8):
        k(f"s_waitcnt vmcnt({7-i})\nds_write_b128 v4, v[{8+4*i}:{11+4*i}] offset:{128*i}")
    if PW == 'x': stamp(k, 2)
    k("""s_cmp_lg_u32 s24, 0
    s_cbranch_scc1 prep_nostats
    v_mov_b32 v60, 0
    v_mov_b32 v61, 0""")
    for r in range(8, 40):
        unpack(k, 62, 63, r)
        k("""v_add_f32 v60, v60, v62
        v_fmac_f32 v61, v62, v62
        v_add_f32 v60, v60, v63
        v_fmac_f32 v61, v63, v63""")
    for dpp in ("quad_perm:[1,0,3,2]", "quad_perm:[2,3,0,1]", "row_half_mirror"):
        k(f"""s_nop 1
        v_add_f32_dpp v60, v60, v60 {dpp} row_mask:0xf bank_mask:0xf
        v_add_f32_dpp v61, v61, v61 {dpp} row_mask:0xf bank_mask:0xf""")
    k(f"""s_lshl_b32 s3, s2, 8
    s_add_u32 s3, s3, {ST0}
    v_lshlrev_b32 v62, 3, v1
    v_cmp_eq_u32 vcc, 0, v2
    s_and_saveexec_b64 s[28:29], vcc
    buffer_store_dwordx2 v[60:61], v62, s[16:19], s3 offen
    s_mov_b64 exec, s[28:29]""")
    k.label("prep_nostats")
    if PW == 'x': stamp(k, 3)
    k("""s_waitcnt lgkmcnt(0)
    s_barrier
    s_add_u32 s25, s23, s22
    s_cmp_eq_u32 s24, 1
    s_cbranch_scc1 prep_perm
    s_cmp_eq_u32 s24, 2
    s_cbranch_scc1 prep_wo""")
    for variant in (0, 1, 2):
        if variant == 1: k.label("prep_perm")
        if variant == 2: k.label("prep_wo")
        for p in range(2):
            for i in range(8):
                if variant != 1: d = 8 + 16*p + 2*i
                else: d = 8 + 16*p + (4*i if i < 4 else 4*(i-4)+2)
                k(f"ds_read_b64_tr_b16 v[{d}:{d+1}], v5 offset:{4352*i+512*p}")
        for p in range(2):
            k(f"s_waitcnt lgkmcnt({8*(1-p)})")
            for j in range(4):
                k(f"buffer_store_dwordx4 v[{8+16*p+4*j}:{11+16*p+4*j}], v50, s[16:19], s{22 if p==0 else 25} offen offset:{(16,256,512)[variant]*j}")
        if PW == 'x' and variant == 0: stamp(k, 4); stamp_out(k, 5, 5, "s[16:19]")
        k("s_endpgm")
    k.label("prep_cs")
    k("""s_load_dwordx2 s[6:7], s[0:1], 80
    s_load_dwordx2 s[10:11], s[0:1], 112
    s_sub_u32 s3, s2, 640
    s_lshl_b32 s20, s3, 7
    v_lshrrev_b32 v1, 3, v0
    v_and_b32 v2, 7, v0
    v_mul_u32_u24 v3, 3072, v1
    v_lshl_add_u32 v3, v2, 4, v3
    v_lshlrev_b32 v4, 5, v0
    v_lshlrev_b32 v5, 2, v0
    s_waitcnt lgkmcnt(0)""")
    srd(k, 12, 6, 0x180000)
    srd(k, 16, 10, WS_BYTES)
    for i in range(16):
        k(f"buffer_load_dwordx4 v[{16+4*i}:{19+4*i}], v3, s[12:15], s20 offen")
        if i < 15: k("s_add_u32 s20, s20, 98304")
    for i in range(16):
        k(f"s_waitcnt vmcnt({15-i})")
        for d in range(4):
            src = 16 + 4*i + d
            if i == 0: k(f"v_lshlrev_b32 v{80+2*d}, 16, v{src}\nv_and_b32 v{81+2*d}, 0xffff0000, v{src}")
            else: k(f"v_lshlrev_b32 v{8+2*d}, 16, v{src}\nv_and_b32 v{9+2*d}, 0xffff0000, v{src}\nv_pk_add_f32 v[{80+2*d}:{81+2*d}], v[{80+2*d}:{81+2*d}], v[{8+2*d}:{9+2*d}]")
    k("""ds_write_b128 v4, v[80:83]
    ds_write_b128 v4, v[84:87] offset:16
    s_waitcnt lgkmcnt(0)
    s_barrier
    v_cmp_gt_u32 vcc, 64, v0
    s_and_saveexec_b64 s[28:29], vcc
    s_cbranch_execz prep_kernel_end""")
    for i in range(32): k(f"ds_read_b32 v{16+i}, v5 offset:{256*i}")
    k("s_waitcnt lgkmcnt(0)")
    for st in (16, 8, 4, 2):
        for i in range(0, st, 2): k(f"v_pk_add_f32 v[{16+i}:{17+i}], v[{16+i}:{17+i}], v[{16+st+i}:{17+st+i}]")
    k(f"""v_add_f32 v16, v16, v17
    s_lshl_b32 s20, s3, 8
    s_add_u32 s20, s20, {CS}
    buffer_store_dword v16, v5, s[16:19], s20 offen
    s_endpgm""")
    k.label("prep_kgen")
    k("""s_cmp_ge_u32 s2, 640
    s_cbranch_scc1 prep_cs
    s_sub_u32 s3, s2, 128
    s_load_dwordx4 s[4:7], s[0:1], 8
    s_load_dwordx4 s[8:11], s[0:1], 24
    s_load_dwordx4 s[12:15], s[0:1], 40
    s_load_dwordx2 s[16:17], s[0:1], 56
    s_load_dwordx2 s[18:19], s[0:1], 112
    v_and_b32 v1, 127, v0
    s_lshl_b32 s20, s3, 8
    v_lshl_add_u32 v2, v1, 1, s20
    s_lshl_b32 s21, s3, 1
    v_mov_b32 v3, s21
    s_waitcnt lgkmcnt(0)
    global_load_ushort v4, v2, s[4:5]
    global_load_ushort v5, v2, s[6:7]
    global_load_ushort v6, v2, s[8:9]
    global_load_ushort v7, v2, s[10:11]
    global_load_ushort v8, v2, s[12:13]
    global_load_ushort v9, v2, s[14:15]
    global_load_ushort v10, v3, s[16:17]""")
    srd(k, 24, 18, WS_BYTES)
    k(f"""s_cmp_lg_u32 s3, 5
    s_cbranch_scc1 prep_noconst
    v_mov_b32 v16, 0x3f803f80
    v_mov_b32 v17, 0x3f803f80
    v_mov_b32 v18, 0x3f803f80
    v_mov_b32 v19, 0x3f803f80
    v_mov_b32 v20, 0
    v_mov_b32 v21, 0
    v_mov_b32 v22, 0
    v_mov_b32 v23, 0
    v_lshlrev_b32 v11, 4, v0
    s_mov_b32 s22, {CONST}
    s_mov_b32 s23, {CONST + 0x1000}
    s_mov_b32 s28, {CONST + 0x2000}
    buffer_store_dwordx4 v[16:19], v11, s[24:27], s22 offen
    buffer_store_dwordx4 v[16:19], v11, s[24:27], s23 offen
    buffer_store_dwordx4 v[16:19], v11, s[24:27], s28 offen
    v_add_u32 v11, 0x4000, v11
    buffer_store_dwordx4 v[20:23], v11, s[24:27], s22 offen
    buffer_store_dwordx4 v[20:23], v11, s[24:27], s23 offen
    buffer_store_dwordx4 v[20:23], v11, s[24:27], s28 offen""")
    k.label("prep_noconst")
    if PW == 'k': stamp(k, 1)
    DRY = os.environ.get('DRY', '1') == '1'
    k("s_mov_b32 s31, 0")
    if DRY: k("s_mov_b32 s31, 1\ns_mov_b64 exec, 0\ns_branch prep_dry")
    k.label("prep_real")
    k("""s_waitcnt vmcnt(0)""")
    if PW == 'k': stamp(k, 2)
    k.label("prep_dry")
    for r in range(16): k(f"v_mov_b32 v{80+r}, 0")
    k("""s_nop 0
    v_lshlrev_b32 v4, 16, v4
    v_lshlrev_b32 v5, 16, v5
    v_lshlrev_b32 v6, 16, v6
    v_lshlrev_b32 v7, 16, v7
    v_lshlrev_b32 v8, 16, v8
    v_lshlrev_b32 v9, 16, v9
    v_lshlrev_b32 v10, 16, v10
    v_mul_f32 v10, 0x3fb8aa3b, v10
    v_exp_f32 v10, v10
    s_nop 0
    v_cvt_pk_bf16_f32 v10, v10, v10
    v_lshlrev_b32 v10, 16, v10
    v_mul_f32 v12, v10, v4
    v_mul_f32 v12, 0x3fb8aa3b, v12
    v_mul_f32 v13, v10, v5
    v_mul_f32 v13, 0x3e22f983, v13
    v_mul_f32 v6, v10, v6
    v_mul_f32 v7, v10, v7
    v_mul_f32 v14, v8, v6
    v_fma_f32 v14, -v9, v7, v14
    v_mul_f32 v15, v8, v7
    v_fma_f32 v15, v9, v6, v15
    v_mul_f32 v16, 0x43800000, v12
    v_mul_f32 v17, 0x43800000, v13
    v_exp_f32 v16, v16
    v_fract_f32 v17, v17
    v_sub_f32 v21, 0, v15
    v_sin_f32 v19, v17
    v_cos_f32 v18, v17
    v_mov_b32 v20, v14
    v_sub_f32 v23, 0, v14
    v_mov_b32 v22, v21
    v_mul_f32 v15, v19, v16
    v_mul_f32 v14, v18, v16
    v_lshlrev_b32 v2, 5, v1
    ds_write_b128 v2, v[12:15] offset:13312
    ds_write_b128 v2, v[20:23] offset:13328
    v_and_b32 v2, 3, v0
    v_lshlrev_b32 v2, 2, v2
    v_mov_b32 v3, 0
    ds_write_b32 v2, v3
    v_lshrrev_b32 v16, 6, v0
    v_and_b32 v17, 15, v0
    v_bfe_u32 v18, v0, 4, 2
    v_cvt_f32_u32 v21, v17
    v_mul_f32 v20, 0x41800000, v21
    v_lshlrev_b32 v19, 10, v16
    v_lshl_add_u32 v19, v18, 5, v19
    v_lshlrev_b32 v22, 10, v18
    v_lshl_add_u32 v22, v17, 4, v22
    v_lshl_add_u32 v22, v16, 2, v22
    s_waitcnt lgkmcnt(0)
    s_barrier
    ds_read_b128 v[24:27], v19 offset:13312
    ds_read_b128 v[28:31], v19 offset:13328""")
    if PW == 'k': stamp(k, 3)
    k("s_cmp_eq_u32 s31, 1\ns_mov_b32 s31, 0\ns_mov_b64 exec, -1\ns_cbranch_scc1 prep_real\ns_mov_b32 s30, 4")
    k.label("prep_loop")
    for s in range(2):
        P = 24 if s % 2 == 0 else 32
        Pn = 32 if s % 2 == 0 else 24
        k(f"ds_read_b128 v[{Pn}:{Pn+3}], v19 offset:{13312+128*(s+1)}\nds_read_b128 v[{Pn+4}:{Pn+7}], v19 offset:{13328+128*(s+1)}\ns_waitcnt lgkmcnt(2)")
        if s == 1: k("v_add_u32 v19, 256, v19")
        k(f"""v_pk_mul_f32 v[40:41], v[20:21], v[{P}:{P+1}] op_sel:[0,0] op_sel_hi:[1,0]
        v_pk_mul_f32 v[42:43], v[20:21], v[{P}:{P+1}] op_sel:[0,1] op_sel_hi:[1,1]
        v_exp_f32 v40, v40
        v_exp_f32 v41, v41
        v_fract_f32 v42, v42
        v_fract_f32 v43, v43
        v_sin_f32 v44, v42
        v_sin_f32 v45, v43
        v_cos_f32 v46, v42
        v_cos_f32 v47, v43
        s_nop 0
        v_pk_mul_f32 v[66:67], v[44:45], v[40:41]
        v_pk_mul_f32 v[64:65], v[46:47], v[40:41]""")
        for w in range(4):
            re, im, A = 64+4*w, 66+4*w, 56+2*w
            k(f"""v_pk_mul_f32 v[{A}:{A+1}], v[{P+4}:{P+5}], v[{re}:{re+1}] op_sel:[0,0] op_sel_hi:[1,0]
            v_pk_fma_f32 v[{A}:{A+1}], v[{P+6}:{P+7}], v[{im}:{im+1}], v[{A}:{A+1}] op_sel:[0,0,0] op_sel_hi:[1,0,1]""")
            if w < 3:
                k(f"""v_pk_mul_f32 v[52:53], v[{im}:{im+1}], v[{im}:{im+1}]
                v_pk_add_f32 v[54:55], v[{re}:{re+1}], v[{re}:{re+1}]
                v_pk_fma_f32 v[{re+4}:{re+5}], v[{re}:{re+1}], v[{re}:{re+1}], v[52:53] neg_lo:[0,0,1] neg_hi:[0,0,1]
                v_pk_mul_f32 v[{im+4}:{im+5}], v[54:55], v[{im}:{im+1}]""")
            else: k("s_nop 1")
            if w == 0:
                k(f"""v_mul_f32 v52, v{im+4}, v{P+3}
                v_mul_f32 v53, v{im+4}, v{P+2}
                v_fma_f32 v{im+4}, v{re+4}, v{P+3}, v53
                v_fma_f32 v{re+4}, v{re+4}, v{P+2}, -v52""")
            c = 80+4*w; C = f"v[{c}:{c+3}]"
            k(f"""v_mfma_f32_16x16x4_f32 v[{c}:{c+3}], v{A}, v{re+1}, {C}
            v_mfma_f32_16x16x4_f32 v[{c}:{c+3}], v{A+1}, v{im+1}, v[{c}:{c+3}]""")
    k("s_sub_u32 s30, s30, 1\ns_cmp_lg_u32 s30, 0\ns_cbranch_scc1 prep_loop")
    k.label("prep_tail")
    k("s_waitcnt lgkmcnt(0)")
    if PW == 'k': stamp(k, 4)
    k("""v_lshlrev_b32 v1, 3, v0
    v_sub_u32 v1, 2047, v1
    v_cmp_gt_u32 vcc, 2, v18
    s_nop 7""")
    for w in (0, 3, 1, 2):
        if w == 1: k("s_and_saveexec_b64 s[28:29], vcc")
        for r in range(4):
            k(f"ds_write_b32 v22, v{80+4*w+r} offset:{4*(4 + 64*r + 512*w + (512 if w else 0))}")
    k("s_mov_b64 exec, s[28:29]")
    for e in range(9):
        k(f"""v_subrev_u32 v{24+e}, {e}, v1
        v_max_i32 v{34+e}, 0, v{24+e}
        v_cvt_f32_u32 v{34+e}, v{34+e}
        v_min_i32 v{24+e}, 127, v{24+e}""")
    for e in range(0, 9, 2):
        k(f"v_cvt_pk_bf16_f32 v{34+e}, v{34+e}, v{34+min(e+1,8)}")
        if e < 8: k(f"v_lshrrev_b32 v{35+e}, 16, v{34+e}")
        k(f"v_and_b32 v{34+e}, 0xffff, v{34+e}")
    for e in range(9):
        k(f"""v_subrev_u32 v{34+e}, 17024, v{34+e}
        v_max_i32 v{24+e}, v{24+e}, v{34+e}
        v_lshlrev_b32 v{24+e}, 4, v{24+e}""")
    k("s_waitcnt lgkmcnt(0)\ns_barrier")
    if PW == 'k': stamp(k, 5)
    for e in range(9):
        k(f"ds_read_b128 v[{44+4*e}:{47+4*e}], v{24+e} offset:16")
    for e in range(9):
        k(f"s_waitcnt lgkmcnt({8-e})\nv_pk_add_f32 v[{44+4*e}:{45+4*e}], v[{44+4*e}:{45+4*e}], v[{46+4*e}:{47+4*e}]\nv_add_f32 v{24+e}, v{44+4*e}, v{45+4*e}")
    k(f"""s_mul_i32 s20, s3, 8448
    s_add_u32 s20, s20, {KR}
    v_lshlrev_b32 v1, 4, v0
    s_waitcnt lgkmcnt(0)
    v_cvt_pk_bf16_f32 v8, v24, v25
    v_cvt_pk_bf16_f32 v9, v26, v27
    v_cvt_pk_bf16_f32 v10, v28, v29
    v_cvt_pk_bf16_f32 v11, v30, v31
    v_cvt_pk_bf16_f32 v12, v25, v26
    v_cvt_pk_bf16_f32 v13, v27, v28
    v_cvt_pk_bf16_f32 v14, v29, v30
    v_cvt_pk_bf16_f32 v15, v31, v32
    s_add_u32 s21, s20, 4224
    buffer_store_dwordx4 v[8:11], v1, s[24:27], s20 offen
    buffer_store_dwordx4 v[12:15], v1, s[24:27], s21 offen
    v_lshrrev_b32 v2, 3, v0
    v_mul_u32_u24 v2, 4224, v2
    v_and_b32 v3, 7, v0
    v_lshl_add_u32 v2, v3, 4, v2
    v_mov_b32 v16, 0
    v_mov_b32 v17, 0
    v_mov_b32 v18, 0
    v_mov_b32 v19, 0
    v_cmp_gt_u32 vcc, 16, v0
    s_and_saveexec_b64 s[28:29], vcc
    s_cbranch_execz prep_kgen_done
    buffer_store_dwordx4 v[16:19], v2, s[24:27], s20 offen offset:4095
    """)
    k.label("prep_kgen_done")
    if PW == 'k': k("s_mov_b64 exec, -1"); stamp(k, 6); stamp_out(k, 7, 300, "s[24:27]")
    footer(k)
    t = k.text()
    t = t.replace("v_lshl_add_u32 v2, v3, 4, v2\n    v_mov_b32 v16, 0", "v_lshl_add_u32 v2, v3, 4, v2\n    v_add_u32 v2, 4096, v2\n    v_mov_b32 v16, 0")
    t = t.replace(" offen offset:4095", " offen")
    return t, desc("prep_kernel", 96)
```

```python
from gen_common import *
def k4(name, zero_st):
    import os
    A512 = os.environ.get('A512', '0') == '1'
    k = K(name); header(k, 256 if A512 else 512, True)
    stamp(k, 0)
    if A512:
        k("""v_readfirstlane_b32 s12, v0
        s_and_b32 s13, s2, 31
        s_lshr_b32 s14, s2, 5
        s_lshr_b32 s12, s12, 8
        s_lshl_b32 s14, s14, 6
        s_lshl_b32 s12, s12, 5
        s_or_b32 s2, s13, s14
        s_or_b32 s2, s2, s12
        v_and_b32 v0, 255, v0""")
    srd(k, 8, 4, WS_BYTES)
    stamp(k, 1)
    k(f"""s_and_b32 s13, s2, 1
    s_lshl_b32 s13, s13, 2
    s_bfe_u32 s12, s2, 0x20003
    s_add_u32 s13, s13, s12
    s_bfe_u32 s12, s2, 0x20001
    s_lshl_b32 s12, s12, 4
    s_lshr_b32 s14, s2, 5
    s_add_u32 s12, s12, s14
    v_lshrrev_b32 v1, 6, v0
    s_lshl_b32 s14, s13, 2
    v_add_u32 v1, s14, v1
    v_and_b32 v2, 31, v0
    v_bfe_u32 v3, v0, 5, 1
    v_and_b32 v4, 63, v0
    v_lshlrev_b32 v4, 4, v4
    v_lshl_add_u32 v4, v1, 16, v4
    s_lshl_b32 s15, s12, 10
    s_add_u32 s16, s15, {QB}
    buffer_load_dwordx4 v[8:11], v4, s[8:11], s16 offen""")
    k(f"s_add_u32 s17, s15, {KB - 8192}")
    for j in range(9):
        k(f"buffer_load_dwordx4 v[{12+4*j}:{15+4*j}], v4, s[8:11], s17 offen offset:{1024*(j%4)}")
        if j % 4 == 3: k("s_add_u32 s17, s17, 4096")
    stamp(k, 2)
    k("v_mov_b32 v7, 0xf149f2ca\nv_lshlrev_b32 v5, 2, v3\nv_sub_u32 v5, v2, v5")
    k("v_mov_b32 v94, 0xffff0000")
    for r in range(16): k(f"v_cmp_gt_i32 s[{24+2*r}:{25+2*r}], {8*(r//4)+r%4}, v5")
    for p in range(8): k(f"v_cndmask_b32 v{86+p}, 0, v94, s[{26+4*p}:{27+4*p}]")
    for p in range(8): k(f"v_cndmask_b32 v{86+p}, v{86+p}, -1, s[{24+4*p}:{25+4*p}]")
    for j in range(9):
        k(f"s_waitcnt vmcnt({8-j})")
        k(f"v_mfma_f32_32x32x16_bf16 v[{96+16*j}:{111+16*j}], v[{12+4*j}:{15+4*j}], v[8:11], 0")
    stamp(k, 3)
    k(f"""s_add_u32 s17, s15, {VT - 8192}
    s_sub_u32 s18, {CONST}, s17
    s_add_u32 s19, s18, 0x4000
    v_and_b32 v5, 27, v2
    v_cmp_eq_u32 vcc, 16, v5
    v_mov_b32 v5, s19
    v_mov_b32 v6, s18
    v_cndmask_b32 v5, v5, v6, vcc
    v_lshlrev_b32 v6, 16, v1
    v_lshl_add_u32 v6, v2, 4, v6
    v_lshl_add_u32 v6, v3, 8, v6
    v_cmp_gt_u32 vcc, 16, v2
    s_nop 7
    v_cndmask_b32 v6, v5, v6, vcc""")
    for j in range(18):
        k(f"buffer_load_dwordx4 v[{12+4*j}:{15+4*j}], v6, s[8:11], s17 offen offset:{512*(j%8)}")
        if j % 8 == 7: k("s_add_u32 s17, s17, 4096")
    for j in range(8):
        k(f"s_cmp_ge_u32 s12, {8-j}\ns_cbranch_scc1 {name}_mk")
        for r in range(16): k(f"v_mov_b32 v{96+16*j+r}, v7")
    k.label(name + "_mk")
    stamp(k, 4)
    for r in range(16): k(f"v_cndmask_b32 v{96+r}, v{224+r}, v{96+r}, s[{24+2*r}:{25+2*r}]")
    k("v_max3_f32 v84, v112, v113, v114")
    r = 115
    while r + 1 < 224:
        k(f"v_max3_f32 v84, v84, v{r}, v{r+1}"); r += 2
    k("v_max_f32 v84, v84, v223")
    for r in range(0, 16, 2): k(f"v_max3_f32 v84, v84, v{96+r}, v{97+r}")
    k("""v_mov_b32 v85, v84
    s_nop 1
    v_permlane32_swap_b32 v84, v85
    v_max_f32 v84, v84, v85
    s_mov_b32 s22, 0x3eb8aa3b
    s_mov_b32 s23, 0x3eb8aa3b
    v_mul_f32 v84, s22, v84
    v_mov_b32 v85, v84""")
    stamp(k, 5)
    for r in range(16): k(f"v_mov_b32 v{240+r}, 0")
    for j in range(9):
        b = 96 + 16*j
        if j < 8:
            for r in range(0, 16, 2):
                k(f"v_pk_fma_f32 v[{b+r}:{b+r+1}], v[{b+r}:{b+r+1}], s[22:23], v[84:85] neg_lo:[0,0,1] neg_hi:[0,0,1]")
            for r in range(16):
                k(f"v_exp_f32 v{b+r}, v{b+r}")
            k("s_nop 0")
            for r in range(8):
                k(f"v_cvt_pk_bf16_f32 v{b+r}, v{b+2*r}, v{b+2*r+1}")
        if j == 0:
            for r in range(8): k(f"v_and_b32 v{104+r}, v{96+r}, v{86+r}")
            for r in range(8): k(f"v_xor_b32 v{224+r}, v{96+r}, v{104+r}")
            b = 104
        k(f"s_waitcnt vmcnt({16-2*j})\ns_nop 1")
        k(f"v_mfma_f32_32x32x16_bf16 v[240:255], v[{12+8*j}:{15+8*j}], v[{b}:{b+3}], v[240:255]")
        k(f"v_mfma_f32_32x32x16_bf16 v[240:255], v[{16+8*j}:{19+8*j}], v[{b+4}:{b+7}], v[240:255]")
    stamp(k, 6)
    k(f"""v_lshlrev_b32 v4, 4, v2
    v_lshl_add_u32 v4, v1, 10, v4
    v_lshl_add_u32 v4, v3, 3, v4
    s_lshl_b32 s15, s12, 15
    s_add_u32 s16, s15, {OB}
    s_nop 7
    v_rcp_f32 v84, v248
    s_nop 0""")
    for r in range(8): k(f"v_mul_f32 v{240+r}, v{240+r}, v84")
    k("""v_cvt_pk_bf16_f32 v240, v240, v241
    v_cvt_pk_bf16_f32 v241, v242, v243
    v_cvt_pk_bf16_f32 v242, v244, v245
    v_cvt_pk_bf16_f32 v243, v246, v247
    buffer_store_dwordx2 v[240:241], v4, s[8:11], s16 offen
    buffer_store_dwordx2 v[242:243], v4, s[8:11], s16 offen offset:512""")
    if zero_st:
        k(f"""s_cmp_ge_u32 s2, 16
        s_cbranch_scc1 {name}_nz
        v_mov_b32 v5, 0
        s_lshl_b32 s17, s2, 10
        s_add_u32 s17, s17, {ST1}
        v_lshlrev_b32 v6, 2, v0
        buffer_store_dword v5, v6, s[8:11], s17 offen""")
        k.label(name + "_nz")
    stamp(k, 7); stamp_out(k, 8, 300)
    footer(k); sink_srd(k)
    return k.text(), desc(name, 256, pl=True)

def k5():
    name = "oproj1_kernel"; k = K(name)
    header2(k, 256, [("oproj1_kernel", [f"s_mov_b32 s40, {XT1}", "s_mov_b32 s42, 0"]), ("oproj2_kernel", [f"s_mov_b32 s40, {XT3}", "s_mov_b32 s42, 1"])])
    stamp(k, 0)
    stamp(k, 1)
    srd(k, 8, 4, WS_BYTES)
    srd(k, 24, 6, 0x200000)
    k(f"""s_and_b32 s12, s2, 1
    s_lshl_b32 s12, s12, 3
    s_bfe_u32 s13, s2, 0x30003
    s_add_u32 s12, s12, s13
    s_bfe_u32 s13, s2, 0x20001
    s_lshl_b32 s13, s13, 2
    s_lshr_b32 s14, s2, 6
    s_add_u32 s13, s13, s14
    v_and_b32 v1, 31, v0
    v_bfe_u32 v2, v0, 5, 1
    v_lshrrev_b32 v4, 6, v0
    v_lshl_add_u32 v6, v4, 5, v1
    v_and_b32 v5, 63, v0
    v_lshlrev_b32 v5, 4, v5
    v_lshl_add_u32 v8, v4, 15, v5
    v_lshl_add_u32 v7, v4, 13, v5
    s_lshl_b32 s14, s12, 15
    s_add_u32 s14, s14, {WOT}
    s_add_u32 s19, s14, 4096
    s_lshl_b32 s15, s13, 17
    s_add_u32 s15, s15, {OB}""")
    for s in range(8):
        k(f"buffer_load_dwordx4 v[{192+4*s}:{195+4*s}], v7, s[8:11], s{14 if s < 4 else 19} offen offset:{1024*(s%4)}")
    k(f"""v_lshlrev_b32 v9, 14, v2
    v_lshl_add_u32 v9, v6, 1, v9
    s_lshl_b32 s16, s12, 17
    s_lshl_b32 s17, s13, 8
    s_add_u32 s16, s16, s17
    s_add_u32 s17, s16, {XT2}
    s_add_u32 s16, s16, s40""")
    for r in range(16):
        k(f"s_add_u32 s18, s16, {(8*(r//4)+r%4)*4096}\nbuffer_load_ushort v{32+r}, v9, s[8:11], s18 offen")
    def oload(s):
        k(f"buffer_load_dwordx4 v[{64+4*s}:{67+4*s}], v8, s[8:11], s15 offen offset:{1024*(s%4)}")
        if s % 4 == 3 and s < 31: k("s_add_u32 s15, s15, 4096")
    PF = 12
    for s in range(PF): oload(s)
    for s in range(8):
        k(f"s_waitcnt vmcnt({16+PF+7-s})\nds_write_b128 v7, v[{192+4*s}:{195+4*s}] offset:{1024*s}")
    k("s_waitcnt lgkmcnt(0)\ns_barrier")
    stamp(k, 2)
    for s in range(32):
        k(f"ds_read_b128 a[{4*s}:{4*s+3}], v5 offset:{1024*s}")
    for s in range(32):
        if s + PF < 32: oload(s+PF)
        k(f"s_waitcnt vmcnt({min(PF, 31-s)}) lgkmcnt({min(15, 31-s)})")
        k(f"v_mfma_f32_32x32x16_bf16 v[16:31], a[{4*s}:{4*s+3}], v[{64+4*s}:{67+4*s}], {'0' if s == 0 else 'v[16:31]'}")
    stamp(k, 3)
    k("s_waitcnt vmcnt(0)\ns_nop 7\ns_nop 3\nv_mov_b32 v50, 0\nv_mov_b32 v51, 0")
    for r in range(0, 16, 2):
        k(f"""v_cvt_pk_bf16_f32 v48, v{16+r}, v{17+r}
        v_lshlrev_b32 v{16+r}, 16, v48
        v_and_b32 v{17+r}, 0xffff0000, v48
        v_lshlrev_b32 v{32+r}, 16, v{32+r}
        v_lshlrev_b32 v{33+r}, 16, v{33+r}
        v_pk_add_f32 v[{16+r}:{17+r}], v[{16+r}:{17+r}], v[{32+r}:{33+r}]
        v_cvt_pk_bf16_f32 v{32+r//2}, v{16+r}, v{17+r}""")
    k('s_cmp_eq_u32 s42, 0\ns_cbranch_scc1 oproj_mid')
    k("""v_lshlrev_b32 v10, 10, v6
    v_lshl_add_u32 v10, v2, 3, v10
    s_lshl_b32 s18, s13, 17
    s_lshl_b32 s19, s12, 6
    s_add_u32 s18, s18, s19""")
    for q in range(4):
        k(f"buffer_store_dwordx2 v[{32+2*q}:{33+2*q}], v10, s[24:27], s18 offen offset:{16*q}")
    k('s_endpgm'); k.label('oproj_mid')
    for r in range(0, 16, 2):
        unpack(k, 48, 49, 32+r//2)
        k(f"""v_add_f32 v50, v50, v48
        v_fmac_f32 v51, v48, v48
        v_add_f32 v50, v50, v49
        v_fmac_f32 v51, v49, v49
        s_add_u32 s18, s17, {(8*(r//4)+r%4)*4096}
        s_add_u32 s19, s17, {(8*(r//4)+r%4+1)*4096}
        buffer_store_short v{32+r//2}, v9, s[8:11], s18 offen
        buffer_store_short_d16_hi v{32+r//2}, v9, s[8:11], s19 offen""")
    k(f"""v_mov_b32 v52, v50
    v_mov_b32 v53, v51
    s_nop 1
    v_permlane32_swap_b32 v50, v52
    v_permlane32_swap_b32 v51, v53
    v_add_f32 v50, v50, v52
    v_add_f32 v51, v51, v53
    v_cmp_eq_u32 vcc, 1, v2
    s_nop 1
    v_cndmask_b32 v50, v50, v51, vcc
    v_lshlrev_b32 v10, 3, v6
    v_lshl_add_u32 v10, v2, 2, v10
    s_lshl_b32 s18, s13, 10
    s_add_u32 s18, s18, {ST1}
    buffer_atomic_add_f32 v50, v10, s[8:11], s18 offen""")
    stamp(k, 4); stamp_out(k, 5)
    footer(k); sink_srd(k)
    return k.text(), desc(name, 224+128, 224, pl=True) + "\n.p2align 6\n" + desc("oproj2_kernel", 224+128, 224, pl=True)
```

```python
import sys
from gen_common import *
from gen_k1 import k1
from gen_k2 import k2, CONV_LDS
from gen_k3 import k3, QKV_LDS
from gen_k4 import k4, k5
hdr = open('interleave_layers__ssm_conv_s4__sliding_block__prompt.s.ref').read().split('; Override')[0]
ks = [k1(), k2(), k3(), k4("attn1_kernel", True), k5()]
launch = [("prep_kernel", 664, 34816), ("conv1_kernel", 256, CONV_LDS), ("qkv1_kernel", 256, QKV_LDS), ("attn1_kernel", 512, 0), ("oproj1_kernel", 256, 32768),
          ("conv2_kernel", 256, CONV_LDS), ("qkv2_kernel", 256, QKV_LDS), ("attn1_kernel", 512, 0), ("oproj2_kernel", 256, 32768)]
import os
rep = os.environ.get('REP')
if rep:
    nl = []
    for x in launch:
        nl.append(x)
        if x[0] == rep: nl.append(x)
    launch = nl
if len(sys.argv) > 2:
    n = int(sys.argv[2]); off = int(sys.argv[3], 0)
    launch = launch[:n] + [("dump_kernel", 512, 0)]
    k = K("dump_kernel"); header(k, 512)
    k("s_load_dwordx2 s[4:5], s[0:1], 112\ns_load_dwordx2 s[6:7], s[0:1], 96\ns_waitcnt lgkmcnt(0)")
    srd(k, 8, 4, WS_BYTES); srd(k, 12, 6, 0x200000)
    k(f"s_lshl_b32 s3, s2, 12\nv_lshl_add_u32 v1, v0, 4, s3\ns_mov_b32 s16, {off}\nbuffer_load_dwordx4 v[4:7], v1, s[8:11], s16 offen\ns_waitcnt vmcnt(0)\nbuffer_store_dwordx4 v[4:7], v1, s[12:15], 0 offen")
    footer(k); ks.append((k.text(), desc("dump_kernel", 16)))
pre = os.environ.get('PRE')
if pre: launch = launch + launch[:int(pre)]
px = os.environ.get('PX')
if px:
    t, d = k1()
    t = t.replace('prep_', 'prepx_'); d = d.replace('prep_', 'prepx_')
    if px == 'A': t = t.replace('s_cbranch_scc1 prepx_kgen\n', 's_cbranch_scc1 prepx_kernel_end\n')
    elif px == 'B': t = t.replace('s_cbranch_scc1 prepx_kgen\n', 's_cbranch_scc1 prepx_kgen\n    s_endpgm\n')
    elif px == 'C': t = t.replace('s_cmp_ge_u32 s2, 64\n    s_cbranch_scc1 prepx_m1', 's_cmp_ge_u32 s2, 64\n    s_cbranch_scc1 prepx_kernel_end').replace('s_cbranch_scc1 prepx_kgen\n', 's_cbranch_scc1 prepx_kernel_end\n')
    ks.append((t, d)); launch = launch + [("prepx_kernel", 640, 34816)]
pad = os.environ.get('PAD')
if pad:
    k = K("pad_kernel"); header(k, 256)
    if pad == 'A':
        for i in range(4096): k(f"v_add3_u32 v{1+i%8}, v{1+i%8}, v0, v0")
    elif pad == 'B':
        k("s_mov_b32 s3, 64"); k.label("pad_loop")
        for i in range(64): k(f"v_add3_u32 v{1+i%8}, v{1+i%8}, v0, v0")
        k("s_sub_u32 s3, s3, 1\ns_cmp_lg_u32 s3, 0\ns_cbranch_scc1 pad_loop")
    footer(k); ks.append((k.text(), desc("pad_kernel", 16)))
    launch = launch + [("pad_kernel", 256, 0)]
out = hdr
import os
A512 = os.environ.get('A512', '0') == '1'
for n, g, l in launch:
    b = 256
    if A512 and n == 'attn1_kernel': g, b = 256, 512
    out += "; @launch kernel=%s grid=(%d,1,1) block=(%d,1,1) lds=%d\n" % (n, g, b, l)
out += '.amdgcn_target "amdgcn-amd-amdhsa--gfx950"\n.text\n'
names = set(n for n, _, _ in launch)
for t, d in ks:
    if any(('.globl ' + n + '\n') in t for n in names): out += t + "\n"
out += '.section .rodata,"a"\n'
for t, d in ks:
    if any(('.globl ' + n + '\n') in t for n in names): out += ".p2align 6\n" + d + "\n"
open(sys.argv[1], 'w').write(out)
```
